```python
import torch

def _softmax(x, axis=-1):
    return torch.softmax(x, dim=axis)
def _gelu(x):
    return torch.nn.functional.gelu(x, approximate="tanh")
def _silu(x):
    return torch.nn.functional.silu(x)
def _sigmoid(x):
    return torch.sigmoid(x)
def _layernorm(x, axis=-1, eps=1e-5):
    m = x.mean(dim=axis, keepdim=True)
    v = x.var(dim=axis, keepdim=True, unbiased=False)
    return (x - m) / torch.sqrt(v + eps)
def _scatter_add(tgt, idx, src, axis=0):
    return tgt.clone().index_add_(axis, idx, src)
def _segment_sum(src, seg, n):
    out = torch.zeros((n,) + src.shape[1:], dtype=src.dtype)
    return out.index_add_(0, seg, src)
def _pad(x, pw):
    flat = tuple(v for pair in reversed(pw) for v in pair)
    return torch.nn.functional.pad(x, flat)

kernel_name = 'parallel_sum__sliding_block_cached__geglu_ffn__decode'

def setup_inputs():

    _w = (lambda a: (lambda t: t.to(torch.bfloat16) if t.is_floating_point() else t)(torch.as_tensor(a)))
    def _A_setup():
        B, Sq, D = 1, 1, 1024
        Hq, Hkv, Sk, Dh = 32, 4, 65536, 128
        assert Hq % Hkv == 0, (Hq, Hkv)
        return {
            "x": _w((lambda *s: torch.randn(*s, dtype=torch.bfloat16) * 0.05)(B, Sq, D)),
            "k_cache": _w((lambda *s: torch.randn(*s, dtype=torch.bfloat16) * 3.2)(B, Hkv, Sk, Dh)),
            "v_cache": _w((lambda *s: torch.randn(*s, dtype=torch.bfloat16) * 1.6)(B, Hkv, Sk, Dh)),
            "wq": _w((lambda *s: torch.randn(*s, dtype=torch.bfloat16) * 3.2)(D, Hq * Dh) * (D ** -0.5)),
            "wo": _w((lambda *s: torch.randn(*s, dtype=torch.bfloat16) * 1.6)(Hq * Dh, D) * ((Hq * Dh) ** -0.5)),
        }
    _A_in = _A_setup()

    def _B_setup():
        B, S, D, F = 1, 1, 1024, 3584
        return {
            "x": _w((lambda *s: torch.randn(*s, dtype=torch.bfloat16) * 0.05)(B, S, D)),
            "w_gate": _w((lambda *s: torch.randn(*s, dtype=torch.bfloat16) * 0.05)(D, F)),
            "w_up": _w((lambda *s: torch.randn(*s, dtype=torch.bfloat16) * 0.05)(D, F)),
            "w_down": _w((lambda *s: torch.randn(*s, dtype=torch.bfloat16) * 0.05)(F, D)),
        }
    _B_in = _B_setup()

    return {
        "A_x": _A_in["x"],
        "A_k_cache": _A_in["k_cache"],
        "A_v_cache": _A_in["v_cache"],
        "A_wq": _A_in["wq"],
        "A_wo": _A_in["wo"],
        "B_x": _B_in["x"],
        "B_w_gate": _B_in["w_gate"],
        "B_w_up": _B_in["w_up"],
        "B_w_down": _B_in["w_down"],
    }

def reference(A_x, A_k_cache, A_v_cache, A_wq, A_wo, B_x, B_w_gate, B_w_up, B_w_down):
    def _A_ref(x, k_cache, v_cache, wq, wo):
        B, Sq, D = x.shape
        Hq, Dh = 32, 128
        Hkv, Sk = k_cache.shape[1], k_cache.shape[2]
        W = min(4096, max(256, Sk // 4))
        rep = Hq // Hkv
        q = (lambda x, *d: x.permute(*d))((x @ wq).reshape(B, Sq, Hq, Dh), 0, 2, 1, 3)
        k = (lambda x, n, axis: torch.repeat_interleave(x, n, dim=axis))(k_cache[:, :, Sk - W:, :], rep, axis=1)
        v = (lambda x, n, axis: torch.repeat_interleave(x, n, dim=axis))(v_cache[:, :, Sk - W:, :], rep, axis=1)
        scores = torch.einsum("bhqd,bhkd->bhqk", q, k) * (Dh ** -0.5)
        p = _softmax(scores, axis=-1)
        o = torch.einsum("bhqk,bhkd->bhqd", p, v)
        return (lambda x, *d: x.permute(*d))(o, 0, 2, 1, 3).reshape(B, Sq, Hq * Dh) @ wo

    def _B_ref(x, w_gate, w_up, w_down):
        return (_gelu(x @ w_gate) * (x @ w_up)) @ w_down

    x = A_x
    xn = _layernorm(x, axis=-1)
    return x + _A_ref(xn, A_k_cache, A_v_cache, A_wq, A_wo) + _B_ref(xn, B_w_gate, B_w_up, B_w_down)
```

```python
import re

TRANS = ("v_exp_f32","v_log_f32","v_rcp_f32","v_rsq_f32","v_sqrt_f32","v_sin_f32","v_cos_f32","v_rcp_iflag_f32")

def regs_of(tok):
    tok = tok.strip()
    tok = tok.lstrip("-")
    m = re.fullmatch(r"abs\((.*)\)", tok)
    if m: tok = m.group(1)
    tok = tok.strip("|")
    m = re.fullmatch(r"([vsa])(\d+)", tok)
    if m: return {(m.group(1), int(m.group(2)))}
    m = re.fullmatch(r"([vsa])\[(\d+):(\d+)\]", tok)
    if m: return {(m.group(1), i) for i in range(int(m.group(2)), int(m.group(3))+1)}
    if tok == "vcc": return {("s", 106), ("s", 107)}
    if tok == "vcc_lo": return {("s", 106)}
    if tok == "vcc_hi": return {("s", 107)}
    if tok == "m0": return {("s", 124)}
    if tok == "exec": return {("s", 126), ("s", 127)}
    return set()

class Ins:
    def __init__(self, text):
        self.text = text
        t = text.split(";")[0].strip()
        self.label = None; self.op = None; self.target = None
        self.w = set(); self.r = set(); self.kind = "none"
        self.ops = []
        if not t or t.startswith("."):
            return
        if t.endswith(":"):
            self.label = t[:-1]; return
        parts = t.split(None, 1)
        op = parts[0]; self.op = op
        rest = parts[1] if len(parts) > 1 else ""
        ops = []; cur = ""; depth = 0
        for ch in rest:
            if ch == "[": depth += 1
            if ch == "]": depth -= 1
            if ch == "," and depth == 0: ops.append(cur.strip()); cur = ""
            else: cur += ch
        if cur.strip(): ops.append(cur.strip())
        mods = ""
        if ops:
            last = ops[-1].split(None, 1)
            ops[-1] = last[0]
            if len(last) > 1: mods = last[1]
        self.ops = ops; self.mods = mods
        R = [regs_of(o) for o in ops]
        allr = set().union(*R) if R else set()
        self.dpp = "_dpp" in op or "row_" in mods or "quad_perm" in mods
        if op.startswith("v_mfma"):
            self.kind = "mfma"; self.w = R[0]; self.A = R[1]; self.B = R[2]; self.C = R[3]; self.r = R[1] | R[2] | R[3]
            self.passes = 8 if "32x32" in op else 4
        elif op.startswith("v_"):
            self.kind = "valu"
            self.trans = any(op.startswith(x) for x in TRANS)
            if op.startswith("v_permlane"):
                self.w = R[0] | R[1]; self.r = R[0] | R[1]; self.kind2 = "permlane"
            elif op.startswith("v_nop"):
                pass
            else:
                self.w = set(R[0]); self.r = set().union(*R[1:]) if len(R) > 1 else set()
                if re.match(r"v_(add|sub|subrev|addc|subb)_co", op): self.w |= R[1]
                if op.startswith(("v_fmac", "v_dot2c", "v_writelane", "v_pk_fmac")) or self.dpp: self.r |= R[0]
        elif op.startswith(("buffer_", "global_")):
            self.kind = "vmem"
            lds = "lds" in mods.split() or "_lds_" in op
            self.lds = lds
            if "load" in op and not lds:
                self.w = R[0]; self.r = set().union(*R[1:])
            else:
                self.r = allr
                if lds: self.r |= {("s", 124)}
            self.store_data = set()
            if "store" in op and ("x4" in op or "x3" in op):
                self.store_data = R[0] if op.startswith("buffer_") else R[1]
        elif op.startswith("ds_"):
            self.kind = "ds"
            if op.startswith(("ds_read", "ds_bpermute", "ds_permute", "ds_swizzle")) or "_rtn" in op:
                self.w = R[0]; self.r = set().union(*R[1:])
            else: self.r = allr
        elif op.startswith("s_"):
            self.kind = "salu"
            if op.startswith(("s_cbranch", "s_branch")): self.target = ops[0]
            elif op.startswith(("s_cmp", "s_waitcnt", "s_nop", "s_barrier", "s_sleep", "s_setprio", "s_endpgm")): self.r = allr
            else:
                self.w = set(R[0]) if R else set(); self.r = set().union(*R[1:]) if len(R) > 1 else set()
                if "saveexec" in op: self.w |= {("s", 126), ("s", 127)}
    def states(self):
        if self.op is None: return 0
        if self.op == "s_nop": return int(self.ops[0], 0) + 1
        return 1

def isv(s): return {x for x in s if x[0] in "va"}
def iss(s): return {x for x in s if x[0] == "s"}

def need(p, c):
    n = 0
    if p.kind == "valu":
        pv = isv(p.w); ps = iss(p.w)
        if pv:
            if c.kind == "mfma" and pv & c.r: n = max(n, 2)
            if c.kind == "valu":
                if c.dpp and pv & c.r: n = max(n, 2)
                if c.op.startswith("v_permlane") and pv & c.r: n = max(n, 2)
                if c.op.startswith(("v_readlane", "v_readfirstlane")) and pv & c.r: n = max(n, 1)
                if getattr(p, "trans", False) and not getattr(c, "trans", False) and pv & c.r: n = max(n, 1)
        if ps:
            if c.kind == "valu" and ps & c.r:
                n = max(n, 4 if c.op.startswith(("v_readlane", "v_writelane")) else 2)
            if c.kind == "vmem" and ps & c.r: n = max(n, 5)
    if p.kind == "mfma":
        far = 8 if p.passes == 4 else 12
        ov = 6 if p.passes == 4 else 10
        if c.kind == "mfma":
            if p.w & (c.A | c.B): n = max(n, far)
            if p.w & c.C and not (p.w == c.C and p.passes == c.passes): n = max(n, ov)
            if p.w & c.w and not (p.w == c.C): n = max(n, far)
        elif c.kind in ("valu", "vmem", "ds"):
            if p.w & (c.r | c.w): n = max(n, far)
        if c.kind == "valu" and p.C & c.w: n = max(n, 3 if p.passes == 4 else 7)
    if p.kind == "salu" and ("s", 124) in p.w and c.kind == "vmem" and getattr(c, "lds", False): n = max(n, 1)
    if p.kind == "vmem" and getattr(p, "store_data", None):
        if p.store_data & c.w: n = max(n, 2 if c.kind in ("valu", "mfma") else 1)
    return n

def fix_hazards(lines, verbose=False):
    ins = [Ins(l) for l in lines]
    inserted = 0
    changed = True
    while changed:
        changed = False
        labels = {x.label: i for i, x in enumerate(ins) if x.label}
        srcs = {}
        for i, x in enumerate(ins):
            if x.target in labels: srcs.setdefault(labels[x.target], []).append(i)
        for i, c in enumerate(ins):
            if c.op is None or c.kind == "none": continue
            worst = 0
            stack = [(i - 1, 0)]; seen = {}
            while stack:
                j, d = stack.pop()
                if j < 0 or d >= 12: continue
                if seen.get(j, 99) <= d: continue
                seen[j] = d
                p = ins[j]
                if p.label:
                    for s in srcs.get(j, []): stack.append((s, d))
                    k = j - 1
                    while k >= 0 and ins[k].op is None and not ins[k].label: k -= 1
                    if k >= 0 and ins[k].op in ("s_branch", "s_endpgm"): continue
                    stack.append((j - 1, d)); continue
                if p.op is None: stack.append((j - 1, d)); continue
                nn = need(p, c)
                if nn > d: worst = max(worst, nn - d)
                stack.append((j - 1, d + p.states()))
            if worst > 0:
                ins.insert(i, Ins(f"s_nop {worst-1}"))
                inserted += 1; changed = True
                break
    return [x.text for x in ins], inserted

class Regs:
    def __init__(self, kind, start, limit):
        self.kind = kind; self.next = start; self.limit = limit; self.names = {}; self.hi = start
    def alloc(self, name, n=1, align=None):
        align = align or (1 if n == 1 else (2 if self.kind == "v" else (2 if n == 2 else 4)))
        if self.kind == "v" and n >= 4: align = max(align, 4)
        self.next = (self.next + align - 1) // align * align
        r = self.next; self.next += n
        assert self.next <= self.limit, (name, self.next)
        self.hi = max(self.hi, self.next)
        self.names[name] = (r, n)
        return r
```

```python
import sys
from asmdsl import fix_hazards, Regs

NAME = "parallel_sum__sliding_block_cached__geglu_ffn__decode"
QBASE = 0x1000
OBASE = 0x20000
XBASE = 0xA0000
PBASE = 0x100000
TSBASE = 0x300000
L_R = 0; L_Q = 4096; L_P = 6656; L_M = 9216; L_O = 9280; L_F = 9472; L_K = 12288; L_V = 45056
LDS_BYTES = 83968

def gen(mapping="mixed", debug=False, pol="nt", a_pollwait=1, a_wo_early=True, b_win=16, b_down_early=8,
        owave=7, spin=2000000, a_win=8, sleep=0):
    L = []
    def A(s):
        for x in s.split("\n"):
            x = x.strip()
            if x: L.append(x)
    nstamp = [0]
    def stamp(k):
        if debug: A(f"s_memrealtime s[{4+2*k}:{5+2*k}]")
    V = Regs("v", 1, 256)
    v = lambda name, n=1: V.alloc(name, n)
    vr = lambda r, n: f"v[{r}:{r+n-1}]"
    T = v("T", 8); M = v("M", 4); TB = v("TB", 4)
    XS = v("XS", 16); XO = XS + 8; U = v("U", 16); XD = v("XD", 16)
    MB = v("MB", 2); SD = v("SD", 2); RI = v("RI", 2); ACC = v("ACC", 4)
    W2 = v("W2", 32); VW1 = v("VW1"); VW2 = v("VW2"); VXO = v("VXO"); VPP = v("VPP"); XF = v("XF")
    G = XS
    base_role = V.next
    SRD_W1, SRD_W2, SRD_K, SRD_V, SRD_WS, SRD_X, SRD_OUT = 28, 32, 36, 40, 44, 48, 52
    sE, sTAG, sG, sS, sPROD, sF = 56, 57, 58, 59, 60, 61
    sT1 = 62
    sT2 = 78
    s0, s1, s2, s3 = 86, 87, 88, 89
    sCNT = 92; sMSK = 93
    srd = lambda r: f"s[{r}:{r+3}]"

    if debug: A("s_memrealtime s[100:101]")
    A("s_load_dwordx16 s[4:19], s[0:1], 0")
    A("s_load_dwordx8 s[20:27], s[0:1], 64")
    A("s_cmp_ge_u32 s2, 256\ns_cbranch_scc1 L_end")
    A("v_lshrrev_b32 v1, 6, v0\nv_and_b32 v0, 63, v0")
    A("v_readfirstlane_b32 s3, v1")
    A(f"s_and_b32 s{s0}, s2, 7\ns_lshr_b32 s{s1}, s2, 3")
    A(f"v_and_b32 v{T}, 1, v0\nv_lshlrev_b32 v{T}, 4, v{T}\nv_mov_b32 v{T+1}, 0xffff\nv_lshlrev_b32 v{T+1}, v{T}, v{T+1}")
    A(f"v_bfe_u32 v{T+2}, v0, 1, 2")
    for r in range(4):
        A(f"v_cmp_eq_u32 vcc, {r}, v{T+2}\nv_cndmask_b32 v{M+r}, 0, v{T+1}, vcc")
    for j in range(8): A(f"s_mov_b32 s{sT2+j}, {j*2048}")
    if mapping == "mixed":
        A(f"s_cmp_ge_u32 s{s1}, 30\ns_cbranch_scc1 L_end")
        A(f"s_cmp_ge_u32 s{s1}, 16\ns_cbranch_scc1 L_roleB")
        A(f"s_lshr_b32 s{sG}, s{s0}, 1\ns_and_b32 s{sS}, s{s0}, 1\ns_lshl_b32 s{sS}, s{sS}, 4\ns_add_u32 s{sS}, s{sS}, s{s1}")
    else:
        A(f"s_and_b32 s{s2}, s{s0}, 1\ns_cmp_eq_u32 s{s2}, 1\ns_cbranch_scc1 L_roleB")
        A(f"s_lshr_b32 s{sG}, s{s0}, 1\ns_mov_b32 s{sS}, s{s1}")

    def build_srd(r, p, size):
        A(f"s_mov_b32 s{r}, s{p}\ns_mov_b32 s{r+1}, s{p+1}\ns_mov_b32 s{r+2}, {size}\ns_mov_b32 s{r+3}, 0x20000")

    def wave_sum(r):
        for c in ("row_shr:1", "row_shr:2", "row_shr:4", "row_shr:8"):
            A(f"v_add_f32_dpp v{r}, v{r}, v{r} {c} row_mask:0xf bank_mask:0xf bound_ctrl:0")
        A(f"v_add_f32_dpp v{r}, v{r}, v{r} row_bcast:15 row_mask:0xa bank_mask:0xf")
        A(f"v_add_f32_dpp v{r}, v{r}, v{r} row_bcast:31 row_mask:0xc bank_mask:0xf")

    def rbf(dst, src):
        A(f"v_cvt_pk_bf16_f32 v{dst}, {src}, {src}\nv_and_b32 v{dst}, 0xffff0000, v{dst}")

    def layernorm(nown):
        for k in range(8):
            A(f"v_lshlrev_b32 v{U+2*k}, 16, v{XS+k}\nv_and_b32 v{U+2*k+1}, 0xffff0000, v{XS+k}")
        A(f"v_pk_add_f32 {vr(T,2)}, {vr(U,2)}, {vr(U+2,2)}\nv_pk_add_f32 {vr(T+2,2)}, {vr(U+4,2)}, {vr(U+6,2)}")
        A(f"v_pk_add_f32 {vr(T+4,2)}, {vr(U+8,2)}, {vr(U+10,2)}\nv_pk_add_f32 {vr(T+6,2)}, {vr(U+12,2)}, {vr(U+14,2)}")
        A(f"v_pk_add_f32 {vr(T,2)}, {vr(T,2)}, {vr(T+2,2)}\nv_pk_add_f32 {vr(T+4,2)}, {vr(T+4,2)}, {vr(T+6,2)}")
        A(f"v_pk_add_f32 {vr(T,2)}, {vr(T,2)}, {vr(T+4,2)}\nv_add_f32 v{T}, v{T}, v{T+1}")
        wave_sum(T)
        A(f"v_mul_f32 v{T}, 0x3a800000, v{T}\nv_readlane_b32 s{s2}, v{T}, 63")
        for k in range(8):
            A(f"v_pk_add_f32 {vr(U+2*k,2)}, {vr(U+2*k,2)}, s[{s2}:{s2+1}] op_sel_hi:[1,0] neg_lo:[0,1] neg_hi:[0,1]")
        A(f"v_pk_mul_f32 {vr(T,2)}, {vr(U,2)}, {vr(U,2)}\nv_pk_mul_f32 {vr(T+2,2)}, {vr(U+2,2)}, {vr(U+2,2)}")
        for k in range(2, 8):
            t = T + 2 * (k & 1)
            A(f"v_pk_fma_f32 {vr(t,2)}, {vr(U+2*k,2)}, {vr(U+2*k,2)}, {vr(t,2)}")
        A(f"v_pk_add_f32 {vr(T,2)}, {vr(T,2)}, {vr(T+2,2)}\nv_add_f32 v{T}, v{T}, v{T+1}")
        rbf(MB, f"s{s2}")
        wave_sum(T)
        A(f"v_mul_f32 v{T}, 0x3a800000, v{T}\nv_readlane_b32 s{s2}, v{T}, 63")
        rbf(SD, f"s{s2}")
        A(f"v_add_f32 v{SD}, 0x3727c5ac, v{SD}")
        rbf(SD, f"v{SD}")
        A(f"v_sqrt_f32 v{SD}, v{SD}")
        rbf(SD, f"v{SD}")
        A(f"v_rcp_f32 v{RI}, v{SD}")
        for k in range(nown // 2):
            u = U + 2 * (k % 8); t = T + 2 * (k % 2); t2 = T + 4 + 2 * (k % 2)
            A(f"v_lshlrev_b32 v{u}, 16, v{XO+k}\nv_and_b32 v{u+1}, 0xffff0000, v{XO+k}")
            A(f"v_pk_add_f32 {vr(u,2)}, {vr(u,2)}, {vr(MB,2)} op_sel_hi:[1,0] neg_lo:[0,1] neg_hi:[0,1]")
            A(f"v_cvt_pk_bf16_f32 v{t}, v{u}, v{u+1}")
            A(f"v_lshlrev_b32 v{u}, 16, v{t}\nv_and_b32 v{u+1}, 0xffff0000, v{t}")
            A(f"v_pk_mul_f32 {vr(t,2)}, {vr(u,2)}, {vr(RI,2)} op_sel_hi:[1,0]")
            A(f"v_pk_fma_f32 {vr(t2,2)}, {vr(t,2)}, {vr(SD,2)}, {vr(u,2)} op_sel_hi:[1,0,1] neg_lo:[1,0,0] neg_hi:[1,0,0]")
            A(f"v_pk_fma_f32 {vr(t,2)}, {vr(t2,2)}, {vr(RI,2)}, {vr(t,2)} op_sel_hi:[1,0,1]")
            A(f"v_cvt_pk_bf16_f32 v{XD+2*k}, v{t}, v{t}\nv_cvt_pk_bf16_f32 v{XD+2*k+1}, v{t+1}, v{t+1}")

    def get_tag():
        A(f"s_add_u32 s{sE}, s{sE}, 1\ns_mul_i32 s{sTAG}, s{sE}, 0x01010101")
        A(f"v_mov_b32 v{TB}, s{sTAG}\nv_lshrrev_b32 v{TB+1}, 8, v{TB}\nv_lshrrev_b32 v{TB+2}, 16, v{TB}\nv_lshrrev_b32 v{TB+3}, 24, v{TB}")
        A(f"s_mov_b32 s{sMSK}, 0xffffff00\ns_mov_b32 s{sCNT}, {spin}")

    def partial_to_lds():
        A(f"v_lshrrev_b32 v{T}, 5, v0\nv_lshlrev_b32 v{T}, 8, v{T}\nv_and_b32 v{T+1}, 7, v0\nv_lshlrev_b32 v{T+1}, 5, v{T+1}")
        A(f"v_and_b32 v{T+2}, 16, v0\nv_add3_u32 v{T}, v{T}, v{T+1}, v{T+2}")
        A(f"s_lshl_b32 s{s2}, s3, 9\nv_add_u32 v{T}, s{s2}, v{T}")
        return

    def partial_store_lds():
        A("s_mov_b32 exec_lo, 0x00ff00ff\ns_mov_b32 exec_hi, 0xff00ff00")
        A(f"ds_write_b128 v{T}, {vr(ACC,4)} offset:{L_R}")
        A("s_mov_b64 exec, -1")

    def reduce16():
        A(f"v_and_b32 v{T+2}, 31, v0\nv_lshlrev_b32 v{T+2}, 3, v{T+2}\nv_lshrrev_b32 v{T+3}, 5, v0\nv_lshlrev_b32 v{T+3}, 11, v{T+3}\nv_add_u32 v{T+2}, v{T+2}, v{T+3}")
        for k in range(8): A(f"ds_read_b64 {vr(U+2*k,2)}, v{T+2} offset:{L_R+k*256}")
        A("s_waitcnt lgkmcnt(0)")
        A(f"v_pk_add_f32 {vr(U,2)}, {vr(U,2)}, {vr(U+2,2)}\nv_pk_add_f32 {vr(U+4,2)}, {vr(U+4,2)}, {vr(U+6,2)}")
        A(f"v_pk_add_f32 {vr(U+8,2)}, {vr(U+8,2)}, {vr(U+10,2)}\nv_pk_add_f32 {vr(U+12,2)}, {vr(U+12,2)}, {vr(U+14,2)}")
        A(f"v_pk_add_f32 {vr(U,2)}, {vr(U,2)}, {vr(U+4,2)}\nv_pk_add_f32 {vr(U+8,2)}, {vr(U+8,2)}, {vr(U+12,2)}")
        A(f"v_pk_add_f32 {vr(T,2)}, {vr(U,2)}, {vr(U+8,2)}")
        A(f"v_mov_b32 v{T+2}, v{T}\nv_mov_b32 v{T+3}, v{T+1}")
        A(f"v_permlane32_swap_b32 v{T}, v{T+2}\nv_permlane32_swap_b32 v{T+1}, v{T+3}")
        A(f"v_pk_add_f32 {vr(T,2)}, {vr(T,2)}, {vr(T+2,2)}")

    def w2_addr(srow):
        A(f"v_lshrrev_b32 v{T}, 4, v0\nv_lshlrev_b32 v{T}, 14, v{T}\nv_and_b32 v{T+1}, 15, v0\nv_lshlrev_b32 v{T+1}, 4, v{T+1}")
        A(f"s_lshl_b32 s{s2}, s{srow}, 11\ns_lshl_b32 s{s3}, s3, 8\ns_add_u32 s{s2}, s{s2}, s{s3}")
        A(f"v_add3_u32 v{VW2}, v{T}, v{T+1}, s{s2}")
    def w2_load(j):
        A(f"buffer_load_dwordx4 {vr(W2+4*j,4)}, v{VW2}, {srd(SRD_W2)}, s{sT2+j} offen {pol}")
    def pp_addr():
        A(f"v_bfe_u32 v{T}, v0, 1, 3\nv_lshlrev_b32 v{T}, 14, v{T}\nv_and_b32 v{T+1}, 1, v0\nv_lshlrev_b32 v{T+1}, 5, v{T+1}\nv_and_b32 v{T+2}, 16, v0")
        A(f"v_add3_u32 v{T}, v{T}, v{T+1}, v{T+2}")
        A(f"s_lshl_b32 s{s2}, s3, 17\ns_lshl_b32 s{s3}, s{sPROD}, 6\ns_add_u32 s{s2}, s{s2}, s{s3}\ns_add_u32 s{s2}, s{s2}, {PBASE}")
        A(f"v_add_u32 v{VPP}, s{s2}, v{T}")
    def stage3(AF):
        A(f"v_lshrrev_b32 v{T}, 4, v0\nv_lshlrev_b32 v{T}, 5, v{T}")
        A(f"ds_read_b128 {vr(XD,4)}, v{T} offset:{L_O}\nds_read_b128 {vr(XD+4,4)}, v{T} offset:{L_O+16}")
        A("s_waitcnt lgkmcnt(0)")
        for j in range(8):
            for r in range(4): A(f"v_and_b32 v{AF+4*j+r}, v{XD+j}, v{M+r}")
            if j >= 1:
                jj = j - 1
                A(f"s_waitcnt vmcnt({7-jj})")
                A(f"v_mfma_f32_16x16x32_bf16 {vr(ACC,4)}, {vr(AF+4*jj,4)}, {vr(W2+4*jj,4)}, {vr(ACC,4) if jj else 0}")
        A("s_waitcnt vmcnt(0)")
        A(f"v_mfma_f32_16x16x32_bf16 {vr(ACC,4)}, {vr(AF+28,4)}, {vr(W2+28,4)}, {vr(ACC,4)}")
        A("s_mov_b32 exec_hi, 0")
        for r in range(4): A(f"v_bfi_b32 v{T+r}, s{sMSK}, v{ACC+r}, v{TB+r}")
        A(f"buffer_store_dwordx4 {vr(T,4)}, v{VPP}, {srd(SRD_WS)}, 0 offen sc1")
        A("s_mov_b64 exec, -1")
    def spin_tail(lbl_retry, lbl_bail):
        if sleep: A(f"s_sleep {sleep}")
        A(f"s_sub_u32 s{sCNT}, s{sCNT}, 1\ns_cbranch_scc0 {lbl_retry}\ns_mov_b32 s{sCNT}, 0")
    def write_stamps(n):
        if not debug: return
        A("s_waitcnt lgkmcnt(0)")
        for k in range(n): A(f"v_writelane_b32 v{T+4}, s{4+2*k}, {k}")
        A(f"v_writelane_b32 v{T+4}, s100, 15")
        A(f"s_lshl_b32 s{s2}, s2, 3\ns_add_u32 s{s2}, s{s2}, s3\ns_lshl_b32 s{s2}, s{s2}, 6\ns_add_u32 s{s2}, s{s2}, {TSBASE}")
        A(f"v_lshlrev_b32 v{T+5}, 2, v0\nv_add_u32 v{T+5}, s{s2}, v{T+5}")
        A("s_mov_b32 exec_lo, 0xffff\ns_mov_b32 exec_hi, 0")
        A(f"buffer_store_dword v{T+4}, v{T+5}, {srd(SRD_WS)}, 0 offen")
        A("s_mov_b64 exec, -1")

    V.next = base_role
    W1 = v("W1", 32); AF = v("AF", 32); KA = v("KA", 4); VA = v("VA", 2); KR = v("KR", 4); VR_ = v("VR"); QR = v("QR"); PW = v("PW")
    KF = W1; QF = W1 + 16; VF = AF; ONE = v("ONE", 4); LA = v("LA", 4); VQP = v("VQP"); VOP = v("VOP"); VOG = v("VOG"); HM = v("HM")
    hiA = V.next
    A(f"s_and_b32 s{s2}, s{sS}, 1\ns_lshl_b32 s{s2}, s{s2}, 9\ns_lshl_b32 s{s3}, s3, 6\ns_add_u32 s{s2}, s{s2}, s{s3}")
    A(f"v_lshrrev_b32 v{T}, 3, v0\nv_lshlrev_b32 v{T}, 3, v{T}\nv_add_u32 v{T}, s{s2}, v{T}")
    A(f"v_lshlrev_b32 v{VXO}, 1, v{T}")
    A(f"s_lshl_b32 s{s2}, s{sG}, 11\ns_lshr_b32 s{s3}, s{sS}, 1\ns_lshl_b32 s{s3}, s{s3}, 7\ns_add_u32 s{s2}, s{s2}, s{s3}")
    A(f"v_and_b32 v{T+1}, 7, v0\nv_lshlrev_b32 v{T+1}, 4, v{T+1}\nv_lshlrev_b32 v{T}, 13, v{T}\nv_add3_u32 v{VW1}, v{T}, v{T+1}, s{s2}")
    A(f"v_lshlrev_b32 v{T+2}, 5, v0")
    for j in range(8): A(f"s_mov_b32 s{sT1+j}, {j*8192}")
    A("s_waitcnt lgkmcnt(0)")
    A(f"s_load_dword s{sE}, s[26:27], 0")
    build_srd(SRD_X, 4, 2048); build_srd(SRD_W1, 10, 8388608)
    A(f"buffer_load_dwordx4 {vr(XS,4)}, v{T+2}, {srd(SRD_X)}, 0 offen\nbuffer_load_dwordx4 {vr(XS+4,4)}, v{T+2}, {srd(SRD_X)}, 0 offen offset:16")
    A(f"buffer_load_dwordx4 {vr(XO,4)}, v{VXO}, {srd(SRD_X)}, 0 offen")
    def a_load(n):
        if n < 8: A(f"buffer_load_dwordx4 {vr(W1+4*n,4)}, v{VW1}, {srd(SRD_W1)}, s{sT1+n} offen {pol}")
        elif n < 12:
            if n == 8: A(f"s_lshl_b32 s{s2}, s3, 12\ns_add_u32 m0, s{s2}, {L_K}")
            A(f"buffer_load_dwordx4 v{KA+n-8}, {srd(SRD_K)}, 0 offen offset:{(n-8)*1024} {pol} lds")
        else:
            if n == 12: A(f"s_lshl_b32 s{s2}, s3, 12\ns_add_u32 m0, s{s2}, {L_V}")
            A(f"buffer_load_dwordx4 v{VA+(n-12)//2}, {srd(SRD_V)}, 0 offen offset:{(n-12)*1024} {pol} lds")
    first = min(a_win, 8)
    for n in range(first): a_load(n)
    build_srd(SRD_K, 6, 67108864); build_srd(SRD_V, 8, 67108864); build_srd(SRD_W2, 12, 8388608); build_srd(SRD_WS, 26, 268435456)
    stamp(0)
    A(f"s_lshl_b32 s{s2}, s{sG}, 24\ns_lshl_b32 s{s3}, s{sS}, 15\ns_add_u32 s{s2}, s{s2}, s{s3}\ns_lshl_b32 s{s3}, s3, 12\ns_add_u32 s{s2}, s{s2}, s{s3}\ns_add_u32 s{s2}, s{s2}, {61440*256}")
    A(f"v_lshrrev_b32 v{T}, 4, v0\nv_and_b32 v{T+1}, 15, v0\nv_lshlrev_b32 v{T+2}, 8, v{T}\nv_add_u32 v{T+2}, s{s2}, v{T+2}")
    A(f"v_xor_b32 v{T+3}, v{T}, v{T+1}\nv_lshlrev_b32 v{T+3}, 4, v{T+3}")
    for t in range(4): A(f"v_xor_b32 v{T+4}, {64*t}, v{T+3}\nv_add_u32 v{KA+t}, v{T+4}, v{T+2}")
    A(f"v_lshlrev_b32 v{T+4}, 1, v{T}\nv_xor_b32 v{T+4}, v{T+4}, v{T+1}\nv_lshlrev_b32 v{T+4}, 4, v{T+4}\nv_add_u32 v{VA}, v{T+4}, v{T+2}")
    A(f"v_xor_b32 v{T+4}, 128, v{T+4}\nv_add_u32 v{VA+1}, v{T+4}, v{T+2}")
    for n in range(first, a_win): a_load(n)
    A(f"s_lshl_b32 s{s2}, s3, 12\nv_lshlrev_b32 v{T+4}, 8, v{T+1}\nv_add_u32 v{T+4}, s{s2}, v{T+4}")
    for ks in range(4): A(f"v_xor_b32 v{T+5}, {64*ks}, v{T+3}\nv_add_u32 v{KR+ks}, v{T+5}, v{T+4}")
    A(f"v_bfe_u32 v{T+4}, v0, 2, 2\nv_lshl_add_u32 v{T+5}, v{T}, 3, v{T+4}\nv_lshlrev_b32 v{T+5}, 8, v{T+5}")
    A(f"v_and_b32 v{T+6}, 1, v{T}\nv_lshl_or_b32 v{T+4}, v{T+6}, 2, v{T+4}\nv_xor_b32 v{T+4}, s3, v{T+4}\nv_lshlrev_b32 v{T+4}, 5, v{T+4}")
    A(f"v_and_b32 v{T+6}, 3, v0\nv_lshlrev_b32 v{T+6}, 3, v{T+6}\nv_add3_u32 v{VR_}, v{T+4}, v{T+5}, v{T+6}\nv_add_u32 v{VR_}, {L_V}, v{VR_}")
    A(f"v_and_b32 v{T+4}, 7, v0\nv_lshlrev_b32 v{HM}, 2, v{T+4}\nv_mul_u32_u24 v{T+4}, 288, v{T+4}\nv_lshl_add_u32 v{QR}, v{T}, 4, v{T+4}")
    A(f"s_lshl_b32 s{s2}, s3, 5\nv_lshl_add_u32 v{PW}, v{T}, 3, v{T+4}\nv_add_u32 v{PW}, s{s2}, v{PW}")
    A(f"s_lshl_b32 s{s2}, s{sG}, 14\ns_lshl_b32 s{s3}, s3, 10\ns_add_u32 s{s2}, s{s2}, s{s3}\ns_add_u32 s{s2}, s{s2}, {QBASE}")
    A(f"v_lshl_add_u32 v{VQP}, v0, 4, s{s2}")
    A(f"s_lshl_b32 s{s2}, s{sG}, 17\ns_lshr_b32 s{s3}, s3, 1\ns_lshl_b32 s{s3}, s{s3}, 12\ns_add_u32 s{s2}, s{s2}, s{s3}")
    A(f"s_lshl_b32 s{s3}, s{sS}, 7\ns_add_u32 s{s2}, s{s2}, s{s3}\ns_and_b32 s{s3}, s3, 1\ns_lshl_b32 s{s3}, s{s3}, 6\ns_add_u32 s{s2}, s{s2}, s{s3}\ns_add_u32 s{s2}, s{s2}, {OBASE}")
    A(f"v_lshlrev_b32 v{T+4}, 12, v{HM}\nv_lshlrev_b32 v{T+5}, 4, v{T}\nv_add3_u32 v{VOP}, v{T+4}, v{T+5}, s{s2}")
    A(f"s_lshl_b32 s{s2}, s{sG}, 17\ns_lshl_b32 s{s3}, s{sS}, 12\ns_add_u32 s{s2}, s{s2}, s{s3}\ns_add_u32 s{s2}, s{s2}, {OBASE}")
    A(f"v_lshl_add_u32 v{VOG}, v0, 4, s{s2}")
    A(f"s_lshl_b32 s{sPROD}, s{sG}, 5\ns_add_u32 s{sPROD}, s{sPROD}, s{sS}\ns_lshl_b32 s{s0}, s{sPROD}, 5")
    w2_addr(s0); pp_addr()
    for r in range(4): A(f"v_mov_b32 v{ONE+r}, 0x3f803f80")
    A(f"v_mov_b32 v{T}, 0xff800000\nds_write_b32 v{HM}, v{T} offset:{L_M}")
    A(f"s_waitcnt vmcnt({a_win}) lgkmcnt(0)")
    get_tag()
    stamp(1)
    layernorm(8)
    for j in range(8):
        for r in range(4): A(f"v_and_b32 v{AF+4*j+r}, v{XD+j}, v{M+r}")
    partial_to_lds()
    stamp(2)
    issued = a_win
    for j in range(8):
        A(f"s_waitcnt vmcnt({issued-1-j})")
        A(f"v_mfma_f32_16x16x32_bf16 {vr(ACC,4)}, {vr(AF+4*j,4)}, {vr(W1+4*j,4)}, {vr(ACC,4) if j else 0}")
        if issued < 16: a_load(issued); issued += 1
    while issued < 16: a_load(issued); issued += 1
    stamp(3)
    partial_store_lds()
    A("s_waitcnt lgkmcnt(0)\ns_barrier")
    A("s_cmp_lg_u32 s3, 0\ns_cbranch_scc1 LA_nopub")
    reduce16()
    A(f"v_mov_b32 v{T+2}, s{sTAG}\nv_mov_b32 v{T+3}, s{sTAG}")
    A(f"s_lshl_b32 s{s2}, s{sG}, 14\ns_and_b32 s{s3}, s{sS}, 1\ns_lshl_b32 s{s3}, s{s3}, 13\ns_add_u32 s{s2}, s{s2}, s{s3}\ns_lshr_b32 s{s3}, s{sS}, 1\ns_lshl_b32 s{s3}, s{s3}, 9\ns_add_u32 s{s2}, s{s2}, s{s3}\ns_add_u32 s{s2}, s{s2}, {QBASE}")
    A(f"v_lshl_add_u32 v{T+4}, v0, 4, s{s2}")
    A("s_mov_b32 exec_hi, 0")
    A(f"buffer_store_dwordx4 {vr(T,4)}, v{T+4}, {srd(SRD_WS)}, 0 offen sc1")
    A("s_mov_b64 exec, -1")
    A("LA_nopub:")
    stamp(4)
    A("s_waitcnt vmcnt(4)")
    for ks in range(4): A(f"ds_read_b128 {vr(KF+4*ks,4)}, v{KR+ks} offset:{L_K}")
    A(f"s_waitcnt vmcnt({a_pollwait})")
    def q_loads():
        A(f"buffer_load_dwordx4 {vr(G,4)}, v{VQP}, {srd(SRD_WS)}, 0 offen sc1")
        A(f"buffer_load_dwordx4 {vr(G+4,4)}, v{VQP}, {srd(SRD_WS)}, s{sT1+1} offen sc1")
    def q_check(ok):
        A(f"v_cmp_ne_u32 vcc, s{sTAG}, v{G+2}\nv_cmp_ne_u32 s[94:95], s{sTAG}, v{G+3}\nv_cmp_ne_u32 s[96:97], s{sTAG}, v{G+6}\nv_cmp_ne_u32 s[98:99], s{sTAG}, v{G+7}")
        A(f"s_or_b64 s[94:95], s[94:95], vcc\ns_or_b64 s[96:97], s[96:97], s[98:99]\ns_or_b64 s[94:95], s[94:95], s[96:97]\ns_cbranch_scc0 {ok}")
    if a_wo_early:
        q_loads()
        for j in range(8): w2_load(j)
        A("s_waitcnt vmcnt(8)")
        q_check("LA_qok")
    A("LA_qpoll:")
    q_loads()
    A("s_waitcnt vmcnt(0)")
    q_check("LA_qok")
    spin_tail("LA_qpoll", None)
    A("LA_qok:")
    if not a_wo_early:
        for j in range(8): w2_load(j)
    stamp(5)
    A(f"v_pk_add_f32 {vr(G,2)}, {vr(G,2)}, {vr(G+4,2)}\nv_cvt_pk_bf16_f32 v{G}, v{G}, v{G+1}")
    A(f"s_mul_i32 s{s2}, s3, 288\nv_lshl_add_u32 v{T}, v0, 2, s{s2}\nds_write_b32 v{T}, v{G} offset:{L_Q}")
    A("s_waitcnt lgkmcnt(0)\ns_barrier")
    for ks in range(4): A(f"ds_read_b128 {vr(QF+4*ks,4)}, v{QR} offset:{L_Q+64*ks}")
    for ks in range(4):
        A(f"s_waitcnt lgkmcnt({0 if debug else 3-ks})")
        A(f"v_mfma_f32_16x16x32_bf16 {vr(ACC,4)}, {vr(KF+4*ks,4)}, {vr(QF+4*ks,4)}, {vr(ACC,4) if ks else 0}")
    for ks in range(4):
        for hh in range(2): A(f"ds_read_b64_tr_b16 {vr(VF+4*ks+2*hh,2)}, v{VR_} offset:{ks*8192+hh*1024}")
    A(f"s_mov_b32 s{s2}, 0x3db504f3")
    A(f"v_cvt_pk_bf16_f32 v{T}, v{ACC}, v{ACC+1}\nv_cvt_pk_bf16_f32 v{T+1}, v{ACC+2}, v{ACC+3}")
    A(f"v_lshlrev_b32 v{U}, 16, v{T}\nv_and_b32 v{U+1}, 0xffff0000, v{T}\nv_lshlrev_b32 v{U+2}, 16, v{T+1}\nv_and_b32 v{U+3}, 0xffff0000, v{T+1}")
    A(f"v_pk_mul_f32 {vr(U,2)}, {vr(U,2)}, s[{s2}:{s2+1}] op_sel_hi:[1,0]\nv_pk_mul_f32 {vr(U+2,2)}, {vr(U+2,2)}, s[{s2}:{s2+1}] op_sel_hi:[1,0]")
    A(f"v_cvt_pk_bf16_f32 v{T}, v{U}, v{U+1}\nv_cvt_pk_bf16_f32 v{T+1}, v{U+2}, v{U+3}")
    A(f"v_lshlrev_b32 v{U}, 16, v{T}\nv_and_b32 v{U+1}, 0xffff0000, v{T}\nv_lshlrev_b32 v{U+2}, 16, v{T+1}\nv_and_b32 v{U+3}, 0xffff0000, v{T+1}")
    A(f"v_max3_f32 v{T}, v{U}, v{U+1}, v{U+2}\nv_max_f32 v{T}, v{T}, v{U+3}")
    A(f"ds_max_f32 v{HM}, v{T} offset:{L_M}")
    A("s_waitcnt lgkmcnt(0)\ns_barrier")
    A(f"ds_read_b32 v{MB}, v{HM} offset:{L_M}")
    A(f"s_mov_b32 s{s2}, 0x3fb8aa3b")
    A("s_waitcnt lgkmcnt(0)")
    A(f"v_pk_add_f32 {vr(U,2)}, {vr(U,2)}, {vr(MB,2)} op_sel_hi:[1,0] neg_lo:[0,1] neg_hi:[0,1]\nv_pk_add_f32 {vr(U+2,2)}, {vr(U+2,2)}, {vr(MB,2)} op_sel_hi:[1,0] neg_lo:[0,1] neg_hi:[0,1]")
    A(f"v_pk_mul_f32 {vr(U,2)}, {vr(U,2)}, s[{s2}:{s2+1}] op_sel_hi:[1,0]\nv_pk_mul_f32 {vr(U+2,2)}, {vr(U+2,2)}, s[{s2}:{s2+1}] op_sel_hi:[1,0]")
    for r in range(4): A(f"v_exp_f32 v{U+r}, v{U+r}")
    A(f"v_cvt_pk_bf16_f32 v{T}, v{U}, v{U+1}\nv_cvt_pk_bf16_f32 v{T+1}, v{U+2}, v{U+3}")
    A(f"ds_write_b64 v{PW}, {vr(T,2)} offset:{L_P}")
    A(f"v_mul_f32 v{MB}, s{s2}, v{MB}")
    A("s_waitcnt lgkmcnt(0)\ns_barrier")
    for ks in range(4): A(f"ds_read_b128 {vr(QF+4*ks,4)}, v{QR} offset:{L_P+64*ks}")
    for ks in range(4):
        A(f"s_waitcnt lgkmcnt({0 if debug else 3-ks})")
        A(f"v_mfma_f32_16x16x32_bf16 {vr(LA,4)}, {vr(ONE,4)}, {vr(QF+4*ks,4)}, {vr(LA,4) if ks else 0}")
        A(f"v_mfma_f32_16x16x32_bf16 {vr(ACC,4)}, {vr(VF+4*ks,4)}, {vr(QF+4*ks,4)}, {vr(ACC,4) if ks else 0}")
    A(f"v_rcp_f32 v{RI}, v{LA}\nv_log_f32 v{T+2}, v{LA}")
    A(f"v_mov_b32 v{T+3}, s{sTAG}")
    A(f"v_add_f32 v{T+2}, v{T+2}, v{MB}")
    A(f"v_pk_mul_f32 {vr(ACC,2)}, {vr(ACC,2)}, {vr(RI,2)} op_sel_hi:[1,0]\nv_pk_mul_f32 {vr(ACC+2,2)}, {vr(ACC+2,2)}, {vr(RI,2)} op_sel_hi:[1,0]")
    A(f"v_cvt_pk_bf16_f32 v{T}, v{ACC}, v{ACC+1}\nv_cvt_pk_bf16_f32 v{T+1}, v{ACC+2}, v{ACC+3}")
    A("s_mov_b32 exec_lo, 0x00ff00ff\ns_mov_b32 exec_hi, 0x00ff00ff")
    A(f"buffer_store_dwordx4 {vr(T,4)}, v{VOP}, {srd(SRD_WS)}, 0 offen sc1")
    A("s_mov_b64 exec, -1")
    stamp(6)
    A(f"s_cmp_lg_u32 s3, {owave}\ns_cbranch_scc1 LA_ogot")
    A("LA_opoll:")
    for u in range(4): A(f"buffer_load_dwordx4 {vr(G+4*u,4)}, v{VOG}, {srd(SRD_WS)}, 0 offen offset:{u*1024} sc1")
    A("s_waitcnt vmcnt(0)")
    A(f"v_cmp_ne_u32 vcc, s{sTAG}, v{G+3}\nv_cmp_ne_u32 s[94:95], s{sTAG}, v{G+7}\nv_cmp_ne_u32 s[96:97], s{sTAG}, v{G+11}\nv_cmp_ne_u32 s[98:99], s{sTAG}, v{G+15}")
    A(f"s_or_b64 s[94:95], s[94:95], vcc\ns_or_b64 s[96:97], s[96:97], s[98:99]\ns_or_b64 s[94:95], s[94:95], s[96:97]\ns_cbranch_scc0 LA_ook")
    spin_tail("LA_opoll", None)
    A("LA_ook:")
    stamp(7)
    A(f"v_max3_f32 v{T}, v{G+2}, v{G+6}, v{G+10}\nv_max_f32 v{T}, v{T}, v{G+14}")
    A(f"v_max_f32_dpp v{T}, v{T}, v{T} row_ror:8 row_mask:0xf bank_mask:0xf")
    A(f"v_mov_b32 v{T+1}, v{T}\nv_permlane16_swap_b32 v{T}, v{T+1}\nv_max_f32 v{T}, v{T}, v{T+1}")
    A(f"v_mov_b32 v{T+1}, v{T}\nv_permlane32_swap_b32 v{T}, v{T+1}\nv_max_f32 v{T}, v{T}, v{T+1}")
    for u in range(4): A(f"v_sub_f32 v{G+4*u+2}, v{G+4*u+2}, v{T}")
    for u in range(4): A(f"v_exp_f32 v{G+4*u+2}, v{G+4*u+2}")
    for u in range(4):
        A(f"v_lshlrev_b32 v{U+4*u}, 16, v{G+4*u}\nv_and_b32 v{U+4*u+1}, 0xffff0000, v{G+4*u}\nv_lshlrev_b32 v{U+4*u+2}, 16, v{G+4*u+1}\nv_and_b32 v{U+4*u+3}, 0xffff0000, v{G+4*u+1}")
    A(f"v_pk_mul_f32 {vr(ACC,2)}, {vr(U,2)}, {vr(G+2,2)} op_sel_hi:[1,0]\nv_pk_mul_f32 {vr(ACC+2,2)}, {vr(U+2,2)}, {vr(G+2,2)} op_sel_hi:[1,0]")
    for u in range(1, 4):
        A(f"v_pk_fma_f32 {vr(ACC,2)}, {vr(U+4*u,2)}, {vr(G+4*u+2,2)}, {vr(ACC,2)} op_sel_hi:[1,0,1]\nv_pk_fma_f32 {vr(ACC+2,2)}, {vr(U+4*u+2,2)}, {vr(G+4*u+2,2)}, {vr(ACC+2,2)} op_sel_hi:[1,0,1]")
    A(f"v_add_f32 v{T}, v{G+2}, v{G+6}\nv_add_f32 v{T+1}, v{G+10}, v{G+14}\nv_add_f32 v{T}, v{T}, v{T+1}")
    for r in range(4): A(f"v_add_f32_dpp v{ACC+r}, v{ACC+r}, v{ACC+r} row_ror:8 row_mask:0xf bank_mask:0xf")
    A(f"v_add_f32_dpp v{T}, v{T}, v{T} row_ror:8 row_mask:0xf bank_mask:0xf")
    A(f"v_permlane16_swap_b32 v{ACC}, v{ACC+1}\nv_permlane16_swap_b32 v{ACC+2}, v{ACC+3}\nv_mov_b32 v{T+1}, v{T}")
    A(f"v_add_f32 v{ACC}, v{ACC}, v{ACC+1}\nv_add_f32 v{ACC+2}, v{ACC+2}, v{ACC+3}\nv_permlane16_swap_b32 v{T}, v{T+1}")
    A(f"v_add_f32 v{T}, v{T}, v{T+1}\nv_permlane32_swap_b32 v{ACC}, v{ACC+2}\nv_mov_b32 v{T+1}, v{T}")
    A(f"v_add_f32 v{ACC}, v{ACC}, v{ACC+2}\nv_permlane32_swap_b32 v{T}, v{T+1}\nv_add_f32 v{T}, v{T}, v{T+1}")
    A(f"v_rcp_f32 v{T}, v{T}")
    A(f"v_and_b32 v{T+2}, 7, v0\nv_lshlrev_b32 v{T+2}, 4, v{T+2}\nv_lshrrev_b32 v{T+3}, 4, v0\nv_lshl_add_u32 v{T+2}, v{T+3}, 2, v{T+2}")
    A(f"v_mul_f32 v{ACC}, v{ACC}, v{T}\nv_cvt_pk_bf16_f32 v{ACC}, v{ACC}, v{ACC}")
    A(f"ds_write_b32 v{T+2}, v{ACC} offset:{L_O}")
    A("LA_ogot:")
    A("s_waitcnt lgkmcnt(0)\ns_barrier")
    stamp(8)
    stage3(AF)
    stamp(9)
    write_stamps(10)
    A("s_endpgm")

    V.next = base_role
    W1 = v("W1b", 64); AF = v("AFb", 64); VXS = v("VXS"); VXG = v("VXG"); VFG = v("VFG")
    hiB = V.next
    A("L_roleB:")
    if mapping == "mixed":
        A(f"s_sub_u32 s{s1}, s{s1}, 16\ns_mul_i32 s{sPROD}, s{s0}, 14\ns_add_u32 s{sPROD}, s{sPROD}, s{s1}")
        A(f"s_lshl_b32 s{sF}, s{s0}, 3\ns_add_u32 s{sF}, s{sF}, s{s1}\ns_cmp_lt_u32 s{s1}, 8\ns_cselect_b32 s{sF}, s{sF}, -1")
    else:
        A(f"s_cmp_ge_u32 s{s1}, 28\ns_cbranch_scc1 L_end")
        A(f"s_lshr_b32 s{s0}, s{s0}, 1\ns_mul_i32 s{sPROD}, s{s0}, 28\ns_add_u32 s{sPROD}, s{sPROD}, s{s1}")
        A(f"s_lshl_b32 s{sF}, s{s0}, 4\ns_add_u32 s{sF}, s{sF}, s{s1}\ns_cmp_lt_u32 s{s1}, 16\ns_cselect_b32 s{sF}, s{sF}, -1")
    A(f"s_lshr_b32 s{sG}, s{sPROD}, 1\ns_and_b32 s{sS}, s{sPROD}, 1")
    A(f"s_lshl_b32 s{s2}, s3, 7\nv_lshrrev_b32 v{T}, 3, v0\nv_lshl_add_u32 v{T}, v{T}, 4, s{s2}\nv_lshlrev_b32 v{VXO}, 1, v{T}")
    A(f"s_lshl_b32 s{s2}, s{sG}, 7\nv_and_b32 v{T+1}, 7, v0\nv_lshlrev_b32 v{T+1}, 4, v{T+1}\nv_mul_u32_u24 v{T}, 7168, v{T}\nv_add3_u32 v{VW1}, v{T}, v{T+1}, s{s2}")
    A(f"v_lshlrev_b32 v{T+2}, 5, v0")
    for j in range(16): A(f"s_mov_b32 s{sT1+j}, {j*7168}")
    A(f"s_cmp_eq_u32 s{sS}, 0")
    A("s_waitcnt lgkmcnt(0)")
    A(f"s_load_dword s{sE}, s[26:27], 0")
    A(f"s_cselect_b32 s{SRD_W1}, s16, s18\ns_cselect_b32 s{SRD_W1+1}, s17, s19\ns_mov_b32 s{SRD_W1+2}, 7340032\ns_mov_b32 s{SRD_W1+3}, 0x20000")
    build_srd(SRD_X, 4, 2048)
    A(f"buffer_load_dwordx4 {vr(XS,4)}, v{T+2}, {srd(SRD_X)}, 0 offen\nbuffer_load_dwordx4 {vr(XS+4,4)}, v{T+2}, {srd(SRD_X)}, 0 offen offset:16")
    A(f"buffer_load_dwordx4 {vr(XO,4)}, v{VXO}, {srd(SRD_X)}, 0 offen\nbuffer_load_dwordx4 {vr(XO+4,4)}, v{VXO}, {srd(SRD_X)}, 0 offen offset:16")
    A(f"s_lshl_b32 s{s2}, s{sF}, 5\nv_and_b32 v{T+3}, 15, v0\nv_lshl_add_u32 v{T+3}, v{T+3}, 1, s{s2}")
    A(f"buffer_load_ushort v{XF}, v{T+3}, {srd(SRD_X)}, 0 offen")
    nb_total = 16 + b_down_early
    def b_load(n):
        if n < 16: A(f"buffer_load_dwordx4 {vr(W1+4*n,4)}, v{VW1}, {srd(SRD_W1)}, s{sT1+n} offen {pol}")
        else: w2_load(n - 16)
    for n in range(b_win): b_load(n)
    build_srd(SRD_W2, 20, 7340032); build_srd(SRD_WS, 26, 268435456); build_srd(SRD_OUT, 22, 2048)
    stamp(0)
    A(f"s_lshl_b32 s{s0}, s{sPROD}, 5")
    w2_addr(s0)
    A(f"v_and_b32 v{T}, 15, v0\nv_lshlrev_b32 v{T}, 3, v{T}")
    A(f"s_lshl_b32 s{s2}, s{sPROD}, 7\ns_add_u32 s{s2}, s{s2}, {XBASE}\nv_add_u32 v{VXG}, s{s2}, v{T}")
    A(f"s_xor_b32 s{s2}, s{sPROD}, 1\ns_lshl_b32 s{s2}, s{s2}, 7\ns_add_u32 s{s2}, s{s2}, {XBASE}\nv_add_u32 v{VXS}, s{s2}, v{T}")
    A(f"s_lshl_b32 s{s2}, s{sF}, 14\ns_lshl_b32 s{s3}, s3, 11\ns_add_u32 s{s2}, s{s2}, s{s3}\ns_add_u32 s{s2}, s{s2}, {PBASE}\nv_lshl_add_u32 v{VFG}, v0, 4, s{s2}")
    A(f"s_add_u32 s{sPROD}, s{sPROD}, 128")
    pp_addr()
    A(f"s_waitcnt vmcnt({b_win}) lgkmcnt(0)")
    get_tag()
    stamp(1)
    layernorm(16)
    for j in range(16):
        for r in range(4): A(f"v_and_b32 v{AF+4*j+r}, v{XD+j}, v{M+r}")
    partial_to_lds()
    stamp(2)
    issued = b_win
    for j in range(16):
        A(f"s_waitcnt vmcnt({issued-1-j})")
        A(f"v_mfma_f32_16x16x32_bf16 {vr(ACC,4)}, {vr(AF+4*j,4)}, {vr(W1+4*j,4)}, {vr(ACC,4) if j else 0}")
        if issued < nb_total: b_load(issued); issued += 1
    while issued < nb_total: b_load(issued); issued += 1
    stamp(3)
    partial_store_lds()
    A("s_waitcnt lgkmcnt(0)\ns_barrier")
    A("s_cmp_lg_u32 s3, 0\ns_cbranch_scc1 LB_hgot")
    reduce16()
    A(f"v_cvt_pk_bf16_f32 v{T}, v{T}, v{T+1}")
    A(f"s_cmp_lg_u32 s{sS}, 0\ns_cbranch_scc1 LB_nogelu")
    A(f"v_lshlrev_b32 v{U}, 16, v{T}\nv_and_b32 v{U+1}, 0xffff0000, v{T}")
    A(f"s_mov_b32 s{s2}, 0x3d372713")
    A(f"v_pk_mul_f32 {vr(U+2,2)}, {vr(U,2)}, {vr(U,2)}")
    A(f"v_fma_f32 v{U+2}, v{U+2}, s{s2}, 1.0\nv_fma_f32 v{U+3}, v{U+3}, s{s2}, 1.0")
    A(f"v_pk_mul_f32 {vr(U+2,2)}, {vr(U+2,2)}, {vr(U,2)}")
    A(f"v_mul_f32 v{U+2}, 0xc0135761, v{U+2}\nv_mul_f32 v{U+3}, 0xc0135761, v{U+3}")
    A(f"v_exp_f32 v{U+2}, v{U+2}\nv_exp_f32 v{U+3}, v{U+3}")
    A(f"v_add_f32 v{U+2}, 1.0, v{U+2}\nv_add_f32 v{U+3}, 1.0, v{U+3}")
    A(f"v_rcp_f32 v{U+2}, v{U+2}\nv_rcp_f32 v{U+3}, v{U+3}")
    A(f"v_pk_mul_f32 {vr(U,2)}, {vr(U,2)}, {vr(U+2,2)}")
    A(f"v_cvt_pk_bf16_f32 v{T}, v{U}, v{U+1}")
    A("LB_nogelu:")
    A(f"v_mov_b32 v{T+1}, s{sTAG}")
    A(f"s_mov_b32 s{s3}, 0xffff\ns_cmp_eq_u32 s{sS}, 0\ns_cselect_b32 s{s2}, 0xffff0000, s{s3}\ns_mov_b32 exec_lo, s{s2}\ns_mov_b32 exec_hi, 0")
    A(f"buffer_store_dwordx2 {vr(T,2)}, v{VXS}, {srd(SRD_WS)}, 0 offen sc1")
    A(f"s_not_b32 exec_lo, s{s2}")
    stamp(4)
    A("LB_xpoll:")
    A(f"buffer_load_dwordx2 {vr(G,2)}, v{VXG}, {srd(SRD_WS)}, 0 offen sc1")
    A("s_waitcnt vmcnt(0)")
    A(f"v_cmp_ne_u32 vcc, s{sTAG}, v{G+1}\ns_cmp_eq_u64 vcc, 0\ns_cbranch_scc1 LB_xok")
    spin_tail("LB_xpoll", None)
    A("LB_xok:")
    stamp(5)
    A(f"v_lshlrev_b32 v{U}, 16, v{T}\nv_and_b32 v{U+1}, 0xffff0000, v{T}\nv_lshlrev_b32 v{U+2}, 16, v{G}\nv_and_b32 v{U+3}, 0xffff0000, v{G}")
    A(f"v_pk_mul_f32 {vr(U,2)}, {vr(U,2)}, {vr(U+2,2)}")
    A(f"v_cvt_pk_bf16_f32 v{U+2}, v{U}, v{U}\nv_cvt_pk_bf16_f32 v{U+3}, v{U+1}, v{U+1}")
    A(f"v_and_b32 v{T+2}, 15, v0\nv_lshlrev_b32 v{T+2}, 3, v{T+2}")
    A(f"ds_write_b64 v{T+2}, {vr(U+2,2)} offset:{L_O}")
    A("s_mov_b64 exec, -1")
    A("LB_hgot:")
    A("s_waitcnt lgkmcnt(0)\ns_barrier")
    for j in range(b_down_early, 8): w2_load(j)
    stamp(6)
    stage3(AF)
    stamp(7)
    A(f"s_cmp_eq_u32 s{sF}, -1\ns_cbranch_scc1 LB_done")
    A(f"s_cmp_eq_u32 s3, 7\ns_cselect_b32 s{s1}, 0, 1024")
    A(f"s_mov_b32 s{s2}, 0x0c0c0400\ns_mov_b32 s{s3}, 0x04000c0c")
    A("LB_fpoll:")
    A(f"buffer_load_dwordx4 {vr(G,4)}, v{VFG}, {srd(SRD_WS)}, 0 offen sc1")
    A(f"buffer_load_dwordx4 {vr(G+4,4)}, v{VFG}, {srd(SRD_WS)}, s{s1} offen sc1")
    A("s_waitcnt vmcnt(0)")
    for u in range(2):
        A(f"v_perm_b32 v{T+2*u}, v{G+4*u+1}, v{G+4*u}, s{s2}\nv_perm_b32 v{T+2*u+1}, v{G+4*u+3}, v{G+4*u+2}, s{s3}\nv_or_b32 v{T+2*u}, v{T+2*u}, v{T+2*u+1}")
    A(f"v_cmp_ne_u32 vcc, s{sTAG}, v{T}\nv_cmp_ne_u32 s[94:95], s{sTAG}, v{T+2}\ns_or_b64 s[94:95], s[94:95], vcc\ns_cbranch_scc0 LB_fok")
    spin_tail("LB_fpoll", None)
    A("LB_fok:")
    stamp(8)
    for r in range(8): A(f"v_and_b32 v{G+r}, s{sMSK}, v{G+r}")
    A("s_cmp_eq_u32 s3, 7\ns_cbranch_scc1 LB_f1")
    A(f"v_pk_add_f32 {vr(G,2)}, {vr(G,2)}, {vr(G+4,2)}\nv_pk_add_f32 {vr(G+2,2)}, {vr(G+2,2)}, {vr(G+6,2)}")
    A("LB_f1:")
    for c in ("row_ror:4", "row_ror:8"):
        for r in range(4): A(f"v_add_f32_dpp v{G+r}, v{G+r}, v{G+r} {c} row_mask:0xf bank_mask:0xf")
    A(f"v_permlane16_swap_b32 v{G}, v{G+1}\nv_permlane16_swap_b32 v{G+2}, v{G+3}")
    A(f"v_add_f32 v{G}, v{G}, v{G+1}\nv_add_f32 v{G+2}, v{G+2}, v{G+3}")
    A(f"v_permlane32_swap_b32 v{G}, v{G+2}\nv_add_f32 v{G}, v{G}, v{G+2}")
    A(f"v_and_b32 v{T}, 3, v0\nv_lshlrev_b32 v{T}, 7, v{T}\nv_lshrrev_b32 v{T+1}, 4, v0\nv_lshl_add_u32 v{T}, v{T+1}, 5, v{T}\ns_lshl_b32 s{s2}, s3, 2\nv_add_u32 v{T}, s{s2}, v{T}")
    A("s_mov_b32 exec_lo, 0x000f000f\ns_mov_b32 exec_hi, 0x000f000f")
    A(f"ds_write_b32 v{T}, v{G} offset:{L_F}")
    A("s_mov_b64 exec, -1")
    A("s_waitcnt lgkmcnt(0)\ns_barrier")
    A("s_cmp_lg_u32 s3, 0\ns_cbranch_scc1 LB_done")
    A(f"v_and_b32 v{T}, 15, v0\nv_lshlrev_b32 v{T+1}, 5, v{T}")
    A(f"ds_read_b128 {vr(G,4)}, v{T+1} offset:{L_F}\nds_read_b128 {vr(G+4,4)}, v{T+1} offset:{L_F+16}")
    A(f"s_lshl_b32 s{s2}, s{sF}, 5\nv_lshl_add_u32 v{T}, v{T}, 1, s{s2}\nv_lshlrev_b32 v{XF}, 16, v{XF}")
    A("s_waitcnt lgkmcnt(0)")
    A(f"v_pk_add_f32 {vr(G,2)}, {vr(G,2)}, {vr(G+2,2)}\nv_pk_add_f32 {vr(G+4,2)}, {vr(G+4,2)}, {vr(G+6,2)}")
    A(f"v_add_f32 v{G}, v{G}, v{G+1}\nv_add_f32 v{G+4}, v{G+4}, v{G+5}")
    A(f"v_cvt_pk_bf16_f32 v{G}, v{G}, v{G+4}")
    A(f"v_lshlrev_b32 v{G+1}, 16, v{G}\nv_and_b32 v{G+2}, 0xffff0000, v{G}")
    A(f"v_add_f32 v{G+1}, v{XF}, v{G+1}")
    rbf(G+1, f"v{G+1}")
    A(f"v_add_f32 v{G+1}, v{G+1}, v{G+2}\nv_cvt_pk_bf16_f32 v{G+1}, v{G+1}, v{G+1}")
    A("s_mov_b32 exec_lo, 0xffff\ns_mov_b32 exec_hi, 0")
    A(f"buffer_store_short v{G+1}, v{T}, {srd(SRD_OUT)}, 0 offen")
    A(f"s_cmp_lg_u32 s{sF}, 0\ns_cbranch_scc1 LB_noep")
    A(f"s_mov_b32 exec_lo, 1\nv_mov_b32 v{T+2}, 0\nv_mov_b32 v{T+3}, s{sE}")
    A(f"buffer_store_dword v{T+3}, v{T+2}, {srd(SRD_WS)}, 0 offen sc1")
    A("LB_noep:")
    A("s_mov_b64 exec, -1")
    A("LB_done:")
    stamp(9)
    write_stamps(10)
    A("L_end:")
    A("s_endpgm")

    body, nins = fix_hazards(L)
    nv = max(hiA, hiB)
    acc = (nv + 3) // 4 * 4
    head = [l for l in open(f"cdna_kernels/{NAME}.s.ref").read().split("\n") if l.startswith(";") and "@launch" not in l and "Override" not in l and "grid=ceil" not in l]
    out = "\n".join(head) + f"\n; @launch grid=(256,1,1) block=(512,1,1) lds={LDS_BYTES}\n"
    out += f'.amdgcn_target "amdgcn-amd-amdhsa--gfx950"\n.text\n.globl {NAME}_kernel\n.p2align 8\n.type {NAME}_kernel,@function\n{NAME}_kernel:\n'
    out += "\n".join(("" if l.endswith(":") else "    ") + l for l in body) + "\n"
    out += f""".section .rodata,"a"
.p2align 6
.amdhsa_kernel {NAME}_kernel
  .amdhsa_next_free_vgpr {nv}
  .amdhsa_next_free_sgpr 102
  .amdhsa_accum_offset {acc}
  .amdhsa_group_segment_fixed_size 0
  .amdhsa_kernarg_size 96
  .amdhsa_user_sgpr_count 2
  .amdhsa_user_sgpr_kernarg_segment_ptr 1
  .amdhsa_system_sgpr_workgroup_id_x 1
  .amdhsa_float_denorm_mode_32 3
.end_amdhsa_kernel
"""
    return out

if __name__ == "__main__":
    kw = eval("dict(" + (sys.argv[2] if len(sys.argv) > 2 else "") + ")")
    txt = gen(**kw)
    open(sys.argv[1], "w").write(txt)
```

```python
import sys
from asmdsl import fix_hazards, Regs

NAME = "parallel_sum__sliding_block_cached__geglu_ffn__decode"
QBASE = 0x10000
OBASE = 0x40000
XBASE = 0xC0000
PBASE = 0x100000
TSBASE = 0x300000
DELTA = 0x400000
L_R = 0; L_Q = 4096; L_P = 6656; L_M = 9216; L_O = 9280; L_F = 9472; L_K = 12288; L_V = 45056

def gen(debug=False, pol="nt", a_win=4, a_kvwin=4, a_pollwait=2, a_wo=(2, 2, 1, 1, 0, 2), b_sched=(3,) * 17, b_down=(3, 5),
        owave=7, spin=2000000, limit=48, diagpad=0, apar=0, lds=83968, mapping="split", local=True, xbar=True, codepf=False, only=None, clk="s_memrealtime"):
    L = []
    def A(s):
        for x in s.split("\n"):
            x = x.strip()
            if x: L.append(x)
    def stamp(k):
        if debug: A(f"{clk} s[{4+2*k}:{5+2*k}]")
    assert sum(a_wo) == 8 and sum(b_down) == 8
    V = Regs("v", 1, 256)
    v = lambda name, n=1: V.alloc(name, n)
    vr = lambda r, n: f"v[{r}:{r+n-1}]"
    T = v("T", 8); M = v("M", 4); TB = v("TB", 4)
    XS = v("XS", 16); XO = XS + 8; U = v("U", 16); XD = v("XD"); AF = v("AF", 8); VOR = v("VOR")
    MB = v("MB", 2); SD = v("SD", 2); RI = v("RI", 2); ACC = v("ACC", 4); PT = v("PT", 4)
    W2 = v("W2", 32); VW1 = v("VW1"); VW2 = v("VW2"); VXO = v("VXO"); VPP = v("VPP"); XF = v("XF"); VRW = v("VRW"); SL = v("SL"); CH = v("CH")
    G = XS
    base_role = V.next
    SRD_W1, SRD_W2, SRD_K, SRD_V, SRD_WS, SRD_X, SRD_OUT = 28, 32, 36, 40, 44, 48, 52
    sE, sTAG, sG, sS, sPROD, sF = 56, 57, 58, 59, 60, 61
    sT1 = 62; sT2 = 78
    s0, s1, s2, s3 = 86, 87, 88, 89
    sPATH, sRND, sCNT, sMSK = 90, 91, 92, 93
    sDEL = 85
    srd = lambda r: f"s[{r}:{r+3}]"

    if debug or diagpad: A(f"{clk} s[100:101]")
    A("s_load_dwordx16 s[4:19], s[0:1], 0")
    A("s_load_dwordx8 s[20:27], s[0:1], 64")
    A("v_lshrrev_b32 v1, 6, v0\nv_and_b32 v0, 63, v0")
    A("s_cmp_ge_u32 s2, 256\ns_cbranch_scc1 L_end")
    A("v_readfirstlane_b32 s3, v1")
    A(f"v_lshrrev_b32 v{SL}, 4, v0\nv_and_b32 v{CH}, 15, v0\nv_lshlrev_b32 v{CH}, 4, v{CH}\nv_lshlrev_b32 v{T+2}, 5, v0")
    A(f"s_bfe_u32 s{sG}, s2, 0x20001\ns_lshr_b32 s{sS}, s2, 3")
    A(f"s_bitcmp1_b32 s2, 0\ns_cbranch_scc{1-apar} L_roleB")

    def build_srd(r, p, size):
        A(f"s_mov_b32 s{r}, s{p}\ns_mov_b32 s{r+1}, s{p+1}\ns_mov_b32 s{r+2}, {size}\ns_mov_b32 s{r+3}, 0x20000")
    def pre_srd(r, size): A(f"s_mov_b32 s{r+2}, {size}\ns_mov_b32 s{r+3}, 0x20000")
    def fin_srd(r, p): A(f"s_mov_b64 s[{r}:{r+1}], s[{p}:{p+1}]")
    def masks():
        A(f"v_and_b32 v{T}, 1, v0\nv_lshlrev_b32 v{T}, 4, v{T}\nv_mov_b32 v{T+1}, 0xffff\nv_lshlrev_b32 v{T+1}, v{T}, v{T+1}")
        A(f"v_bfe_u32 v{T+2}, v0, 1, 2")
        for r in range(4): A(f"v_cmp_eq_u32 s[{94+2*r}:{95+2*r}], {r}, v{T+2}") if r < 3 else A(f"v_cmp_eq_u32 vcc, 3, v{T+2}")
        for r in range(3): A(f"v_cndmask_b32 v{M+r}, 0, v{T+1}, s[{94+2*r}:{95+2*r}]")
        A(f"v_cndmask_b32 v{M+3}, 0, v{T+1}, vcc")
        for j in range(7): A(f"s_mov_b32 s{sT2+j}, {(j+1)*8192}")
        A(f"v_and_b32 v{T}, 7, v0\nv_lshlrev_b32 v{T}, 4, v{T}\nv_lshl_add_u32 v{VOR}, v{SL}, 2, v{T}")
        A(f"s_mov_b32 s{sDEL}, {DELTA}")
        A(f"s_lshl_b32 s{s2}, s3, 9\nv_lshlrev_b32 v{T}, 1, v{CH}\nv_lshl_add_u32 v{T}, v{SL}, 4, v{T}\nv_add_u32 v{VRW}, s{s2}, v{T}")
    def so2(j): return "0" if j == 0 else f"s{sT2+j-1}"

    def wave_sum(r):
        for c in ("row_shr:1", "row_shr:2", "row_shr:4", "row_shr:8"):
            A(f"v_add_f32_dpp v{r}, v{r}, v{r} {c} row_mask:0xf bank_mask:0xf bound_ctrl:0")
        A(f"v_add_f32_dpp v{r}, v{r}, v{r} row_bcast:15 row_mask:0xa bank_mask:0xf")
        A(f"v_add_f32_dpp v{r}, v{r}, v{r} row_bcast:31 row_mask:0xc bank_mask:0xf")
    def rbf(dst, src):
        A(f"v_cvt_pk_bf16_f32 v{dst}, {src}, {src}\nv_and_b32 v{dst}, 0xffff0000, v{dst}")
    def layernorm(nown):
        for k in range(8):
            A(f"v_lshlrev_b32 v{U+2*k}, 16, v{XS+k}\nv_and_b32 v{U+2*k+1}, 0xffff0000, v{XS+k}")
        A(f"v_pk_add_f32 {vr(T,2)}, {vr(U,2)}, {vr(U+2,2)}\nv_pk_add_f32 {vr(T+2,2)}, {vr(U+4,2)}, {vr(U+6,2)}")
        A(f"v_pk_add_f32 {vr(T+4,2)}, {vr(U+8,2)}, {vr(U+10,2)}\nv_pk_add_f32 {vr(T+6,2)}, {vr(U+12,2)}, {vr(U+14,2)}")
        A(f"v_pk_add_f32 {vr(T,2)}, {vr(T,2)}, {vr(T+2,2)}\nv_pk_add_f32 {vr(T+4,2)}, {vr(T+4,2)}, {vr(T+6,2)}")
        A(f"v_pk_add_f32 {vr(T,2)}, {vr(T,2)}, {vr(T+4,2)}\nv_add_f32 v{T}, v{T}, v{T+1}")
        wave_sum(T)
        A(f"v_mul_f32 v{T}, 0x3a800000, v{T}\nv_readlane_b32 s{s2}, v{T}, 63")
        for k in range(8):
            A(f"v_pk_add_f32 {vr(U+2*k,2)}, {vr(U+2*k,2)}, s[{s2}:{s2+1}] op_sel_hi:[1,0] neg_lo:[0,1] neg_hi:[0,1]")
        A(f"v_pk_mul_f32 {vr(T,2)}, {vr(U,2)}, {vr(U,2)}\nv_pk_mul_f32 {vr(T+2,2)}, {vr(U+2,2)}, {vr(U+2,2)}")
        for k in range(2, 8):
            t = T + 2 * (k & 1)
            A(f"v_pk_fma_f32 {vr(t,2)}, {vr(U+2*k,2)}, {vr(U+2*k,2)}, {vr(t,2)}")
        A(f"v_pk_add_f32 {vr(T,2)}, {vr(T,2)}, {vr(T+2,2)}\nv_add_f32 v{T}, v{T}, v{T+1}")
        rbf(MB, f"s{s2}")
        wave_sum(T)
        A(f"v_mul_f32 v{T}, 0x3a800000, v{T}\nv_readlane_b32 s{s2}, v{T}, 63")
        A(f"v_lshlrev_b32 v{U}, 16, v{XO}\nv_sub_f32 v{U}, v{U}, v{MB}")
        rbf(SD, f"s{s2}"); A(f"v_add_f32 v{SD}, 0x3727c5ac, v{SD}"); rbf(SD, f"v{SD}"); A(f"v_sqrt_f32 v{SD}, v{SD}")
        rbf(U, f"v{U}")
        rbf(SD, f"v{SD}"); A(f"v_rcp_f32 v{RI}, v{SD}")
        A(f"v_mul_f32 v{T}, v{U}, v{RI}\nv_fma_f32 v{T+1}, -v{T}, v{SD}, v{U}\nv_fma_f32 v{T}, v{T+1}, v{RI}, v{T}")
        A(f"v_cvt_pk_bf16_f32 v{XD}, v{T}, v{T}")
    def af_build(j):
        for r in range(4): A(f"v_and_b32_dpp v{AF+4*(j&1)+r}, v{XD}, v{M+r} row_newbcast:{j} row_mask:0xf bank_mask:0xf")
    def af(j): return vr(AF+4*(j&1), 4)
    def get_tag():
        A(f"s_add_u32 s{sE}, s{sE}, 1\ns_mul_i32 s{sTAG}, s{sE}, 0x01010101")
        A(f"v_mov_b32 v{TB}, s{sTAG}\nv_lshrrev_b32 v{TB+1}, 8, v{TB}\nv_lshrrev_b32 v{TB+2}, 16, v{TB}\nv_lshrrev_b32 v{TB+3}, 24, v{TB}")
        A(f"s_mov_b32 s{sMSK}, 0xffffff00\ns_mov_b32 s{sCNT}, {spin}")
    def partial_store_lds():
        A("s_mov_b32 exec_hi, 0")
        A(f"ds_write_b128 v{VRW}, {vr(ACC,4)} offset:{L_R}")
        A("s_mov_b32 exec_hi, -1")
    def reduce8():
        A(f"v_lshlrev_b32 v{T+4}, 3, v0")
        for k in range(8): A(f"ds_read_b64 {vr(U+2*k,2)}, v{T+4} offset:{L_R+k*512}")
        A(f"v_mov_b32 v{T+2}, s{sTAG}\nv_mov_b32 v{T+3}, s{sTAG}")
        A(f"s_waitcnt lgkmcnt({0 if debug else 4})")
        A(f"v_pk_add_f32 {vr(U,2)}, {vr(U,2)}, {vr(U+2,2)}\nv_pk_add_f32 {vr(U+4,2)}, {vr(U+4,2)}, {vr(U+6,2)}")
        A("s_waitcnt lgkmcnt(0)")
        A(f"v_pk_add_f32 {vr(U+8,2)}, {vr(U+8,2)}, {vr(U+10,2)}\nv_pk_add_f32 {vr(U+12,2)}, {vr(U+12,2)}, {vr(U+14,2)}")
        A(f"v_pk_add_f32 {vr(U,2)}, {vr(U,2)}, {vr(U+4,2)}\nv_pk_add_f32 {vr(U+8,2)}, {vr(U+8,2)}, {vr(U+12,2)}")
        A(f"v_pk_add_f32 {vr(T,2)}, {vr(U,2)}, {vr(U+8,2)}")
    def publish(data, addr):
        if local: A(f"buffer_store_dwordx4 {vr(data,4)}, v{addr}, {srd(SRD_WS)}, 0 offen")
        A(f"buffer_store_dwordx4 {vr(data,4)}, v{addr}, {srd(SRD_WS)}, s{sDEL} offen sc1")
    npub = 2 if local else 1
    def poll_init():
        A(f"s_mov_b32 s{sPATH}, {0 if local else DELTA}\ns_mov_b32 s{sRND}, 0")
    def poll_tail(lbl):
        if local:
            A(f"s_add_u32 s{sRND}, s{sRND}, 1\ns_cmp_lt_u32 s{sRND}, {limit}\ns_cbranch_scc1 {lbl}\ns_xor_b32 s{sPATH}, s{sPATH}, s{sDEL}")
        A(f"s_sub_u32 s{sCNT}, s{sCNT}, 1\ns_cbranch_scc0 {lbl}\ns_mov_b32 s{sCNT}, 0")
    def w2_addr(srow):
        A(f"s_lshl_b32 s{s2}, s{srow}, 11\ns_lshl_b32 s{s3}, s3, 8\ns_add_u32 s{s2}, s{s2}, s{s3}")
        A(f"v_lshlrev_b32 v{T}, 11, v{SL}\nv_add3_u32 v{VW2}, v{T}, v{CH}, s{s2}")
    w2n = [0]
    def w2_load(n=1):
        for _ in range(n):
            j = w2n[0]; w2n[0] += 1
            A(f"buffer_load_dwordx4 {vr(W2+4*j,4)}, v{VW2}, {srd(SRD_W2)}, {so2(j)} offen {pol}")
    def pp_addr():
        A(f"v_bfe_u32 v{T}, v0, 1, 3\nv_lshlrev_b32 v{T}, 14, v{T}\nv_and_b32 v{T+1}, 1, v0\nv_lshlrev_b32 v{T+1}, 5, v{T+1}\nv_and_b32 v{T+2}, 16, v0")
        A(f"v_add3_u32 v{T}, v{T}, v{T+1}, v{T+2}")
        A(f"s_lshl_b32 s{s2}, s3, 17\ns_lshl_b32 s{s3}, s{sPROD}, 6\ns_add_u32 s{s2}, s{s2}, s{s3}\ns_add_u32 s{s2}, s{s2}, {PBASE}")
        A(f"v_add_u32 v{VPP}, s{s2}, v{T}")
    def stage3():
        assert w2n[0] == 8
        A(f"ds_read_b32 v{XD}, v{VOR} offset:{L_O}")
        A("s_waitcnt lgkmcnt(0)")
        af_build(0)
        for j in range(8):
            if j < 7: af_build(j + 1)
            A(f"s_waitcnt vmcnt({7-j})")
            A(f"v_mfma_f32_16x16x32_bf16 {vr(ACC,4)}, {af(j)}, {vr(W2+4*j,4)}, {vr(ACC,4) if j else 0}")
        A("s_mov_b32 exec_hi, 0")
        for r in range(4): A(f"v_bfi_b32 v{T+r}, s{sMSK}, v{ACC+r}, v{TB+r}")
        A(f"buffer_store_dwordx4 {vr(T,4)}, v{VPP}, {srd(SRD_WS)}, 0 offen sc1")
        A("s_mov_b32 exec_hi, -1")
    def write_stamps(n):
        if not debug: return
        A("s_waitcnt lgkmcnt(0)")
        for k in range(n): A(f"v_writelane_b32 v{T+4}, s{4+2*k}, {k}")
        A(f"v_writelane_b32 v{T+4}, s100, 15")
        A(f"s_lshl_b32 s{s2}, s2, 3\ns_add_u32 s{s2}, s{s2}, s3\ns_lshl_b32 s{s2}, s{s2}, 6\ns_add_u32 s{s2}, s{s2}, {TSBASE}")
        A(f"v_lshlrev_b32 v{T+5}, 2, v0\nv_add_u32 v{T+5}, s{s2}, v{T+5}")
        A("s_mov_b32 exec_lo, 0xffff\ns_mov_b32 exec_hi, 0")
        A(f"buffer_store_dword v{T+4}, v{T+5}, {srd(SRD_WS)}, 0 offen")
        A("s_mov_b64 exec, -1")
    def check4(regs, ok):
        A(f"v_cmp_ne_u32 vcc, s{sTAG}, v{regs[0]}\nv_cmp_ne_u32 s[94:95], s{sTAG}, v{regs[1]}\nv_cmp_ne_u32 s[96:97], s{sTAG}, v{regs[2]}\nv_cmp_ne_u32 s[98:99], s{sTAG}, v{regs[3]}")
        A(f"s_or_b64 s[94:95], s[94:95], vcc\ns_or_b64 s[96:97], s[96:97], s[98:99]\ns_or_b64 s[94:95], s[94:95], s[96:97]\ns_cbranch_scc0 {ok}")

    V.next = base_role
    W1 = v("W1", 32); VF = v("VF", 16); KA = v("KA", 4); VA = v("VA", 2); KR = v("KR", 4); VR_ = v("VR"); QR = v("QR"); PW = v("PW")
    KF = W1; QF = W1 + 16; ONE = v("ONE", 4); LA = v("LA", 4); VQP = v("VQP"); VQS = v("VQS"); VOP = v("VOP"); VOG = v("VOG"); HM = v("HM")
    hiA = V.next
    if only == "B": A("s_endpgm")
    A(f"s_lshr_b32 s{s0}, s{sS}, 3\ns_lshl_b32 s{s0}, s{s0}, 8\ns_lshl_b32 s{s1}, s3, 2\ns_add_u32 s{s0}, s{s0}, s{s1}")
    A(f"s_lshl_b32 s{s1}, s{s0}, 1\nv_and_b32 v{T}, 7, v0\nv_lshlrev_b32 v{T}, 6, v{T}\nv_lshl_add_u32 v{T}, v{SL}, 1, v{T}\nv_add_u32 v{VXO}, s{s1}, v{T}")
    A(f"s_lshl_b32 s{s0}, s{s0}, 13\ns_lshl_b32 s{s1}, s{sG}, 11\ns_add_u32 s{s0}, s{s0}, s{s1}\ns_and_b32 s{s1}, s{sS}, 7\ns_lshl_b32 s{s1}, s{s1}, 8\ns_add_u32 s{s0}, s{s0}, s{s1}")
    A(f"v_lshlrev_b32 v{T}, 13, v{SL}\nv_add3_u32 v{VW1}, v{T}, v{CH}, s{s0}")
    pre_srd(SRD_X, 2048); pre_srd(SRD_W1, 8388608)
    for j in range(1, 8): A(f"s_mov_b32 s{sT1+j}, {j*32*8192}")
    A("s_waitcnt lgkmcnt(0)")
    fin_srd(SRD_X, 4); fin_srd(SRD_W1, 10)
    A(f"buffer_load_dwordx4 {vr(XS,4)}, v{T+2}, {srd(SRD_X)}, 0 offen\nbuffer_load_dwordx4 {vr(XS+4,4)}, v{T+2}, {srd(SRD_X)}, 0 offen offset:16")
    A(f"buffer_load_ushort v{XO}, v{VXO}, {srd(SRD_X)}, 0 offen")
    A(f"s_load_dword s{sE}, s[26:27], 0")
    if xbar: A("s_barrier")
    def a_load(n):
        if n < 8: A(f"buffer_load_dwordx4 {vr(W1+4*n,4)}, v{VW1}, {srd(SRD_W1)}, {'0' if n == 0 else f's{sT1+n}'} offen {pol}")
        elif n < 12:
            if n == 8: A(f"s_lshl_b32 s{s2}, s3, 12\ns_add_u32 m0, s{s2}, {L_K}")
            A(f"buffer_load_dwordx4 v{KA+n-8}, {srd(SRD_K)}, 0 offen offset:{(n-8)*1024} {pol} lds")
        else:
            if n == 12: A(f"s_lshl_b32 s{s2}, s3, 12\ns_add_u32 m0, s{s2}, {L_V}")
            A(f"buffer_load_dwordx4 v{VA+(n-12)//2}, {srd(SRD_V)}, 0 offen offset:{(n-12)*1024} {pol} lds")
    assert a_win <= 8
    for n in range(a_win): a_load(n)
    build_srd(SRD_K, 6, 67108864); build_srd(SRD_V, 8, 67108864); build_srd(SRD_W2, 12, 8388608); build_srd(SRD_WS, 26, 268435456)
    stamp(0)
    A(f"s_lshl_b32 s{s2}, s{sG}, 17\ns_lshl_b32 s{s3}, s{sS}, 12\ns_add_u32 s{s2}, s{s2}, s{s3}\ns_add_u32 s{s2}, s{s2}, {OBASE}")
    A(f"v_lshl_add_u32 v{VOG}, v0, 4, s{s2}")
    A(f"s_lshl_b32 s{s0}, s{sG}, 15\ns_add_u32 s{s0}, s{s0}, {QBASE}\ns_and_b32 s{s1}, s{sS}, 7\ns_lshl_b32 s{s1}, s{s1}, 12\ns_lshr_b32 s{s3}, s{sS}, 3\ns_lshl_b32 s{s3}, s{s3}, 10\ns_add_u32 s{s1}, s{s1}, s{s3}\ns_add_u32 s{s1}, s{s1}, s{s0}")
    A(f"v_lshl_add_u32 v{VQS}, v0, 4, s{s1}")
    A(f"s_lshl_b32 s{s3}, s3, 10\ns_add_u32 s{s2}, s{s2}, s{s3}\ns_cmp_lt_u32 s3, 4\ns_cselect_b32 s{s2}, s{s2}, s{s1}\nv_lshl_add_u32 v{T}, v0, 4, s{s2}")
    A(f"buffer_load_dwordx4 {vr(PT,4)}, v{T}, {srd(SRD_WS)}, 0 offen")
    A(f"s_lshl_b32 s{s3}, s3, 12\ns_add_u32 s{s0}, s{s0}, s{s3}\nv_lshl_add_u32 v{VQP}, v0, 4, s{s0}")
    masks()
    A(f"s_lshl_b32 s{s2}, s{sG}, 24\ns_lshl_b32 s{s3}, s{sS}, 15\ns_add_u32 s{s2}, s{s2}, s{s3}\ns_lshl_b32 s{s3}, s3, 12\ns_add_u32 s{s2}, s{s2}, s{s3}\ns_add_u32 s{s2}, s{s2}, {61440*256}")
    A(f"v_lshlrev_b32 v{T+2}, 8, v{SL}\nv_add_u32 v{T+2}, s{s2}, v{T+2}")
    A(f"v_lshlrev_b32 v{T+3}, 4, v{SL}\nv_xor_b32 v{T+3}, v{T+3}, v{CH}")
    for t in range(4): A(f"v_xor_b32 v{T+4}, {64*t}, v{T+3}\nv_add_u32 v{KA+t}, v{T+4}, v{T+2}")
    A(f"v_lshlrev_b32 v{T+4}, 5, v{SL}\nv_xor_b32 v{T+4}, v{T+4}, v{CH}\nv_add_u32 v{VA}, v{T+4}, v{T+2}")
    A(f"v_xor_b32 v{T+4}, 128, v{T+4}\nv_add_u32 v{VA+1}, v{T+4}, v{T+2}")
    A(f"s_lshl_b32 s{s2}, s3, 12\nv_lshl_add_u32 v{T+4}, v{CH}, 4, s{s2}")
    for ks in range(4): A(f"v_xor_b32 v{T+5}, {64*ks}, v{T+3}\nv_add_u32 v{KR+ks}, v{T+5}, v{T+4}")
    A(f"v_bfe_u32 v{T+4}, v0, 2, 2\nv_lshl_add_u32 v{T+5}, v{SL}, 3, v{T+4}\nv_lshlrev_b32 v{T+5}, 8, v{T+5}")
    A(f"v_and_b32 v{T+6}, 1, v{SL}\nv_lshl_or_b32 v{T+4}, v{T+6}, 2, v{T+4}\nv_xor_b32 v{T+4}, s3, v{T+4}\nv_lshlrev_b32 v{T+4}, 5, v{T+4}")
    A(f"v_and_b32 v{T+6}, 3, v0\nv_lshlrev_b32 v{T+6}, 3, v{T+6}\nv_add3_u32 v{VR_}, v{T+4}, v{T+5}, v{T+6}\nv_add_u32 v{VR_}, {L_V}, v{VR_}")
    A(f"v_and_b32 v{T+4}, 7, v0\nv_lshlrev_b32 v{HM}, 2, v{T+4}\nv_mul_u32_u24 v{T+4}, 288, v{T+4}\nv_lshl_add_u32 v{QR}, v{SL}, 4, v{T+4}")
    A(f"s_lshl_b32 s{s2}, s3, 5\nv_lshl_add_u32 v{PW}, v{SL}, 3, v{T+4}\nv_add_u32 v{PW}, s{s2}, v{PW}")
    A(f"s_lshl_b32 s{s2}, s{sG}, 17\ns_lshr_b32 s{s3}, s3, 1\ns_lshl_b32 s{s3}, s{s3}, 12\ns_add_u32 s{s2}, s{s2}, s{s3}")
    A(f"s_lshl_b32 s{s3}, s{sS}, 7\ns_add_u32 s{s2}, s{s2}, s{s3}\ns_and_b32 s{s3}, s3, 1\ns_lshl_b32 s{s3}, s{s3}, 6\ns_add_u32 s{s2}, s{s2}, s{s3}\ns_add_u32 s{s2}, s{s2}, {OBASE}")
    A(f"v_lshlrev_b32 v{T+4}, 12, v{HM}\nv_lshlrev_b32 v{T+5}, 4, v{SL}\nv_add3_u32 v{VOP}, v{T+4}, v{T+5}, s{s2}")
    A(f"s_lshl_b32 s{sPROD}, s{sG}, 5\ns_add_u32 s{sPROD}, s{sPROD}, s{sS}\ns_lshl_b32 s{s0}, s{sPROD}, 5")
    w2_addr(s0); pp_addr()
    for r in range(4): A(f"v_mov_b32 v{ONE+r}, 0x3f803f80")
    A(f"v_mov_b32 v{T}, 0xff800000\nds_write_b32 v{HM}, v{T} offset:{L_M}")
    A(f"s_waitcnt vmcnt({a_win+1}) lgkmcnt(0)")
    get_tag()
    stamp(1)
    layernorm(8)
    af_build(0)
    stamp(2)
    seq = list(range(a_win)) + ["pt"]
    issued = a_win
    barred = False
    for j in range(8):
        if j < 7: af_build(j + 1)
        A(f"s_waitcnt vmcnt({len(seq)-1-seq.index(j)})")
        A(f"v_mfma_f32_16x16x32_bf16 {vr(ACC,4)}, {af(j)}, {vr(W1+4*j,4)}, {vr(ACC,4) if j else 0}")
        while issued < 16 and issued - (j + 1) < (a_win if issued < 8 else a_kvwin):
            if issued >= 8 and not barred: A("s_barrier"); barred = True
            a_load(issued); seq.append(issued); issued += 1
    a_rest = issued
    stamp(3)
    partial_store_lds()
    A("s_waitcnt lgkmcnt(0)\ns_barrier")
    A("s_cmp_lg_u32 s3, 0\ns_cbranch_scc1 LA_nopub")
    reduce8()
    publish(T, VQS)
    A("LA_nopub:")
    stamp(4)
    for n in range(a_rest, 16):
        A(f"s_waitcnt vmcnt({a_kvwin-1})"); a_load(n)
    A("s_waitcnt vmcnt(4)")
    for ks in range(4): A(f"ds_read_b128 {vr(KF+4*ks,4)}, v{KR+ks} offset:{L_K}")
    poll_init()
    A(f"s_waitcnt vmcnt({a_pollwait})")
    def q_loads():
        for u in range(4): A(f"buffer_load_dwordx4 {vr(G+4*u,4)}, v{VQP}, {srd(SRD_WS)}, s{sPATH} offen offset:{u*1024} sc1")
    def q_check(ok):
        check4([G+2, G+6, G+10, G+14], ok)
    w2n[0] = 0
    if a_wo[0]:
        q_loads(); w2_load(a_wo[0])
        A(f"s_waitcnt vmcnt({a_wo[0]})")
        q_check("LA_qok")
    A("LA_qpoll:")
    q_loads()
    A("s_waitcnt vmcnt(0)")
    q_check("LA_qok")
    poll_tail("LA_qpoll")
    A("LA_qok:")
    stamp(5)
    A(f"v_pk_add_f32 {vr(G,2)}, {vr(G,2)}, {vr(G+4,2)}\nv_pk_add_f32 {vr(G+8,2)}, {vr(G+8,2)}, {vr(G+12,2)}")
    A(f"s_mul_i32 s{s2}, s3, 288\nv_lshl_add_u32 v{T}, v0, 2, s{s2}")
    A(f"v_pk_add_f32 {vr(G,2)}, {vr(G,2)}, {vr(G+8,2)}\nv_cvt_pk_bf16_f32 v{G}, v{G}, v{G+1}")
    A(f"ds_write_b32 v{T}, v{G} offset:{L_Q}")
    w2_load(a_wo[1])
    A("s_waitcnt lgkmcnt(0)\ns_barrier")
    for ks in range(4): A(f"ds_read_b128 {vr(QF+4*ks,4)}, v{QR} offset:{L_Q+64*ks}")
    for ks in range(4):
        A(f"s_waitcnt lgkmcnt({0 if debug else 3-ks})")
        A(f"v_mfma_f32_16x16x32_bf16 {vr(ACC,4)}, {vr(KF+4*ks,4)}, {vr(QF+4*ks,4)}, {vr(ACC,4) if ks else 0}")
    for ks in range(4):
        for hh in range(2): A(f"ds_read_b64_tr_b16 {vr(VF+4*ks+2*hh,2)}, v{VR_} offset:{ks*8192+hh*1024}")
    A(f"s_mov_b32 s{s2}, 0x3db504f3")
    A(f"v_cvt_pk_bf16_f32 v{T}, v{ACC}, v{ACC+1}\nv_cvt_pk_bf16_f32 v{T+1}, v{ACC+2}, v{ACC+3}")
    A(f"v_lshlrev_b32 v{U}, 16, v{T}\nv_and_b32 v{U+1}, 0xffff0000, v{T}\nv_lshlrev_b32 v{U+2}, 16, v{T+1}\nv_and_b32 v{U+3}, 0xffff0000, v{T+1}")
    A(f"v_pk_mul_f32 {vr(U,2)}, {vr(U,2)}, s[{s2}:{s2+1}] op_sel_hi:[1,0]\nv_pk_mul_f32 {vr(U+2,2)}, {vr(U+2,2)}, s[{s2}:{s2+1}] op_sel_hi:[1,0]")
    A(f"v_cvt_pk_bf16_f32 v{T}, v{U}, v{U+1}\nv_cvt_pk_bf16_f32 v{T+1}, v{U+2}, v{U+3}")
    A(f"v_lshlrev_b32 v{U}, 16, v{T}\nv_and_b32 v{U+1}, 0xffff0000, v{T}\nv_lshlrev_b32 v{U+2}, 16, v{T+1}\nv_and_b32 v{U+3}, 0xffff0000, v{T+1}")
    A(f"v_max3_f32 v{T}, v{U}, v{U+1}, v{U+2}\nv_max_f32 v{T}, v{T}, v{U+3}")
    A(f"ds_max_f32 v{HM}, v{T} offset:{L_M}")
    w2_load(a_wo[2])
    A("s_waitcnt lgkmcnt(0)\ns_barrier")
    A(f"ds_read_b32 v{MB}, v{HM} offset:{L_M}")
    A(f"s_mov_b32 s{s2}, 0x3fb8aa3b")
    A("s_waitcnt lgkmcnt(0)")
    A(f"v_pk_add_f32 {vr(U,2)}, {vr(U,2)}, {vr(MB,2)} op_sel_hi:[1,0] neg_lo:[0,1] neg_hi:[0,1]\nv_pk_add_f32 {vr(U+2,2)}, {vr(U+2,2)}, {vr(MB,2)} op_sel_hi:[1,0] neg_lo:[0,1] neg_hi:[0,1]")
    A(f"v_pk_mul_f32 {vr(U,2)}, {vr(U,2)}, s[{s2}:{s2+1}] op_sel_hi:[1,0]\nv_pk_mul_f32 {vr(U+2,2)}, {vr(U+2,2)}, s[{s2}:{s2+1}] op_sel_hi:[1,0]")
    for r in range(4): A(f"v_exp_f32 v{U+r}, v{U+r}")
    A(f"v_cvt_pk_bf16_f32 v{T}, v{U}, v{U+1}\nv_cvt_pk_bf16_f32 v{T+1}, v{U+2}, v{U+3}")
    A(f"ds_write_b64 v{PW}, {vr(T,2)} offset:{L_P}")
    A(f"v_mul_f32 v{MB}, s{s2}, v{MB}")
    w2_load(a_wo[3])
    A("s_waitcnt lgkmcnt(0)\ns_barrier")
    for ks in range(4): A(f"ds_read_b128 {vr(QF+4*ks,4)}, v{QR} offset:{L_P+64*ks}")
    for ks in range(4):
        A(f"s_waitcnt lgkmcnt({0 if debug else 3-ks})")
        A(f"v_mfma_f32_16x16x32_bf16 {vr(LA,4)}, {vr(ONE,4)}, {vr(QF+4*ks,4)}, {vr(LA,4) if ks else 0}")
        A(f"v_mfma_f32_16x16x32_bf16 {vr(ACC,4)}, {vr(VF+4*ks,4)}, {vr(QF+4*ks,4)}, {vr(ACC,4) if ks else 0}")
    poll_init()
    A(f"v_mov_b32 v{T+3}, s{sTAG}")
    A(f"v_rcp_f32 v{RI}, v{LA}\nv_log_f32 v{T+2}, v{LA}")
    A("s_mov_b32 exec_lo, 0x00ff00ff\ns_mov_b32 exec_hi, 0x00ff00ff")
    A(f"v_add_f32 v{T+2}, v{T+2}, v{MB}")
    A(f"v_pk_mul_f32 {vr(ACC,2)}, {vr(ACC,2)}, {vr(RI,2)} op_sel_hi:[1,0]\nv_pk_mul_f32 {vr(ACC+2,2)}, {vr(ACC+2,2)}, {vr(RI,2)} op_sel_hi:[1,0]")
    A(f"v_cvt_pk_bf16_f32 v{T}, v{ACC}, v{ACC+1}\nv_cvt_pk_bf16_f32 v{T+1}, v{ACC+2}, v{ACC+3}")
    publish(T, VOP)
    A("s_mov_b64 exec, -1")
    stamp(6)
    A(f"s_cmp_eq_u32 s3, {owave}\ns_cbranch_scc1 LA_opoll")
    keep = w2n[0]
    w2_load(a_wo[4])
    A("s_branch LA_ogot")
    A("LA_opoll:")
    for u in range(4): A(f"buffer_load_dwordx4 {vr(G+4*u,4)}, v{VOG}, {srd(SRD_WS)}, s{sPATH} offen offset:{u*1024} sc1")
    A("s_waitcnt vmcnt(0)")
    check4([G+3, G+7, G+11, G+15], "LA_ook")
    poll_tail("LA_opoll")
    A("LA_ook:")
    w2n[0] = keep
    w2_load(a_wo[4])
    stamp(7)
    A(f"v_max3_f32 v{T}, v{G+2}, v{G+6}, v{G+10}\nv_max_f32 v{T}, v{T}, v{G+14}")
    for u in range(2):
        A(f"v_lshlrev_b32 v{U+4*u}, 16, v{G+4*u}\nv_and_b32 v{U+4*u+1}, 0xffff0000, v{G+4*u}")
    A(f"v_max_f32_dpp v{T}, v{T}, v{T} row_ror:8 row_mask:0xf bank_mask:0xf")
    for u in range(2):
        A(f"v_lshlrev_b32 v{U+4*u+2}, 16, v{G+4*u+1}")
    A(f"v_mov_b32 v{T+1}, v{T}")
    for u in range(2):
        A(f"v_and_b32 v{U+4*u+3}, 0xffff0000, v{G+4*u+1}")
    A(f"v_permlane16_swap_b32 v{T}, v{T+1}\nv_max_f32 v{T}, v{T}, v{T+1}\nv_mov_b32 v{T+1}, v{T}")
    for u in range(2, 4):
        A(f"v_lshlrev_b32 v{U+4*u}, 16, v{G+4*u}")
    A(f"v_permlane32_swap_b32 v{T}, v{T+1}\nv_max_f32 v{T}, v{T}, v{T+1}")
    for u in range(4): A(f"v_sub_f32 v{G+4*u+2}, v{G+4*u+2}, v{T}")
    for u in range(4): A(f"v_exp_f32 v{G+4*u+2}, v{G+4*u+2}")
    for u in range(2, 4):
        A(f"v_and_b32 v{U+4*u+1}, 0xffff0000, v{G+4*u}\nv_lshlrev_b32 v{U+4*u+2}, 16, v{G+4*u+1}\nv_and_b32 v{U+4*u+3}, 0xffff0000, v{G+4*u+1}")
    A(f"v_pk_mul_f32 {vr(ACC,2)}, {vr(U,2)}, {vr(G+2,2)} op_sel_hi:[1,0]\nv_pk_mul_f32 {vr(ACC+2,2)}, {vr(U+2,2)}, {vr(G+2,2)} op_sel_hi:[1,0]")
    A(f"v_add_f32 v{T}, v{G+2}, v{G+6}\nv_add_f32 v{T+1}, v{G+10}, v{G+14}")
    for u in range(1, 4):
        A(f"v_pk_fma_f32 {vr(ACC,2)}, {vr(U+4*u,2)}, {vr(G+4*u+2,2)}, {vr(ACC,2)} op_sel_hi:[1,0,1]\nv_pk_fma_f32 {vr(ACC+2,2)}, {vr(U+4*u+2,2)}, {vr(G+4*u+2,2)}, {vr(ACC+2,2)} op_sel_hi:[1,0,1]")
        if u == 1: A(f"v_add_f32 v{T}, v{T}, v{T+1}")
    A(f"v_add_f32_dpp v{T}, v{T}, v{T} row_ror:8 row_mask:0xf bank_mask:0xf")
    for r in range(4): A(f"v_add_f32_dpp v{ACC+r}, v{ACC+r}, v{ACC+r} row_ror:8 row_mask:0xf bank_mask:0xf")
    A(f"v_mov_b32 v{T+1}, v{T}\nv_and_b32 v{T+2}, 7, v0\nv_lshlrev_b32 v{T+2}, 4, v{T+2}")
    A(f"v_permlane16_swap_b32 v{T}, v{T+1}\nv_permlane16_swap_b32 v{ACC}, v{ACC+1}\nv_permlane16_swap_b32 v{ACC+2}, v{ACC+3}")
    A(f"v_add_f32 v{T}, v{T}, v{T+1}\nv_add_f32 v{ACC}, v{ACC}, v{ACC+1}\nv_add_f32 v{ACC+2}, v{ACC+2}, v{ACC+3}\nv_mov_b32 v{T+1}, v{T}")
    A(f"v_lshl_add_u32 v{T+2}, v{SL}, 2, v{T+2}")
    A(f"v_permlane32_swap_b32 v{ACC}, v{ACC+2}\nv_permlane32_swap_b32 v{T}, v{T+1}")
    A(f"v_add_f32 v{T}, v{T}, v{T+1}\nv_add_f32 v{ACC}, v{ACC}, v{ACC+2}\nv_rcp_f32 v{T}, v{T}")
    A(f"v_mul_f32 v{ACC}, v{ACC}, v{T}\nv_cvt_pk_bf16_f32 v{ACC}, v{ACC}, v{ACC}")
    A(f"ds_write_b32 v{T+2}, v{ACC} offset:{L_O}")
    A("LA_ogot:")
    A("s_waitcnt lgkmcnt(0)\ns_barrier")
    w2_load(a_wo[5])
    stamp(8)
    stage3()
    stamp(9)
    write_stamps(10)
    if only == "A":
        A(f"s_cmp_lg_u32 s2, 0\ns_cbranch_scc1 LA_x\nv_mov_b32 v{T+2}, 0\nv_mov_b32 v{T+3}, s{sE}\nbuffer_store_dword v{T+3}, v{T+2}, {srd(SRD_WS)}, 0 offen sc1\nLA_x:")
    A("s_endpgm")

    V.next = base_role
    W1 = v("W1b", 64); VXS = v("VXS"); VXG = v("VXG"); VFG = v("VFG")
    hiB = V.next
    b_win = b_sched[0]
    A("L_roleB:")
    A(f"s_cmp_ge_u32 s{sS}, {0 if only == 'A' else 28}\ns_cbranch_scc1 L_end")
    A(f"s_mul_i32 s{sPROD}, s{sG}, 28\ns_add_u32 s{sPROD}, s{sPROD}, s{sS}")
    A(f"s_and_b32 s{s0}, s{sS}, 1\ns_lshl_b32 s{s0}, s{s0}, 9\ns_lshl_b32 s{s1}, s3, 2\ns_add_u32 s{s0}, s{s0}, s{s1}")
    A(f"s_lshl_b32 s{s1}, s{s0}, 1\nv_lshlrev_b32 v{T}, 2, v{CH}\nv_lshl_add_u32 v{T}, v{SL}, 1, v{T}\nv_add_u32 v{VXO}, s{s1}, v{T}")
    A(f"s_mul_i32 s{s0}, s{s0}, 7168\ns_lshr_b32 s{s1}, s{sPROD}, 2\ns_lshl_b32 s{s1}, s{s1}, 8\ns_add_u32 s{s0}, s{s0}, s{s1}")
    A(f"v_mul_u32_u24 v{T}, 7168, v{SL}\nv_add3_u32 v{VW1}, v{T}, v{CH}, s{s0}")
    pre_srd(SRD_X, 2048); pre_srd(SRD_W1, 7340032)
    for j in range(1, 16): A(f"s_mov_b32 s{sT1+j}, {j*32*7168}")
    A(f"s_bitcmp0_b32 s{sS}, 1")
    A("s_waitcnt lgkmcnt(0)")
    A(f"s_cselect_b64 s[{SRD_W1}:{SRD_W1+1}], s[16:17], s[18:19]")
    fin_srd(SRD_X, 4)
    A(f"buffer_load_dwordx4 {vr(XS,4)}, v{T+2}, {srd(SRD_X)}, 0 offen\nbuffer_load_dwordx4 {vr(XS+4,4)}, v{T+2}, {srd(SRD_X)}, 0 offen offset:16")
    A(f"buffer_load_ushort v{XO}, v{VXO}, {srd(SRD_X)}, 0 offen")
    A(f"s_load_dword s{sE}, s[26:27], 0")
    if xbar: A("s_barrier")
    nb_total = 16 + b_down[0]
    w2n[0] = 0
    def b_load(n):
        if n < 16: A(f"buffer_load_dwordx4 {vr(W1+4*n,4)}, v{VW1}, {srd(SRD_W1)}, {'0' if n == 0 else f's{sT1+n}'} offen {pol}")
        else: w2_load()
    for n in range(b_win): b_load(n)
    build_srd(SRD_W2, 20, 7340032); build_srd(SRD_WS, 26, 268435456); build_srd(SRD_OUT, 22, 2048)
    stamp(0)
    A(f"s_lshl_b32 s{sF}, s{sG}, 4\ns_add_u32 s{sF}, s{sF}, s{sS}\ns_cmp_lt_u32 s{sS}, 16\ns_cselect_b32 s{sF}, s{sF}, -1")
    A(f"s_lshl_b32 s{s2}, s{sPROD}, 10\ns_add_u32 s{s2}, s{s2}, {XBASE}\nv_lshl_add_u32 v{VXG}, v0, 4, s{s2}")
    A(f"buffer_load_dwordx4 {vr(PT,4)}, v{VXG}, {srd(SRD_WS)}, 0 offen")
    A(f"s_lshl_b32 s{s2}, s{sF}, 5\nv_lshrrev_b32 v{T+3}, 3, v{CH}\nv_add_u32 v{T+3}, s{s2}, v{T+3}")
    A(f"buffer_load_ushort v{XF}, v{T+3}, {srd(SRD_X)}, 0 offen")
    A(f"s_and_b32 s{s2}, s{sPROD}, 0xfc\ns_lshl_b32 s{s2}, s{s2}, 10\ns_and_b32 s{s3}, s{sPROD}, 3\ns_lshl_b32 s{s3}, s{s3}, 8\ns_add_u32 s{s2}, s{s2}, s{s3}\ns_add_u32 s{s2}, s{s2}, {XBASE}")
    A(f"v_lshlrev_b32 v{T}, 10, v{SL}\nv_add3_u32 v{VXS}, v{T}, v{CH}, s{s2}")
    masks()
    A(f"s_lshl_b32 s{s0}, s{sPROD}, 5")
    w2_addr(s0)
    A(f"s_lshl_b32 s{s2}, s{sF}, 14\ns_lshl_b32 s{s3}, s3, 11\ns_add_u32 s{s2}, s{s2}, s{s3}\ns_add_u32 s{s2}, s{s2}, {PBASE}\nv_lshl_add_u32 v{VFG}, v0, 4, s{s2}")
    A(f"s_add_u32 s{sPROD}, s{sPROD}, 128")
    pp_addr()
    A(f"s_waitcnt vmcnt({b_win+2}) lgkmcnt(0)")
    get_tag()
    stamp(1)
    layernorm(16)
    af_build(0)
    stamp(2)
    seq = list(range(b_win)) + ["pt", "xf"]
    issued = b_win
    for j in range(16):
        if j < 15: af_build(j + 1)
        A(f"s_waitcnt vmcnt({len(seq)-1-seq.index(j)})")
        A(f"v_mfma_f32_16x16x32_bf16 {vr(ACC,4)}, {af(j)}, {vr(W1+4*j,4)}, {vr(ACC,4) if j else 0}")
        while issued < nb_total and issued - (j + 1) < b_sched[j + 1]:
            if issued == 16: A("s_barrier")
            b_load(issued); seq.append(issued); issued += 1
    assert issued == nb_total, (issued, nb_total)
    stamp(3)
    partial_store_lds()
    A("s_waitcnt lgkmcnt(0)\ns_barrier")
    A("s_cmp_lg_u32 s3, 0\ns_cbranch_scc1 LB_hgot")
    reduce8()
    publish(T, VXS)
    poll_init()
    stamp(4)
    A("LB_xpoll:")
    A(f"buffer_load_dwordx4 {vr(G,4)}, v{VXG}, {srd(SRD_WS)}, s{sPATH} offen sc1")
    A("s_waitcnt vmcnt(0)")
    A(f"v_cmp_ne_u32 vcc, s{sTAG}, v{G+2}\ns_cmp_eq_u64 vcc, 0\ns_cbranch_scc1 LB_xok")
    poll_tail("LB_xpoll")
    A("LB_xok:")
    stamp(5)
    A(f"v_permlane16_swap_b32 v{G}, v{G+1}\nv_add_f32 v{G}, v{G}, v{G+1}")
    rbf(G, f"v{G}")
    A(f"s_mov_b32 s{s2}, 0x3d372713")
    A(f"v_mul_f32 v{U}, v{G}, v{G}\nv_mov_b32 v{G+1}, v{G}\nv_fma_f32 v{U}, v{U}, s{s2}, 1.0\nv_mul_f32 v{U}, v{U}, v{G}")
    A(f"v_mul_f32 v{U}, 0xc0135761, v{U}\nv_permlane32_swap_b32 v{G+1}, v{G+2}\nv_exp_f32 v{U}, v{U}")
    A(f"v_lshrrev_b32 v{T+2}, 1, v{CH}\nv_add_f32 v{U}, 1.0, v{U}\nv_rcp_f32 v{U}, v{U}\nv_lshl_add_u32 v{T+2}, v{SL}, 2, v{T+2}\nv_mul_f32 v{U}, v{U}, v{G}")
    rbf(U, f"v{U}")
    A(f"v_mul_f32 v{U}, v{U}, v{G+2}\ns_mov_b32 exec_hi, 0\nv_cvt_pk_bf16_f32 v{U}, v{U}, v{U}")
    A(f"ds_write_b32 v{T+2}, v{U} offset:{L_O}")
    A("s_mov_b32 exec_hi, -1")
    A("LB_hgot:")
    A("s_waitcnt lgkmcnt(0)\ns_barrier")
    w2_load(b_down[1])
    stamp(6)
    stage3()
    stamp(7)
    if only == "B": A("s_branch LB_done")
    A(f"s_cmp_eq_u32 s{sF}, -1\ns_cbranch_scc1 LB_done")
    A(f"s_cmp_eq_u32 s3, 7\ns_cselect_b32 s{s1}, 0, 1024")
    A(f"s_mov_b32 s{s2}, 0x0c0c0400\ns_mov_b32 s{s3}, 0x04000c0c")
    A("LB_fpoll:")
    A(f"buffer_load_dwordx4 {vr(G,4)}, v{VFG}, {srd(SRD_WS)}, 0 offen sc1")
    A(f"buffer_load_dwordx4 {vr(G+4,4)}, v{VFG}, {srd(SRD_WS)}, s{s1} offen sc1")
    A("s_waitcnt vmcnt(0)")
    for u in range(2):
        A(f"v_perm_b32 v{T+2*u}, v{G+4*u+1}, v{G+4*u}, s{s2}\nv_perm_b32 v{T+2*u+1}, v{G+4*u+3}, v{G+4*u+2}, s{s3}\nv_or_b32 v{T+2*u}, v{T+2*u}, v{T+2*u+1}")
    A(f"v_cmp_ne_u32 vcc, s{sTAG}, v{T}\nv_cmp_ne_u32 s[94:95], s{sTAG}, v{T+2}\ns_or_b64 s[94:95], s[94:95], vcc\ns_cbranch_scc0 LB_fok")
    A(f"s_sub_u32 s{sCNT}, s{sCNT}, 1\ns_cbranch_scc0 LB_fpoll\ns_mov_b32 s{sCNT}, 0")
    A("LB_fok:")
    stamp(8)
    for r in range(8): A(f"v_and_b32 v{G+r}, s{sMSK}, v{G+r}")
    A("s_cmp_eq_u32 s3, 7\ns_cbranch_scc1 LB_f1")
    A(f"v_pk_add_f32 {vr(G,2)}, {vr(G,2)}, {vr(G+4,2)}\nv_pk_add_f32 {vr(G+2,2)}, {vr(G+2,2)}, {vr(G+6,2)}")
    A("LB_f1:")
    for c in ("row_ror:4", "row_ror:8"):
        for r in range(4): A(f"v_add_f32_dpp v{G+r}, v{G+r}, v{G+r} {c} row_mask:0xf bank_mask:0xf")
    A(f"v_and_b32 v{T}, 3, v0\nv_lshlrev_b32 v{T}, 7, v{T}")
    A(f"v_permlane16_swap_b32 v{G}, v{G+1}\nv_permlane16_swap_b32 v{G+2}, v{G+3}")
    A(f"v_add_f32 v{G}, v{G}, v{G+1}\nv_add_f32 v{G+2}, v{G+2}, v{G+3}")
    A(f"v_lshl_add_u32 v{T}, v{SL}, 5, v{T}\ns_lshl_b32 s{s2}, s3, 2\nv_add_u32 v{T}, s{s2}, v{T}")
    A(f"v_permlane32_swap_b32 v{G}, v{G+2}\nv_add_f32 v{G}, v{G}, v{G+2}")
    A("s_mov_b32 exec_lo, 0x000f000f\ns_mov_b32 exec_hi, 0x000f000f")
    A(f"ds_write_b32 v{T}, v{G} offset:{L_F}")
    A("s_mov_b64 exec, -1")
    A("s_waitcnt lgkmcnt(0)\ns_barrier")
    A("s_cmp_lg_u32 s3, 0\ns_cbranch_scc1 LB_done")
    A(f"v_lshlrev_b32 v{T+1}, 1, v{CH}")
    A(f"ds_read_b128 {vr(G,4)}, v{T+1} offset:{L_F}\nds_read_b128 {vr(G+4,4)}, v{T+1} offset:{L_F+16}")
    A(f"s_lshl_b32 s{s2}, s{sF}, 5\nv_lshrrev_b32 v{T}, 3, v{CH}\nv_add_u32 v{T}, s{s2}, v{T}\nv_lshlrev_b32 v{XF}, 16, v{XF}")
    A("s_waitcnt lgkmcnt(0)")
    A(f"v_pk_add_f32 {vr(G,2)}, {vr(G,2)}, {vr(G+2,2)}\nv_pk_add_f32 {vr(G+4,2)}, {vr(G+4,2)}, {vr(G+6,2)}")
    A(f"v_add_f32 v{G}, v{G}, v{G+1}\nv_add_f32 v{G+4}, v{G+4}, v{G+5}")
    A(f"v_cvt_pk_bf16_f32 v{G}, v{G}, v{G+4}")
    A(f"v_lshlrev_b32 v{G+1}, 16, v{G}\nv_and_b32 v{G+2}, 0xffff0000, v{G}")
    A(f"v_add_f32 v{G+1}, v{XF}, v{G+1}")
    rbf(G+1, f"v{G+1}")
    A(f"v_add_f32 v{G+1}, v{G+1}, v{G+2}\nv_cvt_pk_bf16_f32 v{G+1}, v{G+1}, v{G+1}")
    A("s_mov_b32 exec_lo, 0xffff\ns_mov_b32 exec_hi, 0")
    A(f"buffer_store_short v{G+1}, v{T}, {srd(SRD_OUT)}, 0 offen")
    A(f"s_cmp_lg_u32 s{sF}, 0\ns_cbranch_scc1 LB_noep")
    A(f"s_mov_b32 exec_lo, 1\nv_mov_b32 v{T+2}, 0\nv_mov_b32 v{T+3}, s{sE}")
    A(f"buffer_store_dword v{T+3}, v{T+2}, {srd(SRD_WS)}, 0 offen sc1")
    A("LB_noep:")
    A("s_mov_b64 exec, -1")
    A("LB_done:")
    if only == "B":
        A(f"s_cmp_lg_u32 s2, 1\ns_cbranch_scc1 LB_x\ns_sleep 127\nv_mov_b32 v{T+2}, 0\nv_mov_b32 v{T+3}, s{sE}\nbuffer_store_dword v{T+3}, v{T+2}, {srd(SRD_WS)}, 0 offen sc1\nLB_x:")
    if diagpad:
        A(f"LB_pad:\ns_memrealtime s[4:5]\ns_waitcnt lgkmcnt(0)\ns_sub_u32 s4, s4, s100\ns_cmp_lt_u32 s4, {diagpad*100}\ns_cbranch_scc1 LB_pad")
    stamp(9)
    write_stamps(10)
    A("L_end:")
    A("s_endpgm")

    body, nins = fix_hazards(L)
    nv = max(hiA, hiB)
    acc = (nv + 3) // 4 * 4
    head = [l for l in open(f"cdna_kernels/{NAME}.s.ref").read().split("\n") if l.startswith(";") and "@launch" not in l and "Override" not in l and "grid=ceil" not in l]
    out = "\n".join(head) + f"\n; @launch grid=(256,1,1) block=(512,1,1) lds={lds}\n"
    out += f'.amdgcn_target "amdgcn-amd-amdhsa--gfx950"\n.text\n.globl {NAME}_kernel\n.p2align 8\n.type {NAME}_kernel,@function\n{NAME}_kernel:\n'
    out += "\n".join(("" if l.endswith(":") else "    ") + l for l in body) + "\n"
    out += f""".section .rodata,"a"
.p2align 6
.amdhsa_kernel {NAME}_kernel
  .amdhsa_next_free_vgpr {nv}
  .amdhsa_next_free_sgpr 102
  .amdhsa_accum_offset {acc}
  .amdhsa_group_segment_fixed_size 0
  .amdhsa_kernarg_size 96
  .amdhsa_user_sgpr_count 2
  .amdhsa_user_sgpr_kernarg_segment_ptr 1
  .amdhsa_system_sgpr_workgroup_id_x 1
  .amdhsa_float_denorm_mode_32 3
.end_amdhsa_kernel
"""
    return out

if __name__ == "__main__":
    kw = eval("dict(" + (sys.argv[2] if len(sys.argv) > 2 else "") + ")")
    txt = gen(**kw)
    open(sys.argv[1], "w").write(txt)
```

```python
import sys
from asmdsl import fix_hazards, Regs

NAME = "parallel_sum__sliding_block_cached__geglu_ffn__decode"
QBASE = 0x1000
OBASE = 0x20000
XBASE = 0xA0000
PBASE = 0x100000
TSBASE = 0x300000
L_R = 0; L_Q = 4096; L_P = 6656; L_M = 9216; L_O = 9280; L_F = 9472; L_K = 12288; L_V = 45056
LDS_BYTES = 83968

def gen(mapping="mixed", debug=False, pol="nt", a_pollwait=1, a_wo_q=0, a_wo_qok=2, b_sched=(2,)*6+(6,)*11, b_down_early=2,
        owave=7, spin=2000000, a_win=5, sleep=0, diagpad=0, stagebar=True):
    b_win = b_sched[0]
    L = []
    def A(s):
        for x in s.split("\n"):
            x = x.strip()
            if x: L.append(x)
    nstamp = [0]
    def stamp(k):
        if debug: A(f"s_memrealtime s[{4+2*k}:{5+2*k}]")
    V = Regs("v", 1, 256)
    v = lambda name, n=1: V.alloc(name, n)
    vr = lambda r, n: f"v[{r}:{r+n-1}]"
    T = v("T", 8); M = v("M", 4); TB = v("TB", 4)
    XS = v("XS", 16); XO = XS + 8; U = v("U", 16); XD = v("XD", 16)
    MB = v("MB", 2); SD = v("SD", 2); RI = v("RI", 2); ACC = v("ACC", 4)
    W2 = v("W2", 32); VW1 = v("VW1"); VW2 = v("VW2"); VXO = v("VXO"); VPP = v("VPP"); XF = v("XF")
    G = XS
    base_role = V.next
    SRD_W1, SRD_W2, SRD_K, SRD_V, SRD_WS, SRD_X, SRD_OUT = 28, 32, 36, 40, 44, 48, 52
    sE, sTAG, sG, sS, sPROD, sF = 56, 57, 58, 59, 60, 61
    sT1 = 62
    sT2 = 78
    s0, s1, s2, s3 = 86, 87, 88, 89
    sCNT = 92; sMSK = 93
    srd = lambda r: f"s[{r}:{r+3}]"

    if debug or diagpad: A("s_memrealtime s[100:101]")
    A("s_load_dwordx16 s[4:19], s[0:1], 0")
    A("s_load_dwordx8 s[20:27], s[0:1], 64")
    A("s_cmp_ge_u32 s2, 256\ns_cbranch_scc1 L_end")
    A("v_lshrrev_b32 v1, 6, v0\nv_and_b32 v0, 63, v0")
    A("v_readfirstlane_b32 s3, v1")
    A(f"s_and_b32 s{s0}, s2, 7\ns_lshr_b32 s{s1}, s2, 3")
    A(f"v_and_b32 v{T}, 1, v0\nv_lshlrev_b32 v{T}, 4, v{T}\nv_mov_b32 v{T+1}, 0xffff\nv_lshlrev_b32 v{T+1}, v{T}, v{T+1}")
    A(f"v_bfe_u32 v{T+2}, v0, 1, 2")
    for r in range(4):
        A(f"v_cmp_eq_u32 vcc, {r}, v{T+2}\nv_cndmask_b32 v{M+r}, 0, v{T+1}, vcc")
    for j in range(8): A(f"s_mov_b32 s{sT2+j}, {j*2048}")
    if mapping == "mixed":
        A(f"s_cmp_ge_u32 s{s1}, 30\ns_cbranch_scc1 L_end")
        A(f"s_cmp_ge_u32 s{s1}, 16\ns_cbranch_scc1 L_roleB")
        A(f"s_lshr_b32 s{sG}, s{s0}, 1\ns_and_b32 s{sS}, s{s0}, 1\ns_lshl_b32 s{sS}, s{sS}, 4\ns_add_u32 s{sS}, s{sS}, s{s1}")
    else:
        A(f"s_and_b32 s{s2}, s{s0}, 1\ns_cmp_eq_u32 s{s2}, 1\ns_cbranch_scc1 L_roleB")
        A(f"s_lshr_b32 s{sG}, s{s0}, 1\ns_mov_b32 s{sS}, s{s1}")

    def build_srd(r, p, size):
        A(f"s_mov_b32 s{r}, s{p}\ns_mov_b32 s{r+1}, s{p+1}\ns_mov_b32 s{r+2}, {size}\ns_mov_b32 s{r+3}, 0x20000")

    def wave_sum(r):
        for c in ("row_shr:1", "row_shr:2", "row_shr:4", "row_shr:8"):
            A(f"v_add_f32_dpp v{r}, v{r}, v{r} {c} row_mask:0xf bank_mask:0xf bound_ctrl:0")
        A(f"v_add_f32_dpp v{r}, v{r}, v{r} row_bcast:15 row_mask:0xa bank_mask:0xf")
        A(f"v_add_f32_dpp v{r}, v{r}, v{r} row_bcast:31 row_mask:0xc bank_mask:0xf")

    def rbf(dst, src):
        A(f"v_cvt_pk_bf16_f32 v{dst}, {src}, {src}\nv_and_b32 v{dst}, 0xffff0000, v{dst}")

    def layernorm(nown):
        for k in range(8):
            A(f"v_lshlrev_b32 v{U+2*k}, 16, v{XS+k}\nv_and_b32 v{U+2*k+1}, 0xffff0000, v{XS+k}")
        A(f"v_pk_add_f32 {vr(T,2)}, {vr(U,2)}, {vr(U+2,2)}\nv_pk_add_f32 {vr(T+2,2)}, {vr(U+4,2)}, {vr(U+6,2)}")
        A(f"v_pk_add_f32 {vr(T+4,2)}, {vr(U+8,2)}, {vr(U+10,2)}\nv_pk_add_f32 {vr(T+6,2)}, {vr(U+12,2)}, {vr(U+14,2)}")
        A(f"v_pk_add_f32 {vr(T,2)}, {vr(T,2)}, {vr(T+2,2)}\nv_pk_add_f32 {vr(T+4,2)}, {vr(T+4,2)}, {vr(T+6,2)}")
        A(f"v_pk_add_f32 {vr(T,2)}, {vr(T,2)}, {vr(T+4,2)}\nv_add_f32 v{T}, v{T}, v{T+1}")
        wave_sum(T)
        A(f"v_mul_f32 v{T}, 0x3a800000, v{T}\nv_readlane_b32 s{s2}, v{T}, 63")
        for k in range(8):
            A(f"v_pk_add_f32 {vr(U+2*k,2)}, {vr(U+2*k,2)}, s[{s2}:{s2+1}] op_sel_hi:[1,0] neg_lo:[0,1] neg_hi:[0,1]")
        A(f"v_pk_mul_f32 {vr(T,2)}, {vr(U,2)}, {vr(U,2)}\nv_pk_mul_f32 {vr(T+2,2)}, {vr(U+2,2)}, {vr(U+2,2)}")
        for k in range(2, 8):
            t = T + 2 * (k & 1)
            A(f"v_pk_fma_f32 {vr(t,2)}, {vr(U+2*k,2)}, {vr(U+2*k,2)}, {vr(t,2)}")
        A(f"v_pk_add_f32 {vr(T,2)}, {vr(T,2)}, {vr(T+2,2)}\nv_add_f32 v{T}, v{T}, v{T+1}")
        rbf(MB, f"s{s2}")
        wave_sum(T)
        A(f"v_mul_f32 v{T}, 0x3a800000, v{T}\nv_readlane_b32 s{s2}, v{T}, 63")
        rbf(SD, f"s{s2}")
        A(f"v_add_f32 v{SD}, 0x3727c5ac, v{SD}")
        rbf(SD, f"v{SD}")
        A(f"v_sqrt_f32 v{SD}, v{SD}")
        rbf(SD, f"v{SD}")
        A(f"v_rcp_f32 v{RI}, v{SD}")
        for k in range(nown // 2):
            u = U + 2 * (k % 8); t = T + 2 * (k % 2); t2 = T + 4 + 2 * (k % 2)
            A(f"v_lshlrev_b32 v{u}, 16, v{XO+k}\nv_and_b32 v{u+1}, 0xffff0000, v{XO+k}")
            A(f"v_pk_add_f32 {vr(u,2)}, {vr(u,2)}, {vr(MB,2)} op_sel_hi:[1,0] neg_lo:[0,1] neg_hi:[0,1]")
            A(f"v_cvt_pk_bf16_f32 v{t}, v{u}, v{u+1}")
            A(f"v_lshlrev_b32 v{u}, 16, v{t}\nv_and_b32 v{u+1}, 0xffff0000, v{t}")
            A(f"v_pk_mul_f32 {vr(t,2)}, {vr(u,2)}, {vr(RI,2)} op_sel_hi:[1,0]")
            A(f"v_pk_fma_f32 {vr(t2,2)}, {vr(t,2)}, {vr(SD,2)}, {vr(u,2)} op_sel_hi:[1,0,1] neg_lo:[1,0,0] neg_hi:[1,0,0]")
            A(f"v_pk_fma_f32 {vr(t,2)}, {vr(t2,2)}, {vr(RI,2)}, {vr(t,2)} op_sel_hi:[1,0,1]")
            A(f"v_cvt_pk_bf16_f32 v{XD+2*k}, v{t}, v{t}\nv_cvt_pk_bf16_f32 v{XD+2*k+1}, v{t+1}, v{t+1}")

    def get_tag():
        A(f"s_add_u32 s{sE}, s{sE}, 1\ns_mul_i32 s{sTAG}, s{sE}, 0x01010101")
        A(f"v_mov_b32 v{TB}, s{sTAG}\nv_lshrrev_b32 v{TB+1}, 8, v{TB}\nv_lshrrev_b32 v{TB+2}, 16, v{TB}\nv_lshrrev_b32 v{TB+3}, 24, v{TB}")
        A(f"s_mov_b32 s{sMSK}, 0xffffff00\ns_mov_b32 s{sCNT}, {spin}")

    def partial_to_lds():
        A(f"v_lshrrev_b32 v{T}, 5, v0\nv_lshlrev_b32 v{T}, 8, v{T}\nv_and_b32 v{T+1}, 7, v0\nv_lshlrev_b32 v{T+1}, 5, v{T+1}")
        A(f"v_and_b32 v{T+2}, 16, v0\nv_add3_u32 v{T}, v{T}, v{T+1}, v{T+2}")
        A(f"s_lshl_b32 s{s2}, s3, 9\nv_add_u32 v{T}, s{s2}, v{T}")
        return

    def partial_store_lds():
        A("s_mov_b32 exec_lo, 0x00ff00ff\ns_mov_b32 exec_hi, 0xff00ff00")
        A(f"ds_write_b128 v{T}, {vr(ACC,4)} offset:{L_R}")
        A("s_mov_b64 exec, -1")

    def reduce16():
        A(f"v_and_b32 v{T+2}, 31, v0\nv_lshlrev_b32 v{T+2}, 3, v{T+2}\nv_lshrrev_b32 v{T+3}, 5, v0\nv_lshlrev_b32 v{T+3}, 11, v{T+3}\nv_add_u32 v{T+2}, v{T+2}, v{T+3}")
        for k in range(8): A(f"ds_read_b64 {vr(U+2*k,2)}, v{T+2} offset:{L_R+k*256}")
        A("s_waitcnt lgkmcnt(0)")
        A(f"v_pk_add_f32 {vr(U,2)}, {vr(U,2)}, {vr(U+2,2)}\nv_pk_add_f32 {vr(U+4,2)}, {vr(U+4,2)}, {vr(U+6,2)}")
        A(f"v_pk_add_f32 {vr(U+8,2)}, {vr(U+8,2)}, {vr(U+10,2)}\nv_pk_add_f32 {vr(U+12,2)}, {vr(U+12,2)}, {vr(U+14,2)}")
        A(f"v_pk_add_f32 {vr(U,2)}, {vr(U,2)}, {vr(U+4,2)}\nv_pk_add_f32 {vr(U+8,2)}, {vr(U+8,2)}, {vr(U+12,2)}")
        A(f"v_pk_add_f32 {vr(T,2)}, {vr(U,2)}, {vr(U+8,2)}")
        A(f"v_mov_b32 v{T+2}, v{T}\nv_mov_b32 v{T+3}, v{T+1}")
        A(f"v_permlane32_swap_b32 v{T}, v{T+2}\nv_permlane32_swap_b32 v{T+1}, v{T+3}")
        A(f"v_pk_add_f32 {vr(T,2)}, {vr(T,2)}, {vr(T+2,2)}")

    def w2_addr(srow):
        A(f"v_lshrrev_b32 v{T}, 4, v0\nv_lshlrev_b32 v{T}, 14, v{T}\nv_and_b32 v{T+1}, 15, v0\nv_lshlrev_b32 v{T+1}, 4, v{T+1}")
        A(f"s_lshl_b32 s{s2}, s{srow}, 11\ns_lshl_b32 s{s3}, s3, 8\ns_add_u32 s{s2}, s{s2}, s{s3}")
        A(f"v_add3_u32 v{VW2}, v{T}, v{T+1}, s{s2}")
    def w2_load(j):
        A(f"buffer_load_dwordx4 {vr(W2+4*j,4)}, v{VW2}, {srd(SRD_W2)}, s{sT2+j} offen {pol}")
    def pp_addr():
        A(f"v_bfe_u32 v{T}, v0, 1, 3\nv_lshlrev_b32 v{T}, 14, v{T}\nv_and_b32 v{T+1}, 1, v0\nv_lshlrev_b32 v{T+1}, 5, v{T+1}\nv_and_b32 v{T+2}, 16, v0")
        A(f"v_add3_u32 v{T}, v{T}, v{T+1}, v{T+2}")
        A(f"s_lshl_b32 s{s2}, s3, 17\ns_lshl_b32 s{s3}, s{sPROD}, 6\ns_add_u32 s{s2}, s{s2}, s{s3}\ns_add_u32 s{s2}, s{s2}, {PBASE}")
        A(f"v_add_u32 v{VPP}, s{s2}, v{T}")
    def stage3(AF):
        A(f"v_lshrrev_b32 v{T}, 4, v0\nv_lshlrev_b32 v{T}, 5, v{T}")
        A(f"ds_read_b128 {vr(XD,4)}, v{T} offset:{L_O}\nds_read_b128 {vr(XD+4,4)}, v{T} offset:{L_O+16}")
        A("s_waitcnt lgkmcnt(0)")
        for j in range(8):
            for r in range(4): A(f"v_and_b32 v{AF+4*j+r}, v{XD+j}, v{M+r}")
            if j >= 1:
                jj = j - 1
                A(f"s_waitcnt vmcnt({7-jj})")
                A(f"v_mfma_f32_16x16x32_bf16 {vr(ACC,4)}, {vr(AF+4*jj,4)}, {vr(W2+4*jj,4)}, {vr(ACC,4) if jj else 0}")
        A("s_waitcnt vmcnt(0)")
        A(f"v_mfma_f32_16x16x32_bf16 {vr(ACC,4)}, {vr(AF+28,4)}, {vr(W2+28,4)}, {vr(ACC,4)}")
        A("s_mov_b32 exec_hi, 0")
        for r in range(4): A(f"v_bfi_b32 v{T+r}, s{sMSK}, v{ACC+r}, v{TB+r}")
        A(f"buffer_store_dwordx4 {vr(T,4)}, v{VPP}, {srd(SRD_WS)}, 0 offen sc1")
        A("s_mov_b64 exec, -1")
    def spin_tail(lbl_retry, lbl_bail):
        if sleep: A(f"s_sleep {sleep}")
        A(f"s_sub_u32 s{sCNT}, s{sCNT}, 1\ns_cbranch_scc0 {lbl_retry}\ns_mov_b32 s{sCNT}, 0")
    def write_stamps(n):
        if not debug: return
        A("s_waitcnt lgkmcnt(0)")
        for k in range(n): A(f"v_writelane_b32 v{T+4}, s{4+2*k}, {k}")
        A(f"v_writelane_b32 v{T+4}, s100, 15")
        A(f"s_lshl_b32 s{s2}, s2, 3\ns_add_u32 s{s2}, s{s2}, s3\ns_lshl_b32 s{s2}, s{s2}, 6\ns_add_u32 s{s2}, s{s2}, {TSBASE}")
        A(f"v_lshlrev_b32 v{T+5}, 2, v0\nv_add_u32 v{T+5}, s{s2}, v{T+5}")
        A("s_mov_b32 exec_lo, 0xffff\ns_mov_b32 exec_hi, 0")
        A(f"buffer_store_dword v{T+4}, v{T+5}, {srd(SRD_WS)}, 0 offen")
        A("s_mov_b64 exec, -1")

    V.next = base_role
    W1 = v("W1", 32); AF = v("AF", 32); KA = v("KA", 4); VA = v("VA", 2); KR = v("KR", 4); VR_ = v("VR"); QR = v("QR"); PW = v("PW")
    KF = W1; QF = W1 + 16; VF = AF; ONE = v("ONE", 4); LA = v("LA", 4); VQP = v("VQP"); VOP = v("VOP"); VOG = v("VOG"); HM = v("HM")
    hiA = V.next
    A(f"s_and_b32 s{s2}, s{sS}, 1\ns_lshl_b32 s{s2}, s{s2}, 9\ns_lshl_b32 s{s3}, s3, 6\ns_add_u32 s{s2}, s{s2}, s{s3}")
    A(f"v_lshrrev_b32 v{T}, 3, v0\nv_lshlrev_b32 v{T}, 3, v{T}\nv_add_u32 v{T}, s{s2}, v{T}")
    A(f"v_lshlrev_b32 v{VXO}, 1, v{T}")
    A(f"s_lshl_b32 s{s2}, s{sG}, 11\ns_lshr_b32 s{s3}, s{sS}, 1\ns_lshl_b32 s{s3}, s{s3}, 7\ns_add_u32 s{s2}, s{s2}, s{s3}")
    A(f"v_and_b32 v{T+1}, 7, v0\nv_lshlrev_b32 v{T+1}, 4, v{T+1}\nv_lshlrev_b32 v{T}, 13, v{T}\nv_add3_u32 v{VW1}, v{T}, v{T+1}, s{s2}")
    A(f"v_lshlrev_b32 v{T+2}, 5, v0")
    for j in range(8): A(f"s_mov_b32 s{sT1+j}, {j*8192}")
    A("s_waitcnt lgkmcnt(0)")
    A(f"s_load_dword s{sE}, s[26:27], 0")
    build_srd(SRD_X, 4, 2048); build_srd(SRD_W1, 10, 8388608)
    A(f"buffer_load_dwordx4 {vr(XS,4)}, v{T+2}, {srd(SRD_X)}, 0 offen\nbuffer_load_dwordx4 {vr(XS+4,4)}, v{T+2}, {srd(SRD_X)}, 0 offen offset:16")
    A(f"buffer_load_dwordx4 {vr(XO,4)}, v{VXO}, {srd(SRD_X)}, 0 offen")
    def a_load(n):
        if n < 8: A(f"buffer_load_dwordx4 {vr(W1+4*n,4)}, v{VW1}, {srd(SRD_W1)}, s{sT1+n} offen {pol}")
        elif n < 12:
            if n == 8: A(f"s_lshl_b32 s{s2}, s3, 12\ns_add_u32 m0, s{s2}, {L_K}")
            A(f"buffer_load_dwordx4 v{KA+n-8}, {srd(SRD_K)}, 0 offen offset:{(n-8)*1024} {pol} lds")
        else:
            if n == 12: A(f"s_lshl_b32 s{s2}, s3, 12\ns_add_u32 m0, s{s2}, {L_V}")
            A(f"buffer_load_dwordx4 v{VA+(n-12)//2}, {srd(SRD_V)}, 0 offen offset:{(n-12)*1024} {pol} lds")
    first = min(a_win, 8)
    for n in range(first): a_load(n)
    build_srd(SRD_K, 6, 67108864); build_srd(SRD_V, 8, 67108864); build_srd(SRD_W2, 12, 8388608); build_srd(SRD_WS, 26, 268435456)
    stamp(0)
    A(f"s_lshl_b32 s{s2}, s{sG}, 24\ns_lshl_b32 s{s3}, s{sS}, 15\ns_add_u32 s{s2}, s{s2}, s{s3}\ns_lshl_b32 s{s3}, s3, 12\ns_add_u32 s{s2}, s{s2}, s{s3}\ns_add_u32 s{s2}, s{s2}, {61440*256}")
    A(f"v_lshrrev_b32 v{T}, 4, v0\nv_and_b32 v{T+1}, 15, v0\nv_lshlrev_b32 v{T+2}, 8, v{T}\nv_add_u32 v{T+2}, s{s2}, v{T+2}")
    A(f"v_xor_b32 v{T+3}, v{T}, v{T+1}\nv_lshlrev_b32 v{T+3}, 4, v{T+3}")
    for t in range(4): A(f"v_xor_b32 v{T+4}, {64*t}, v{T+3}\nv_add_u32 v{KA+t}, v{T+4}, v{T+2}")
    A(f"v_lshlrev_b32 v{T+4}, 1, v{T}\nv_xor_b32 v{T+4}, v{T+4}, v{T+1}\nv_lshlrev_b32 v{T+4}, 4, v{T+4}\nv_add_u32 v{VA}, v{T+4}, v{T+2}")
    A(f"v_xor_b32 v{T+4}, 128, v{T+4}\nv_add_u32 v{VA+1}, v{T+4}, v{T+2}")
    for n in range(first, a_win): a_load(n)
    A(f"s_lshl_b32 s{s2}, s3, 12\nv_lshlrev_b32 v{T+4}, 8, v{T+1}\nv_add_u32 v{T+4}, s{s2}, v{T+4}")
    for ks in range(4): A(f"v_xor_b32 v{T+5}, {64*ks}, v{T+3}\nv_add_u32 v{KR+ks}, v{T+5}, v{T+4}")
    A(f"v_bfe_u32 v{T+4}, v0, 2, 2\nv_lshl_add_u32 v{T+5}, v{T}, 3, v{T+4}\nv_lshlrev_b32 v{T+5}, 8, v{T+5}")
    A(f"v_and_b32 v{T+6}, 1, v{T}\nv_lshl_or_b32 v{T+4}, v{T+6}, 2, v{T+4}\nv_xor_b32 v{T+4}, s3, v{T+4}\nv_lshlrev_b32 v{T+4}, 5, v{T+4}")
    A(f"v_and_b32 v{T+6}, 3, v0\nv_lshlrev_b32 v{T+6}, 3, v{T+6}\nv_add3_u32 v{VR_}, v{T+4}, v{T+5}, v{T+6}\nv_add_u32 v{VR_}, {L_V}, v{VR_}")
    A(f"v_and_b32 v{T+4}, 7, v0\nv_lshlrev_b32 v{HM}, 2, v{T+4}\nv_mul_u32_u24 v{T+4}, 288, v{T+4}\nv_lshl_add_u32 v{QR}, v{T}, 4, v{T+4}")
    A(f"s_lshl_b32 s{s2}, s3, 5\nv_lshl_add_u32 v{PW}, v{T}, 3, v{T+4}\nv_add_u32 v{PW}, s{s2}, v{PW}")
    A(f"s_lshl_b32 s{s2}, s{sG}, 14\ns_lshl_b32 s{s3}, s3, 10\ns_add_u32 s{s2}, s{s2}, s{s3}\ns_add_u32 s{s2}, s{s2}, {QBASE}")
    A(f"v_lshl_add_u32 v{VQP}, v0, 4, s{s2}")
    A(f"s_lshl_b32 s{s2}, s{sG}, 17\ns_lshr_b32 s{s3}, s3, 1\ns_lshl_b32 s{s3}, s{s3}, 12\ns_add_u32 s{s2}, s{s2}, s{s3}")
    A(f"s_lshl_b32 s{s3}, s{sS}, 7\ns_add_u32 s{s2}, s{s2}, s{s3}\ns_and_b32 s{s3}, s3, 1\ns_lshl_b32 s{s3}, s{s3}, 6\ns_add_u32 s{s2}, s{s2}, s{s3}\ns_add_u32 s{s2}, s{s2}, {OBASE}")
    A(f"v_lshlrev_b32 v{T+4}, 12, v{HM}\nv_lshlrev_b32 v{T+5}, 4, v{T}\nv_add3_u32 v{VOP}, v{T+4}, v{T+5}, s{s2}")
    A(f"s_lshl_b32 s{s2}, s{sG}, 17\ns_lshl_b32 s{s3}, s{sS}, 12\ns_add_u32 s{s2}, s{s2}, s{s3}\ns_add_u32 s{s2}, s{s2}, {OBASE}")
    A(f"v_lshl_add_u32 v{VOG}, v0, 4, s{s2}")
    A(f"s_lshl_b32 s{sPROD}, s{sG}, 5\ns_add_u32 s{sPROD}, s{sPROD}, s{sS}\ns_lshl_b32 s{s0}, s{sPROD}, 5")
    w2_addr(s0); pp_addr()
    for r in range(4): A(f"v_mov_b32 v{ONE+r}, 0x3f803f80")
    A(f"v_mov_b32 v{T}, 0xff800000\nds_write_b32 v{HM}, v{T} offset:{L_M}")
    A(f"s_waitcnt vmcnt({a_win}) lgkmcnt(0)")
    get_tag()
    stamp(1)
    layernorm(8)
    for j in range(8):
        for r in range(4): A(f"v_and_b32 v{AF+4*j+r}, v{XD+j}, v{M+r}")
    partial_to_lds()
    stamp(2)
    issued = a_win
    for j in range(8):
        A(f"s_waitcnt vmcnt({issued-1-j})")
        A(f"v_mfma_f32_16x16x32_bf16 {vr(ACC,4)}, {vr(AF+4*j,4)}, {vr(W1+4*j,4)}, {vr(ACC,4) if j else 0}")
        if issued < 16:
            if issued == 8 and stagebar and a_win < 8: A("s_barrier")
            a_load(issued); issued += 1
    a_rest = issued
    stamp(3)
    partial_store_lds()
    A("s_waitcnt lgkmcnt(0)\ns_barrier")
    A("s_cmp_lg_u32 s3, 0\ns_cbranch_scc1 LA_nopub")
    reduce16()
    A(f"v_mov_b32 v{T+2}, s{sTAG}\nv_mov_b32 v{T+3}, s{sTAG}")
    A(f"s_lshl_b32 s{s2}, s{sG}, 14\ns_and_b32 s{s3}, s{sS}, 1\ns_lshl_b32 s{s3}, s{s3}, 13\ns_add_u32 s{s2}, s{s2}, s{s3}\ns_lshr_b32 s{s3}, s{sS}, 1\ns_lshl_b32 s{s3}, s{s3}, 9\ns_add_u32 s{s2}, s{s2}, s{s3}\ns_add_u32 s{s2}, s{s2}, {QBASE}")
    A(f"v_lshl_add_u32 v{T+4}, v0, 4, s{s2}")
    A("s_mov_b32 exec_hi, 0")
    A(f"buffer_store_dwordx4 {vr(T,4)}, v{T+4}, {srd(SRD_WS)}, 0 offen sc1")
    A("s_mov_b64 exec, -1")
    A("LA_nopub:")
    stamp(4)
    for n in range(a_rest, 16):
        A(f"s_waitcnt vmcnt({a_win-1})"); a_load(n)
    A("s_waitcnt vmcnt(4)")
    for ks in range(4): A(f"ds_read_b128 {vr(KF+4*ks,4)}, v{KR+ks} offset:{L_K}")
    A(f"s_waitcnt vmcnt({a_pollwait})")
    def q_loads():
        A(f"buffer_load_dwordx4 {vr(G,4)}, v{VQP}, {srd(SRD_WS)}, 0 offen sc1")
        A(f"buffer_load_dwordx4 {vr(G+4,4)}, v{VQP}, {srd(SRD_WS)}, s{sT1+1} offen sc1")
    def q_check(ok):
        A(f"v_cmp_ne_u32 vcc, s{sTAG}, v{G+2}\nv_cmp_ne_u32 s[94:95], s{sTAG}, v{G+3}\nv_cmp_ne_u32 s[96:97], s{sTAG}, v{G+6}\nv_cmp_ne_u32 s[98:99], s{sTAG}, v{G+7}")
        A(f"s_or_b64 s[94:95], s[94:95], vcc\ns_or_b64 s[96:97], s[96:97], s[98:99]\ns_or_b64 s[94:95], s[94:95], s[96:97]\ns_cbranch_scc0 {ok}")
    if a_wo_q:
        q_loads()
        for j in range(a_wo_q): w2_load(j)
        A(f"s_waitcnt vmcnt({a_wo_q})")
        q_check("LA_qok")
    A("LA_qpoll:")
    q_loads()
    A("s_waitcnt vmcnt(0)")
    q_check("LA_qok")
    spin_tail("LA_qpoll", None)
    A("LA_qok:")
    for j in range(a_wo_q, max(a_wo_q, a_wo_qok)): w2_load(j)
    a_wo_done = max(a_wo_q, a_wo_qok)
    stamp(5)
    A(f"v_pk_add_f32 {vr(G,2)}, {vr(G,2)}, {vr(G+4,2)}\nv_cvt_pk_bf16_f32 v{G}, v{G}, v{G+1}")
    A(f"s_mul_i32 s{s2}, s3, 288\nv_lshl_add_u32 v{T}, v0, 2, s{s2}\nds_write_b32 v{T}, v{G} offset:{L_Q}")
    A("s_waitcnt lgkmcnt(0)\ns_barrier")
    for ks in range(4): A(f"ds_read_b128 {vr(QF+4*ks,4)}, v{QR} offset:{L_Q+64*ks}")
    for ks in range(4):
        A(f"s_waitcnt lgkmcnt({0 if debug else 3-ks})")
        A(f"v_mfma_f32_16x16x32_bf16 {vr(ACC,4)}, {vr(KF+4*ks,4)}, {vr(QF+4*ks,4)}, {vr(ACC,4) if ks else 0}")
    for ks in range(4):
        for hh in range(2): A(f"ds_read_b64_tr_b16 {vr(VF+4*ks+2*hh,2)}, v{VR_} offset:{ks*8192+hh*1024}")
    A(f"s_mov_b32 s{s2}, 0x3db504f3")
    A(f"v_cvt_pk_bf16_f32 v{T}, v{ACC}, v{ACC+1}\nv_cvt_pk_bf16_f32 v{T+1}, v{ACC+2}, v{ACC+3}")
    A(f"v_lshlrev_b32 v{U}, 16, v{T}\nv_and_b32 v{U+1}, 0xffff0000, v{T}\nv_lshlrev_b32 v{U+2}, 16, v{T+1}\nv_and_b32 v{U+3}, 0xffff0000, v{T+1}")
    A(f"v_pk_mul_f32 {vr(U,2)}, {vr(U,2)}, s[{s2}:{s2+1}] op_sel_hi:[1,0]\nv_pk_mul_f32 {vr(U+2,2)}, {vr(U+2,2)}, s[{s2}:{s2+1}] op_sel_hi:[1,0]")
    A(f"v_cvt_pk_bf16_f32 v{T}, v{U}, v{U+1}\nv_cvt_pk_bf16_f32 v{T+1}, v{U+2}, v{U+3}")
    A(f"v_lshlrev_b32 v{U}, 16, v{T}\nv_and_b32 v{U+1}, 0xffff0000, v{T}\nv_lshlrev_b32 v{U+2}, 16, v{T+1}\nv_and_b32 v{U+3}, 0xffff0000, v{T+1}")
    A(f"v_max3_f32 v{T}, v{U}, v{U+1}, v{U+2}\nv_max_f32 v{T}, v{T}, v{U+3}")
    A(f"ds_max_f32 v{HM}, v{T} offset:{L_M}")
    A("s_waitcnt lgkmcnt(0)\ns_barrier")
    A(f"ds_read_b32 v{MB}, v{HM} offset:{L_M}")
    A(f"s_mov_b32 s{s2}, 0x3fb8aa3b")
    A("s_waitcnt lgkmcnt(0)")
    A(f"v_pk_add_f32 {vr(U,2)}, {vr(U,2)}, {vr(MB,2)} op_sel_hi:[1,0] neg_lo:[0,1] neg_hi:[0,1]\nv_pk_add_f32 {vr(U+2,2)}, {vr(U+2,2)}, {vr(MB,2)} op_sel_hi:[1,0] neg_lo:[0,1] neg_hi:[0,1]")
    A(f"v_pk_mul_f32 {vr(U,2)}, {vr(U,2)}, s[{s2}:{s2+1}] op_sel_hi:[1,0]\nv_pk_mul_f32 {vr(U+2,2)}, {vr(U+2,2)}, s[{s2}:{s2+1}] op_sel_hi:[1,0]")
    for r in range(4): A(f"v_exp_f32 v{U+r}, v{U+r}")
    A(f"v_cvt_pk_bf16_f32 v{T}, v{U}, v{U+1}\nv_cvt_pk_bf16_f32 v{T+1}, v{U+2}, v{U+3}")
    A(f"ds_write_b64 v{PW}, {vr(T,2)} offset:{L_P}")
    A(f"v_mul_f32 v{MB}, s{s2}, v{MB}")
    A("s_waitcnt lgkmcnt(0)\ns_barrier")
    for ks in range(4): A(f"ds_read_b128 {vr(QF+4*ks,4)}, v{QR} offset:{L_P+64*ks}")
    for ks in range(4):
        A(f"s_waitcnt lgkmcnt({0 if debug else 3-ks})")
        A(f"v_mfma_f32_16x16x32_bf16 {vr(LA,4)}, {vr(ONE,4)}, {vr(QF+4*ks,4)}, {vr(LA,4) if ks else 0}")
        A(f"v_mfma_f32_16x16x32_bf16 {vr(ACC,4)}, {vr(VF+4*ks,4)}, {vr(QF+4*ks,4)}, {vr(ACC,4) if ks else 0}")
    A(f"v_rcp_f32 v{RI}, v{LA}\nv_log_f32 v{T+2}, v{LA}")
    A(f"v_mov_b32 v{T+3}, s{sTAG}")
    A(f"v_add_f32 v{T+2}, v{T+2}, v{MB}")
    A(f"v_pk_mul_f32 {vr(ACC,2)}, {vr(ACC,2)}, {vr(RI,2)} op_sel_hi:[1,0]\nv_pk_mul_f32 {vr(ACC+2,2)}, {vr(ACC+2,2)}, {vr(RI,2)} op_sel_hi:[1,0]")
    A(f"v_cvt_pk_bf16_f32 v{T}, v{ACC}, v{ACC+1}\nv_cvt_pk_bf16_f32 v{T+1}, v{ACC+2}, v{ACC+3}")
    A("s_mov_b32 exec_lo, 0x00ff00ff\ns_mov_b32 exec_hi, 0x00ff00ff")
    A(f"buffer_store_dwordx4 {vr(T,4)}, v{VOP}, {srd(SRD_WS)}, 0 offen sc1")
    A("s_mov_b64 exec, -1")
    stamp(6)
    A(f"s_cmp_lg_u32 s3, {owave}\ns_cbranch_scc1 LA_ogot")
    A("LA_opoll:")
    for u in range(4): A(f"buffer_load_dwordx4 {vr(G+4*u,4)}, v{VOG}, {srd(SRD_WS)}, 0 offen offset:{u*1024} sc1")
    A("s_waitcnt vmcnt(0)")
    A(f"v_cmp_ne_u32 vcc, s{sTAG}, v{G+3}\nv_cmp_ne_u32 s[94:95], s{sTAG}, v{G+7}\nv_cmp_ne_u32 s[96:97], s{sTAG}, v{G+11}\nv_cmp_ne_u32 s[98:99], s{sTAG}, v{G+15}")
    A(f"s_or_b64 s[94:95], s[94:95], vcc\ns_or_b64 s[96:97], s[96:97], s[98:99]\ns_or_b64 s[94:95], s[94:95], s[96:97]\ns_cbranch_scc0 LA_ook")
    spin_tail("LA_opoll", None)
    A("LA_ook:")
    stamp(7)
    A(f"v_max3_f32 v{T}, v{G+2}, v{G+6}, v{G+10}\nv_max_f32 v{T}, v{T}, v{G+14}")
    A(f"v_max_f32_dpp v{T}, v{T}, v{T} row_ror:8 row_mask:0xf bank_mask:0xf")
    A(f"v_mov_b32 v{T+1}, v{T}\nv_permlane16_swap_b32 v{T}, v{T+1}\nv_max_f32 v{T}, v{T}, v{T+1}")
    A(f"v_mov_b32 v{T+1}, v{T}\nv_permlane32_swap_b32 v{T}, v{T+1}\nv_max_f32 v{T}, v{T}, v{T+1}")
    for u in range(4): A(f"v_sub_f32 v{G+4*u+2}, v{G+4*u+2}, v{T}")
    for u in range(4): A(f"v_exp_f32 v{G+4*u+2}, v{G+4*u+2}")
    for u in range(4):
        A(f"v_lshlrev_b32 v{U+4*u}, 16, v{G+4*u}\nv_and_b32 v{U+4*u+1}, 0xffff0000, v{G+4*u}\nv_lshlrev_b32 v{U+4*u+2}, 16, v{G+4*u+1}\nv_and_b32 v{U+4*u+3}, 0xffff0000, v{G+4*u+1}")
    A(f"v_pk_mul_f32 {vr(ACC,2)}, {vr(U,2)}, {vr(G+2,2)} op_sel_hi:[1,0]\nv_pk_mul_f32 {vr(ACC+2,2)}, {vr(U+2,2)}, {vr(G+2,2)} op_sel_hi:[1,0]")
    for u in range(1, 4):
        A(f"v_pk_fma_f32 {vr(ACC,2)}, {vr(U+4*u,2)}, {vr(G+4*u+2,2)}, {vr(ACC,2)} op_sel_hi:[1,0,1]\nv_pk_fma_f32 {vr(ACC+2,2)}, {vr(U+4*u+2,2)}, {vr(G+4*u+2,2)}, {vr(ACC+2,2)} op_sel_hi:[1,0,1]")
    A(f"v_add_f32 v{T}, v{G+2}, v{G+6}\nv_add_f32 v{T+1}, v{G+10}, v{G+14}\nv_add_f32 v{T}, v{T}, v{T+1}")
    for r in range(4): A(f"v_add_f32_dpp v{ACC+r}, v{ACC+r}, v{ACC+r} row_ror:8 row_mask:0xf bank_mask:0xf")
    A(f"v_add_f32_dpp v{T}, v{T}, v{T} row_ror:8 row_mask:0xf bank_mask:0xf")
    A(f"v_permlane16_swap_b32 v{ACC}, v{ACC+1}\nv_permlane16_swap_b32 v{ACC+2}, v{ACC+3}\nv_mov_b32 v{T+1}, v{T}")
    A(f"v_add_f32 v{ACC}, v{ACC}, v{ACC+1}\nv_add_f32 v{ACC+2}, v{ACC+2}, v{ACC+3}\nv_permlane16_swap_b32 v{T}, v{T+1}")
    A(f"v_add_f32 v{T}, v{T}, v{T+1}\nv_permlane32_swap_b32 v{ACC}, v{ACC+2}\nv_mov_b32 v{T+1}, v{T}")
    A(f"v_add_f32 v{ACC}, v{ACC}, v{ACC+2}\nv_permlane32_swap_b32 v{T}, v{T+1}\nv_add_f32 v{T}, v{T}, v{T+1}")
    A(f"v_rcp_f32 v{T}, v{T}")
    A(f"v_and_b32 v{T+2}, 7, v0\nv_lshlrev_b32 v{T+2}, 4, v{T+2}\nv_lshrrev_b32 v{T+3}, 4, v0\nv_lshl_add_u32 v{T+2}, v{T+3}, 2, v{T+2}")
    A(f"v_mul_f32 v{ACC}, v{ACC}, v{T}\nv_cvt_pk_bf16_f32 v{ACC}, v{ACC}, v{ACC}")
    A(f"ds_write_b32 v{T+2}, v{ACC} offset:{L_O}")
    A("LA_ogot:")
    A("s_waitcnt lgkmcnt(0)\ns_barrier")
    for j in range(a_wo_done, 8): w2_load(j)
    stamp(8)
    stage3(AF)
    stamp(9)
    write_stamps(10)
    A("s_endpgm")

    V.next = base_role
    W1 = v("W1b", 64); AF = v("AFb", 64); VXS = v("VXS"); VXG = v("VXG"); VFG = v("VFG")
    hiB = V.next
    A("L_roleB:")
    if mapping == "mixed":
        A(f"s_sub_u32 s{s1}, s{s1}, 16\ns_mul_i32 s{sPROD}, s{s0}, 14\ns_add_u32 s{sPROD}, s{sPROD}, s{s1}")
        A(f"s_lshl_b32 s{sF}, s{s0}, 3\ns_add_u32 s{sF}, s{sF}, s{s1}\ns_cmp_lt_u32 s{s1}, 8\ns_cselect_b32 s{sF}, s{sF}, -1")
    else:
        A(f"s_cmp_ge_u32 s{s1}, 28\ns_cbranch_scc1 L_end")
        A(f"s_lshr_b32 s{s0}, s{s0}, 1\ns_mul_i32 s{sPROD}, s{s0}, 28\ns_add_u32 s{sPROD}, s{sPROD}, s{s1}")
        A(f"s_lshl_b32 s{sF}, s{s0}, 4\ns_add_u32 s{sF}, s{sF}, s{s1}\ns_cmp_lt_u32 s{s1}, 16\ns_cselect_b32 s{sF}, s{sF}, -1")
    A(f"s_lshr_b32 s{sG}, s{sPROD}, 1\ns_and_b32 s{sS}, s{sPROD}, 1")
    A(f"s_lshl_b32 s{s2}, s3, 7\nv_lshrrev_b32 v{T}, 3, v0\nv_lshl_add_u32 v{T}, v{T}, 4, s{s2}\nv_lshlrev_b32 v{VXO}, 1, v{T}")
    A(f"s_lshl_b32 s{s2}, s{sG}, 7\nv_and_b32 v{T+1}, 7, v0\nv_lshlrev_b32 v{T+1}, 4, v{T+1}\nv_mul_u32_u24 v{T}, 7168, v{T}\nv_add3_u32 v{VW1}, v{T}, v{T+1}, s{s2}")
    A(f"v_lshlrev_b32 v{T+2}, 5, v0")
    for j in range(16): A(f"s_mov_b32 s{sT1+j}, {j*7168}")
    A(f"s_cmp_eq_u32 s{sS}, 0")
    A("s_waitcnt lgkmcnt(0)")
    A(f"s_load_dword s{sE}, s[26:27], 0")
    A(f"s_cselect_b32 s{SRD_W1}, s16, s18\ns_cselect_b32 s{SRD_W1+1}, s17, s19\ns_mov_b32 s{SRD_W1+2}, 7340032\ns_mov_b32 s{SRD_W1+3}, 0x20000")
    build_srd(SRD_X, 4, 2048)
    A(f"buffer_load_dwordx4 {vr(XS,4)}, v{T+2}, {srd(SRD_X)}, 0 offen\nbuffer_load_dwordx4 {vr(XS+4,4)}, v{T+2}, {srd(SRD_X)}, 0 offen offset:16")
    A(f"buffer_load_dwordx4 {vr(XO,4)}, v{VXO}, {srd(SRD_X)}, 0 offen\nbuffer_load_dwordx4 {vr(XO+4,4)}, v{VXO}, {srd(SRD_X)}, 0 offen offset:16")
    A(f"s_lshl_b32 s{s2}, s{sF}, 5\nv_and_b32 v{T+3}, 15, v0\nv_lshl_add_u32 v{T+3}, v{T+3}, 1, s{s2}")
    A(f"buffer_load_ushort v{XF}, v{T+3}, {srd(SRD_X)}, 0 offen")
    nb_total = 16 + b_down_early
    def b_load(n):
        if n < 16: A(f"buffer_load_dwordx4 {vr(W1+4*n,4)}, v{VW1}, {srd(SRD_W1)}, s{sT1+n} offen {pol}")
        else: w2_load(n - 16)
    for n in range(b_win): b_load(n)
    build_srd(SRD_W2, 20, 7340032); build_srd(SRD_WS, 26, 268435456); build_srd(SRD_OUT, 22, 2048)
    stamp(0)
    A(f"s_lshl_b32 s{s0}, s{sPROD}, 5")
    w2_addr(s0)
    A(f"v_and_b32 v{T}, 15, v0\nv_lshlrev_b32 v{T}, 3, v{T}")
    A(f"s_lshl_b32 s{s2}, s{sPROD}, 7\ns_add_u32 s{s2}, s{s2}, {XBASE}\nv_add_u32 v{VXG}, s{s2}, v{T}")
    A(f"s_xor_b32 s{s2}, s{sPROD}, 1\ns_lshl_b32 s{s2}, s{s2}, 7\ns_add_u32 s{s2}, s{s2}, {XBASE}\nv_add_u32 v{VXS}, s{s2}, v{T}")
    A(f"s_lshl_b32 s{s2}, s{sF}, 14\ns_lshl_b32 s{s3}, s3, 11\ns_add_u32 s{s2}, s{s2}, s{s3}\ns_add_u32 s{s2}, s{s2}, {PBASE}\nv_lshl_add_u32 v{VFG}, v0, 4, s{s2}")
    A(f"s_add_u32 s{sPROD}, s{sPROD}, 128")
    pp_addr()
    A(f"s_waitcnt vmcnt({b_win}) lgkmcnt(0)")
    get_tag()
    stamp(1)
    layernorm(16)
    for j in range(16):
        for r in range(4): A(f"v_and_b32 v{AF+4*j+r}, v{XD+j}, v{M+r}")
    partial_to_lds()
    stamp(2)
    issued = b_win
    for j in range(16):
        A(f"s_waitcnt vmcnt({issued-1-j})")
        A(f"v_mfma_f32_16x16x32_bf16 {vr(ACC,4)}, {vr(AF+4*j,4)}, {vr(W1+4*j,4)}, {vr(ACC,4) if j else 0}")
        while issued < nb_total and issued - (j + 1) < b_sched[j + 1]:
            if issued == 16 and stagebar: A("s_barrier")
            b_load(issued); issued += 1
    assert issued == nb_total, (issued, nb_total)
    stamp(3)
    partial_store_lds()
    A("s_waitcnt lgkmcnt(0)\ns_barrier")
    A("s_cmp_lg_u32 s3, 0\ns_cbranch_scc1 LB_hgot")
    reduce16()
    A(f"v_cvt_pk_bf16_f32 v{T}, v{T}, v{T+1}")
    A(f"s_cmp_lg_u32 s{sS}, 0\ns_cbranch_scc1 LB_nogelu")
    A(f"v_lshlrev_b32 v{U}, 16, v{T}\nv_and_b32 v{U+1}, 0xffff0000, v{T}")
    A(f"s_mov_b32 s{s2}, 0x3d372713")
    A(f"v_pk_mul_f32 {vr(U+2,2)}, {vr(U,2)}, {vr(U,2)}")
    A(f"v_fma_f32 v{U+2}, v{U+2}, s{s2}, 1.0\nv_fma_f32 v{U+3}, v{U+3}, s{s2}, 1.0")
    A(f"v_pk_mul_f32 {vr(U+2,2)}, {vr(U+2,2)}, {vr(U,2)}")
    A(f"v_mul_f32 v{U+2}, 0xc0135761, v{U+2}\nv_mul_f32 v{U+3}, 0xc0135761, v{U+3}")
    A(f"v_exp_f32 v{U+2}, v{U+2}\nv_exp_f32 v{U+3}, v{U+3}")
    A(f"v_add_f32 v{U+2}, 1.0, v{U+2}\nv_add_f32 v{U+3}, 1.0, v{U+3}")
    A(f"v_rcp_f32 v{U+2}, v{U+2}\nv_rcp_f32 v{U+3}, v{U+3}")
    A(f"v_pk_mul_f32 {vr(U,2)}, {vr(U,2)}, {vr(U+2,2)}")
    A(f"v_cvt_pk_bf16_f32 v{T}, v{U}, v{U+1}")
    A("LB_nogelu:")
    A(f"v_mov_b32 v{T+1}, s{sTAG}")
    A(f"s_mov_b32 s{s3}, 0xffff\ns_cmp_eq_u32 s{sS}, 0\ns_cselect_b32 s{s2}, 0xffff0000, s{s3}\ns_mov_b32 exec_lo, s{s2}\ns_mov_b32 exec_hi, 0")
    A(f"buffer_store_dwordx2 {vr(T,2)}, v{VXS}, {srd(SRD_WS)}, 0 offen sc1")
    A(f"s_not_b32 exec_lo, s{s2}")
    stamp(4)
    A("LB_xpoll:")
    A(f"buffer_load_dwordx2 {vr(G,2)}, v{VXG}, {srd(SRD_WS)}, 0 offen sc1")
    A("s_waitcnt vmcnt(0)")
    A(f"v_cmp_ne_u32 vcc, s{sTAG}, v{G+1}\ns_cmp_eq_u64 vcc, 0\ns_cbranch_scc1 LB_xok")
    spin_tail("LB_xpoll", None)
    A("LB_xok:")
    stamp(5)
    A(f"v_lshlrev_b32 v{U}, 16, v{T}\nv_and_b32 v{U+1}, 0xffff0000, v{T}\nv_lshlrev_b32 v{U+2}, 16, v{G}\nv_and_b32 v{U+3}, 0xffff0000, v{G}")
    A(f"v_pk_mul_f32 {vr(U,2)}, {vr(U,2)}, {vr(U+2,2)}")
    A(f"v_cvt_pk_bf16_f32 v{U+2}, v{U}, v{U}\nv_cvt_pk_bf16_f32 v{U+3}, v{U+1}, v{U+1}")
    A(f"v_and_b32 v{T+2}, 15, v0\nv_lshlrev_b32 v{T+2}, 3, v{T+2}")
    A(f"ds_write_b64 v{T+2}, {vr(U+2,2)} offset:{L_O}")
    A("s_mov_b64 exec, -1")
    A("LB_hgot:")
    A("s_waitcnt lgkmcnt(0)\ns_barrier")
    for j in range(b_down_early, 8): w2_load(j)
    stamp(6)
    stage3(AF)
    stamp(7)
    A(f"s_cmp_eq_u32 s{sF}, -1\ns_cbranch_scc1 LB_done")
    A(f"s_cmp_eq_u32 s3, 7\ns_cselect_b32 s{s1}, 0, 1024")
    A(f"s_mov_b32 s{s2}, 0x0c0c0400\ns_mov_b32 s{s3}, 0x04000c0c")
    A("LB_fpoll:")
    A(f"buffer_load_dwordx4 {vr(G,4)}, v{VFG}, {srd(SRD_WS)}, 0 offen sc1")
    A(f"buffer_load_dwordx4 {vr(G+4,4)}, v{VFG}, {srd(SRD_WS)}, s{s1} offen sc1")
    A("s_waitcnt vmcnt(0)")
    for u in range(2):
        A(f"v_perm_b32 v{T+2*u}, v{G+4*u+1}, v{G+4*u}, s{s2}\nv_perm_b32 v{T+2*u+1}, v{G+4*u+3}, v{G+4*u+2}, s{s3}\nv_or_b32 v{T+2*u}, v{T+2*u}, v{T+2*u+1}")
    A(f"v_cmp_ne_u32 vcc, s{sTAG}, v{T}\nv_cmp_ne_u32 s[94:95], s{sTAG}, v{T+2}\ns_or_b64 s[94:95], s[94:95], vcc\ns_cbranch_scc0 LB_fok")
    spin_tail("LB_fpoll", None)
    A("LB_fok:")
    stamp(8)
    for r in range(8): A(f"v_and_b32 v{G+r}, s{sMSK}, v{G+r}")
    A("s_cmp_eq_u32 s3, 7\ns_cbranch_scc1 LB_f1")
    A(f"v_pk_add_f32 {vr(G,2)}, {vr(G,2)}, {vr(G+4,2)}\nv_pk_add_f32 {vr(G+2,2)}, {vr(G+2,2)}, {vr(G+6,2)}")
    A("LB_f1:")
    for c in ("row_ror:4", "row_ror:8"):
        for r in range(4): A(f"v_add_f32_dpp v{G+r}, v{G+r}, v{G+r} {c} row_mask:0xf bank_mask:0xf")
    A(f"v_permlane16_swap_b32 v{G}, v{G+1}\nv_permlane16_swap_b32 v{G+2}, v{G+3}")
    A(f"v_add_f32 v{G}, v{G}, v{G+1}\nv_add_f32 v{G+2}, v{G+2}, v{G+3}")
    A(f"v_permlane32_swap_b32 v{G}, v{G+2}\nv_add_f32 v{G}, v{G}, v{G+2}")
    A(f"v_and_b32 v{T}, 3, v0\nv_lshlrev_b32 v{T}, 7, v{T}\nv_lshrrev_b32 v{T+1}, 4, v0\nv_lshl_add_u32 v{T}, v{T+1}, 5, v{T}\ns_lshl_b32 s{s2}, s3, 2\nv_add_u32 v{T}, s{s2}, v{T}")
    A("s_mov_b32 exec_lo, 0x000f000f\ns_mov_b32 exec_hi, 0x000f000f")
    A(f"ds_write_b32 v{T}, v{G} offset:{L_F}")
    A("s_mov_b64 exec, -1")
    A("s_waitcnt lgkmcnt(0)\ns_barrier")
    A("s_cmp_lg_u32 s3, 0\ns_cbranch_scc1 LB_done")
    A(f"v_and_b32 v{T}, 15, v0\nv_lshlrev_b32 v{T+1}, 5, v{T}")
    A(f"ds_read_b128 {vr(G,4)}, v{T+1} offset:{L_F}\nds_read_b128 {vr(G+4,4)}, v{T+1} offset:{L_F+16}")
    A(f"s_lshl_b32 s{s2}, s{sF}, 5\nv_lshl_add_u32 v{T}, v{T}, 1, s{s2}\nv_lshlrev_b32 v{XF}, 16, v{XF}")
    A("s_waitcnt lgkmcnt(0)")
    A(f"v_pk_add_f32 {vr(G,2)}, {vr(G,2)}, {vr(G+2,2)}\nv_pk_add_f32 {vr(G+4,2)}, {vr(G+4,2)}, {vr(G+6,2)}")
    A(f"v_add_f32 v{G}, v{G}, v{G+1}\nv_add_f32 v{G+4}, v{G+4}, v{G+5}")
    A(f"v_cvt_pk_bf16_f32 v{G}, v{G}, v{G+4}")
    A(f"v_lshlrev_b32 v{G+1}, 16, v{G}\nv_and_b32 v{G+2}, 0xffff0000, v{G}")
    A(f"v_add_f32 v{G+1}, v{XF}, v{G+1}")
    rbf(G+1, f"v{G+1}")
    A(f"v_add_f32 v{G+1}, v{G+1}, v{G+2}\nv_cvt_pk_bf16_f32 v{G+1}, v{G+1}, v{G+1}")
    A("s_mov_b32 exec_lo, 0xffff\ns_mov_b32 exec_hi, 0")
    A(f"buffer_store_short v{G+1}, v{T}, {srd(SRD_OUT)}, 0 offen")
    A(f"s_cmp_lg_u32 s{sF}, 0\ns_cbranch_scc1 LB_noep")
    A(f"s_mov_b32 exec_lo, 1\nv_mov_b32 v{T+2}, 0\nv_mov_b32 v{T+3}, s{sE}")
    A(f"buffer_store_dword v{T+3}, v{T+2}, {srd(SRD_WS)}, 0 offen sc1")
    A("LB_noep:")
    A("s_mov_b64 exec, -1")
    A("LB_done:")
    if diagpad:
        A(f"LB_pad:\ns_memrealtime s[4:5]\ns_waitcnt lgkmcnt(0)\ns_sub_u32 s4, s4, s100\ns_cmp_lt_u32 s4, {diagpad*100}\ns_cbranch_scc1 LB_pad")
    stamp(9)
    write_stamps(10)
    A("L_end:")
    A("s_endpgm")

    body, nins = fix_hazards(L)
    nv = max(hiA, hiB)
    acc = (nv + 3) // 4 * 4
    head = [l for l in open(f"cdna_kernels/{NAME}.s.ref").read().split("\n") if l.startswith(";") and "@launch" not in l and "Override" not in l and "grid=ceil" not in l]
    out = "\n".join(head) + f"\n; @launch grid=(256,1,1) block=(512,1,1) lds={LDS_BYTES}\n"
    out += f'.amdgcn_target "amdgcn-amd-amdhsa--gfx950"\n.text\n.globl {NAME}_kernel\n.p2align 8\n.type {NAME}_kernel,@function\n{NAME}_kernel:\n'
    out += "\n".join(("" if l.endswith(":") else "    ") + l for l in body) + "\n"
    out += f""".section .rodata,"a"
.p2align 6
.amdhsa_kernel {NAME}_kernel
  .amdhsa_next_free_vgpr {nv}
  .amdhsa_next_free_sgpr 102
  .amdhsa_accum_offset {acc}
  .amdhsa_group_segment_fixed_size 0
  .amdhsa_kernarg_size 96
  .amdhsa_user_sgpr_count 2
  .amdhsa_user_sgpr_kernarg_segment_ptr 1
  .amdhsa_system_sgpr_workgroup_id_x 1
  .amdhsa_float_denorm_mode_32 3
.end_amdhsa_kernel
"""
    return out

if __name__ == "__main__":
    kw = eval("dict(" + (sys.argv[2] if len(sys.argv) > 2 else "") + ")")
    txt = gen(**kw)
    open(sys.argv[1], "w").write(txt)
```

```python
import sys
from asmdsl import fix_hazards, Regs

NAME = "parallel_sum__sliding_block_cached__geglu_ffn__decode"
QBASE = 0x10000
OBASE = 0x40000
XBASE = 0xC0000
PBASE = 0x100000
TSBASE = 0x300000
DELTA = 0x400000
L_R = 0; L_Q = 4096; L_P = 6656; L_M = 9216; L_O = 9280; L_F = 9472; L_K = 12288; L_V = 45056

def gen(debug=False, pol="nt", a_win=4, a_kvwin=4, a_pollwait=2, a_wo=(2, 2, 1, 1, 0, 2), b_sched=(3,) * 17, b_down=(3, 5),
        owave=7, spin=2000000, limit=48, diagpad=0, apar=0, lds=83968, mapping="split", local=True, xbar=True, codepf=False, only=None, clk="s_memrealtime", amp=None):
    if amp: diagpad = 30
    L = []
    def A(s):
        for x in s.split("\n"):
            x = x.strip()
            if x: L.append(x)
    def stamp(k):
        if debug: A(f"{clk} s[{4+2*k}:{5+2*k}]")
    assert sum(a_wo) == 8 and sum(b_down) == 8
    V = Regs("v", 1, 256)
    v = lambda name, n=1: V.alloc(name, n)
    vr = lambda r, n: f"v[{r}:{r+n-1}]"
    T = v("T", 8); M = v("M", 4); TB = v("TB", 4)
    XS = v("XS", 16); XO = XS + 8; U = v("U", 16); XD = v("XD"); AF = v("AF", 8); VOR = v("VOR")
    MB = v("MB", 2); SD = v("SD", 2); RI = v("RI", 2); ACC = v("ACC", 4); PT = v("PT", 4)
    W2 = v("W2", 32); VW1 = v("VW1"); VW2 = v("VW2"); VXO = v("VXO"); VPP = v("VPP"); XF = v("XF"); VRW = v("VRW"); SL = v("SL"); CH = v("CH")
    G = XS
    base_role = V.next
    SRD_W1, SRD_W2, SRD_K, SRD_V, SRD_WS, SRD_X, SRD_OUT = 28, 32, 36, 40, 44, 48, 52
    sE, sTAG, sG, sS, sPROD, sF = 56, 57, 58, 59, 60, 61
    sT1 = 62; sT2 = 78
    s0, s1, s2, s3 = 86, 87, 88, 89
    sPATH, sRND, sCNT, sMSK = 90, 91, 92, 93
    sDEL = 85
    srd = lambda r: f"s[{r}:{r+3}]"

    if debug or diagpad: A(f"{clk} s[100:101]")
    A("s_load_dwordx16 s[4:19], s[0:1], 0")
    A("s_load_dwordx8 s[20:27], s[0:1], 64")
    A("v_lshrrev_b32 v1, 6, v0\nv_and_b32 v0, 63, v0")
    A("s_cmp_ge_u32 s2, 256\ns_cbranch_scc1 L_end")
    A("v_readfirstlane_b32 s3, v1")
    A(f"v_lshrrev_b32 v{SL}, 4, v0\nv_and_b32 v{CH}, 15, v0\nv_lshlrev_b32 v{CH}, 4, v{CH}\nv_lshlrev_b32 v{T+2}, 5, v0")
    A(f"s_bfe_u32 s{sG}, s2, 0x20001\ns_lshr_b32 s{sS}, s2, 3")
    A(f"s_bitcmp1_b32 s2, 0\ns_cbranch_scc{1-apar} L_roleB")

    def build_srd(r, p, size):
        A(f"s_mov_b32 s{r}, s{p}\ns_mov_b32 s{r+1}, s{p+1}\ns_mov_b32 s{r+2}, {size}\ns_mov_b32 s{r+3}, 0x20000")
    def pre_srd(r, size): A(f"s_mov_b32 s{r+2}, {size}\ns_mov_b32 s{r+3}, 0x20000")
    def fin_srd(r, p): A(f"s_mov_b64 s[{r}:{r+1}], s[{p}:{p+1}]")
    def masks():
        A(f"v_and_b32 v{T}, 1, v0\nv_lshlrev_b32 v{T}, 4, v{T}\nv_mov_b32 v{T+1}, 0xffff\nv_lshlrev_b32 v{T+1}, v{T}, v{T+1}")
        A(f"v_bfe_u32 v{T+2}, v0, 1, 2")
        for r in range(4): A(f"v_cmp_eq_u32 s[{94+2*r}:{95+2*r}], {r}, v{T+2}") if r < 3 else A(f"v_cmp_eq_u32 vcc, 3, v{T+2}")
        for r in range(3): A(f"v_cndmask_b32 v{M+r}, 0, v{T+1}, s[{94+2*r}:{95+2*r}]")
        A(f"v_cndmask_b32 v{M+3}, 0, v{T+1}, vcc")
        for j in range(7): A(f"s_mov_b32 s{sT2+j}, {(j+1)*8192}")
        A(f"v_and_b32 v{T}, 7, v0\nv_lshlrev_b32 v{T}, 4, v{T}\nv_lshl_add_u32 v{VOR}, v{SL}, 2, v{T}")
        A(f"s_mov_b32 s{sDEL}, {DELTA}")
        A(f"s_lshl_b32 s{s2}, s3, 9\nv_lshlrev_b32 v{T}, 1, v{CH}\nv_lshl_add_u32 v{T}, v{SL}, 4, v{T}\nv_add_u32 v{VRW}, s{s2}, v{T}")
    def so2(j): return "0" if j == 0 else f"s{sT2+j-1}"

    def wave_sum(r):
        for c in ("row_shr:1", "row_shr:2", "row_shr:4", "row_shr:8"):
            A(f"v_add_f32_dpp v{r}, v{r}, v{r} {c} row_mask:0xf bank_mask:0xf bound_ctrl:0")
        A(f"v_add_f32_dpp v{r}, v{r}, v{r} row_bcast:15 row_mask:0xa bank_mask:0xf")
        A(f"v_add_f32_dpp v{r}, v{r}, v{r} row_bcast:31 row_mask:0xc bank_mask:0xf")
    def rbf(dst, src):
        A(f"v_cvt_pk_bf16_f32 v{dst}, {src}, {src}\nv_and_b32 v{dst}, 0xffff0000, v{dst}")
    def layernorm(nown):
        for k in range(8):
            A(f"v_lshlrev_b32 v{U+2*k}, 16, v{XS+k}\nv_and_b32 v{U+2*k+1}, 0xffff0000, v{XS+k}")
        A(f"v_pk_add_f32 {vr(T,2)}, {vr(U,2)}, {vr(U+2,2)}\nv_pk_add_f32 {vr(T+2,2)}, {vr(U+4,2)}, {vr(U+6,2)}")
        A(f"v_pk_add_f32 {vr(T+4,2)}, {vr(U+8,2)}, {vr(U+10,2)}\nv_pk_add_f32 {vr(T+6,2)}, {vr(U+12,2)}, {vr(U+14,2)}")
        A(f"v_pk_add_f32 {vr(T,2)}, {vr(T,2)}, {vr(T+2,2)}\nv_pk_add_f32 {vr(T+4,2)}, {vr(T+4,2)}, {vr(T+6,2)}")
        A(f"v_pk_add_f32 {vr(T,2)}, {vr(T,2)}, {vr(T+4,2)}\nv_add_f32 v{T}, v{T}, v{T+1}")
        wave_sum(T)
        A(f"v_mul_f32 v{T}, 0x3a800000, v{T}\nv_readlane_b32 s{s2}, v{T}, 63")
        for k in range(8):
            A(f"v_pk_add_f32 {vr(U+2*k,2)}, {vr(U+2*k,2)}, s[{s2}:{s2+1}] op_sel_hi:[1,0] neg_lo:[0,1] neg_hi:[0,1]")
        A(f"v_pk_mul_f32 {vr(T,2)}, {vr(U,2)}, {vr(U,2)}\nv_pk_mul_f32 {vr(T+2,2)}, {vr(U+2,2)}, {vr(U+2,2)}")
        for k in range(2, 8):
            t = T + 2 * (k & 1)
            A(f"v_pk_fma_f32 {vr(t,2)}, {vr(U+2*k,2)}, {vr(U+2*k,2)}, {vr(t,2)}")
        A(f"v_pk_add_f32 {vr(T,2)}, {vr(T,2)}, {vr(T+2,2)}\nv_add_f32 v{T}, v{T}, v{T+1}")
        rbf(MB, f"s{s2}")
        wave_sum(T)
        A(f"v_mul_f32 v{T}, 0x3a800000, v{T}\nv_readlane_b32 s{s2}, v{T}, 63")
        A(f"v_lshlrev_b32 v{U}, 16, v{XO}\nv_sub_f32 v{U}, v{U}, v{MB}")
        rbf(SD, f"s{s2}"); A(f"v_add_f32 v{SD}, 0x3727c5ac, v{SD}"); rbf(SD, f"v{SD}"); A(f"v_sqrt_f32 v{SD}, v{SD}")
        rbf(U, f"v{U}")
        rbf(SD, f"v{SD}"); A(f"v_rcp_f32 v{RI}, v{SD}")
        A(f"v_mul_f32 v{T}, v{U}, v{RI}\nv_fma_f32 v{T+1}, -v{T}, v{SD}, v{U}\nv_fma_f32 v{T}, v{T+1}, v{RI}, v{T}")
        A(f"v_cvt_pk_bf16_f32 v{XD}, v{T}, v{T}")
    def af_build(j):
        for r in range(4): A(f"v_and_b32_dpp v{AF+4*(j&1)+r}, v{XD}, v{M+r} row_newbcast:{j} row_mask:0xf bank_mask:0xf")
    def af(j): return vr(AF+4*(j&1), 4)
    def get_tag():
        A(f"s_add_u32 s{sE}, s{sE}, 1\ns_mul_i32 s{sTAG}, s{sE}, 0x01010101")
        A(f"v_mov_b32 v{TB}, s{sTAG}\nv_lshrrev_b32 v{TB+1}, 8, v{TB}\nv_lshrrev_b32 v{TB+2}, 16, v{TB}\nv_lshrrev_b32 v{TB+3}, 24, v{TB}")
        A(f"s_mov_b32 s{sMSK}, 0xffffff00\ns_mov_b32 s{sCNT}, {spin}")
    def amp_pub():
        if not amp: return
        A(f"s_lshl_b32 s{s2}, s2, 3\ns_add_u32 s{s2}, s{s2}, {TSBASE}\nv_mov_b32 v{T}, s100\nv_mov_b32 v{T+1}, s{sTAG}\nv_mov_b32 v{T+2}, s{s2}")
        A(f"s_mov_b64 exec, 1\nbuffer_store_dwordx2 {vr(T,2)}, v{T+2}, {srd(SRD_WS)}, 0 offen sc1\ns_mov_b64 exec, -1\ns_nop 1")
    def partial_store_lds():
        A("s_mov_b32 exec_hi, 0")
        A(f"ds_write_b128 v{VRW}, {vr(ACC,4)} offset:{L_R}")
        A("s_mov_b32 exec_hi, -1")
    def reduce8():
        A(f"v_lshlrev_b32 v{T+4}, 3, v0")
        for k in range(8): A(f"ds_read_b64 {vr(U+2*k,2)}, v{T+4} offset:{L_R+k*512}")
        A(f"v_mov_b32 v{T+2}, s{sTAG}\nv_mov_b32 v{T+3}, s{sTAG}")
        A(f"s_waitcnt lgkmcnt({0 if debug else 4})")
        A(f"v_pk_add_f32 {vr(U,2)}, {vr(U,2)}, {vr(U+2,2)}\nv_pk_add_f32 {vr(U+4,2)}, {vr(U+4,2)}, {vr(U+6,2)}")
        A("s_waitcnt lgkmcnt(0)")
        A(f"v_pk_add_f32 {vr(U+8,2)}, {vr(U+8,2)}, {vr(U+10,2)}\nv_pk_add_f32 {vr(U+12,2)}, {vr(U+12,2)}, {vr(U+14,2)}")
        A(f"v_pk_add_f32 {vr(U,2)}, {vr(U,2)}, {vr(U+4,2)}\nv_pk_add_f32 {vr(U+8,2)}, {vr(U+8,2)}, {vr(U+12,2)}")
        A(f"v_pk_add_f32 {vr(T,2)}, {vr(U,2)}, {vr(U+8,2)}")
    def publish(data, addr):
        if local: A(f"buffer_store_dwordx4 {vr(data,4)}, v{addr}, {srd(SRD_WS)}, 0 offen")
        A(f"buffer_store_dwordx4 {vr(data,4)}, v{addr}, {srd(SRD_WS)}, s{sDEL} offen sc1")
    npub = 2 if local else 1
    def poll_init():
        A(f"s_mov_b32 s{sPATH}, {0 if local else DELTA}\ns_mov_b32 s{sRND}, 0")
    def poll_tail(lbl):
        if local:
            A(f"s_add_u32 s{sRND}, s{sRND}, 1\ns_cmp_lt_u32 s{sRND}, {limit}\ns_cbranch_scc1 {lbl}\ns_xor_b32 s{sPATH}, s{sPATH}, s{sDEL}")
        A(f"s_sub_u32 s{sCNT}, s{sCNT}, 1\ns_cbranch_scc0 {lbl}\ns_mov_b32 s{sCNT}, 0")
    def w2_addr(srow):
        A(f"s_lshl_b32 s{s2}, s{srow}, 11\ns_lshl_b32 s{s3}, s3, 8\ns_add_u32 s{s2}, s{s2}, s{s3}")
        A(f"v_lshlrev_b32 v{T}, 11, v{SL}\nv_add3_u32 v{VW2}, v{T}, v{CH}, s{s2}")
    w2n = [0]
    def w2_load(n=1):
        for _ in range(n):
            j = w2n[0]; w2n[0] += 1
            A(f"buffer_load_dwordx4 {vr(W2+4*j,4)}, v{VW2}, {srd(SRD_W2)}, {so2(j)} offen {pol}")
    def pp_addr():
        A(f"v_bfe_u32 v{T}, v0, 1, 3\nv_lshlrev_b32 v{T}, 14, v{T}\nv_and_b32 v{T+1}, 1, v0\nv_lshlrev_b32 v{T+1}, 5, v{T+1}\nv_and_b32 v{T+2}, 16, v0")
        A(f"v_add3_u32 v{T}, v{T}, v{T+1}, v{T+2}")
        A(f"s_lshl_b32 s{s2}, s3, 17\ns_lshl_b32 s{s3}, s{sPROD}, 6\ns_add_u32 s{s2}, s{s2}, s{s3}\ns_add_u32 s{s2}, s{s2}, {PBASE}")
        A(f"v_add_u32 v{VPP}, s{s2}, v{T}")
    def stage3():
        assert w2n[0] == 8
        A(f"ds_read_b32 v{XD}, v{VOR} offset:{L_O}")
        A("s_waitcnt lgkmcnt(0)")
        af_build(0)
        for j in range(8):
            if j < 7: af_build(j + 1)
            A(f"s_waitcnt vmcnt({7-j})")
            A(f"v_mfma_f32_16x16x32_bf16 {vr(ACC,4)}, {af(j)}, {vr(W2+4*j,4)}, {vr(ACC,4) if j else 0}")
        A("s_mov_b32 exec_hi, 0")
        for r in range(4): A(f"v_bfi_b32 v{T+r}, s{sMSK}, v{ACC+r}, v{TB+r}")
        A(f"buffer_store_dwordx4 {vr(T,4)}, v{VPP}, {srd(SRD_WS)}, 0 offen sc1")
        A("s_mov_b32 exec_hi, -1")
    def write_stamps(n):
        if not debug: return
        A("s_waitcnt lgkmcnt(0)")
        for k in range(n): A(f"v_writelane_b32 v{T+4}, s{4+2*k}, {k}")
        A(f"v_writelane_b32 v{T+4}, s100, 15")
        A(f"s_lshl_b32 s{s2}, s2, 3\ns_add_u32 s{s2}, s{s2}, s3\ns_lshl_b32 s{s2}, s{s2}, 6\ns_add_u32 s{s2}, s{s2}, {TSBASE}")
        A(f"v_lshlrev_b32 v{T+5}, 2, v0\nv_add_u32 v{T+5}, s{s2}, v{T+5}")
        A("s_mov_b32 exec_lo, 0xffff\ns_mov_b32 exec_hi, 0")
        A(f"buffer_store_dword v{T+4}, v{T+5}, {srd(SRD_WS)}, 0 offen")
        A("s_mov_b64 exec, -1")
    def check4(regs, ok):
        A(f"v_cmp_ne_u32 vcc, s{sTAG}, v{regs[0]}\nv_cmp_ne_u32 s[94:95], s{sTAG}, v{regs[1]}\nv_cmp_ne_u32 s[96:97], s{sTAG}, v{regs[2]}\nv_cmp_ne_u32 s[98:99], s{sTAG}, v{regs[3]}")
        A(f"s_or_b64 s[94:95], s[94:95], vcc\ns_or_b64 s[96:97], s[96:97], s[98:99]\ns_or_b64 s[94:95], s[94:95], s[96:97]\ns_cbranch_scc0 {ok}")

    V.next = base_role
    W1 = v("W1", 32); VF = v("VF", 16); KA = v("KA", 4); VA = v("VA", 2); KR = v("KR", 4); VR_ = v("VR"); QR = v("QR"); PW = v("PW")
    KF = W1; QF = W1 + 16; ONE = v("ONE", 4); LA = v("LA", 4); VQP = v("VQP"); VQS = v("VQS"); VOP = v("VOP"); VOG = v("VOG"); HM = v("HM")
    hiA = V.next
    if only == "B": A("s_endpgm")
    A(f"s_lshr_b32 s{s0}, s{sS}, 3\ns_lshl_b32 s{s0}, s{s0}, 8\ns_lshl_b32 s{s1}, s3, 2\ns_add_u32 s{s0}, s{s0}, s{s1}")
    A(f"s_lshl_b32 s{s1}, s{s0}, 1\nv_and_b32 v{T}, 7, v0\nv_lshlrev_b32 v{T}, 6, v{T}\nv_lshl_add_u32 v{T}, v{SL}, 1, v{T}\nv_add_u32 v{VXO}, s{s1}, v{T}")
    A(f"s_lshl_b32 s{s0}, s{s0}, 13\ns_lshl_b32 s{s1}, s{sG}, 11\ns_add_u32 s{s0}, s{s0}, s{s1}\ns_and_b32 s{s1}, s{sS}, 7\ns_lshl_b32 s{s1}, s{s1}, 8\ns_add_u32 s{s0}, s{s0}, s{s1}")
    A(f"v_lshlrev_b32 v{T}, 13, v{SL}\nv_add3_u32 v{VW1}, v{T}, v{CH}, s{s0}")
    pre_srd(SRD_X, 2048); pre_srd(SRD_W1, 8388608)
    for j in range(1, 8): A(f"s_mov_b32 s{sT1+j}, {j*32*8192}")
    A("s_waitcnt lgkmcnt(0)")
    fin_srd(SRD_X, 4); fin_srd(SRD_W1, 10)
    A(f"buffer_load_dwordx4 {vr(XS,4)}, v{T+2}, {srd(SRD_X)}, 0 offen\nbuffer_load_dwordx4 {vr(XS+4,4)}, v{T+2}, {srd(SRD_X)}, 0 offen offset:16")
    A(f"buffer_load_ushort v{XO}, v{VXO}, {srd(SRD_X)}, 0 offen")
    A(f"s_load_dword s{sE}, s[26:27], 0")
    if xbar: A("s_barrier")
    def a_load(n):
        if n < 8: A(f"buffer_load_dwordx4 {vr(W1+4*n,4)}, v{VW1}, {srd(SRD_W1)}, {'0' if n == 0 else f's{sT1+n}'} offen {pol}")
        elif n < 12:
            if n == 8: A(f"s_lshl_b32 s{s2}, s3, 12\ns_add_u32 m0, s{s2}, {L_K}")
            A(f"buffer_load_dwordx4 v{KA+n-8}, {srd(SRD_K)}, 0 offen offset:{(n-8)*1024} {pol} lds")
        else:
            if n == 12: A(f"s_lshl_b32 s{s2}, s3, 12\ns_add_u32 m0, s{s2}, {L_V}")
            A(f"buffer_load_dwordx4 v{VA+(n-12)//2}, {srd(SRD_V)}, 0 offen offset:{(n-12)*1024} {pol} lds")
    assert a_win <= 8
    for n in range(a_win): a_load(n)
    build_srd(SRD_K, 6, 67108864); build_srd(SRD_V, 8, 67108864); build_srd(SRD_W2, 12, 8388608); build_srd(SRD_WS, 26, 268435456)
    stamp(0)
    A(f"s_lshl_b32 s{s2}, s{sG}, 17\ns_lshl_b32 s{s3}, s{sS}, 12\ns_add_u32 s{s2}, s{s2}, s{s3}\ns_add_u32 s{s2}, s{s2}, {OBASE}")
    A(f"v_lshl_add_u32 v{VOG}, v0, 4, s{s2}")
    A(f"s_lshl_b32 s{s0}, s{sG}, 15\ns_add_u32 s{s0}, s{s0}, {QBASE}\ns_and_b32 s{s1}, s{sS}, 7\ns_lshl_b32 s{s1}, s{s1}, 12\ns_lshr_b32 s{s3}, s{sS}, 3\ns_lshl_b32 s{s3}, s{s3}, 10\ns_add_u32 s{s1}, s{s1}, s{s3}\ns_add_u32 s{s1}, s{s1}, s{s0}")
    A(f"v_lshl_add_u32 v{VQS}, v0, 4, s{s1}")
    A(f"s_lshl_b32 s{s3}, s3, 10\ns_add_u32 s{s2}, s{s2}, s{s3}\ns_cmp_lt_u32 s3, 4\ns_cselect_b32 s{s2}, s{s2}, s{s1}\nv_lshl_add_u32 v{T}, v0, 4, s{s2}")
    A(f"buffer_load_dwordx4 {vr(PT,4)}, v{T}, {srd(SRD_WS)}, 0 offen")
    A(f"s_lshl_b32 s{s3}, s3, 12\ns_add_u32 s{s0}, s{s0}, s{s3}\nv_lshl_add_u32 v{VQP}, v0, 4, s{s0}")
    masks()
    A(f"s_lshl_b32 s{s2}, s{sG}, 24\ns_lshl_b32 s{s3}, s{sS}, 15\ns_add_u32 s{s2}, s{s2}, s{s3}\ns_lshl_b32 s{s3}, s3, 12\ns_add_u32 s{s2}, s{s2}, s{s3}\ns_add_u32 s{s2}, s{s2}, {61440*256}")
    A(f"v_lshlrev_b32 v{T+2}, 8, v{SL}\nv_add_u32 v{T+2}, s{s2}, v{T+2}")
    A(f"v_lshlrev_b32 v{T+3}, 4, v{SL}\nv_xor_b32 v{T+3}, v{T+3}, v{CH}")
    for t in range(4): A(f"v_xor_b32 v{T+4}, {64*t}, v{T+3}\nv_add_u32 v{KA+t}, v{T+4}, v{T+2}")
    A(f"v_lshlrev_b32 v{T+4}, 5, v{SL}\nv_xor_b32 v{T+4}, v{T+4}, v{CH}\nv_add_u32 v{VA}, v{T+4}, v{T+2}")
    A(f"v_xor_b32 v{T+4}, 128, v{T+4}\nv_add_u32 v{VA+1}, v{T+4}, v{T+2}")
    A(f"s_lshl_b32 s{s2}, s3, 12\nv_lshl_add_u32 v{T+4}, v{CH}, 4, s{s2}")
    for ks in range(4): A(f"v_xor_b32 v{T+5}, {64*ks}, v{T+3}\nv_add_u32 v{KR+ks}, v{T+5}, v{T+4}")
    A(f"v_bfe_u32 v{T+4}, v0, 2, 2\nv_lshl_add_u32 v{T+5}, v{SL}, 3, v{T+4}\nv_lshlrev_b32 v{T+5}, 8, v{T+5}")
    A(f"v_and_b32 v{T+6}, 1, v{SL}\nv_lshl_or_b32 v{T+4}, v{T+6}, 2, v{T+4}\nv_xor_b32 v{T+4}, s3, v{T+4}\nv_lshlrev_b32 v{T+4}, 5, v{T+4}")
    A(f"v_and_b32 v{T+6}, 3, v0\nv_lshlrev_b32 v{T+6}, 3, v{T+6}\nv_add3_u32 v{VR_}, v{T+4}, v{T+5}, v{T+6}\nv_add_u32 v{VR_}, {L_V}, v{VR_}")
    A(f"v_and_b32 v{T+4}, 7, v0\nv_lshlrev_b32 v{HM}, 2, v{T+4}\nv_mul_u32_u24 v{T+4}, 288, v{T+4}\nv_lshl_add_u32 v{QR}, v{SL}, 4, v{T+4}")
    A(f"s_lshl_b32 s{s2}, s3, 5\nv_lshl_add_u32 v{PW}, v{SL}, 3, v{T+4}\nv_add_u32 v{PW}, s{s2}, v{PW}")
    A(f"s_lshl_b32 s{s2}, s{sG}, 17\ns_lshr_b32 s{s3}, s3, 1\ns_lshl_b32 s{s3}, s{s3}, 12\ns_add_u32 s{s2}, s{s2}, s{s3}")
    A(f"s_lshl_b32 s{s3}, s{sS}, 7\ns_add_u32 s{s2}, s{s2}, s{s3}\ns_and_b32 s{s3}, s3, 1\ns_lshl_b32 s{s3}, s{s3}, 6\ns_add_u32 s{s2}, s{s2}, s{s3}\ns_add_u32 s{s2}, s{s2}, {OBASE}")
    A(f"v_lshlrev_b32 v{T+4}, 12, v{HM}\nv_lshlrev_b32 v{T+5}, 4, v{SL}\nv_add3_u32 v{VOP}, v{T+4}, v{T+5}, s{s2}")
    A(f"s_lshl_b32 s{sPROD}, s{sG}, 5\ns_add_u32 s{sPROD}, s{sPROD}, s{sS}\ns_lshl_b32 s{s0}, s{sPROD}, 5")
    w2_addr(s0); pp_addr()
    for r in range(4): A(f"v_mov_b32 v{ONE+r}, 0x3f803f80")
    A(f"v_mov_b32 v{T}, 0xff800000\nds_write_b32 v{HM}, v{T} offset:{L_M}")
    A(f"s_waitcnt vmcnt({a_win+1}) lgkmcnt(0)")
    get_tag()
    stamp(1)
    layernorm(8)
    af_build(0)
    stamp(2)
    seq = list(range(a_win)) + ["pt"]
    issued = a_win
    barred = False
    for j in range(8):
        if j < 7: af_build(j + 1)
        A(f"s_waitcnt vmcnt({len(seq)-1-seq.index(j)})")
        A(f"v_mfma_f32_16x16x32_bf16 {vr(ACC,4)}, {af(j)}, {vr(W1+4*j,4)}, {vr(ACC,4) if j else 0}")
        while issued < 16 and issued - (j + 1) < (a_win if issued < 8 else a_kvwin):
            if issued >= 8 and not barred: A("s_barrier"); barred = True
            a_load(issued); seq.append(issued); issued += 1
    a_rest = issued
    stamp(3)
    partial_store_lds()
    A("s_waitcnt lgkmcnt(0)\ns_barrier")
    A("s_cmp_lg_u32 s3, 0\ns_cbranch_scc1 LA_nopub")
    amp_pub()
    reduce8()
    publish(T, VQS)
    A("LA_nopub:")
    stamp(4)
    for n in range(a_rest, 16):
        A(f"s_waitcnt vmcnt({a_kvwin-1})"); a_load(n)
    A("s_waitcnt vmcnt(4)")
    for ks in range(4): A(f"ds_read_b128 {vr(KF+4*ks,4)}, v{KR+ks} offset:{L_K}")
    poll_init()
    A(f"s_waitcnt vmcnt({a_pollwait})")
    def q_loads():
        for u in range(4): A(f"buffer_load_dwordx4 {vr(G+4*u,4)}, v{VQP}, {srd(SRD_WS)}, s{sPATH} offen offset:{u*1024} sc1")
    def q_check(ok):
        check4([G+2, G+6, G+10, G+14], ok)
    w2n[0] = 0
    if a_wo[0]:
        q_loads(); w2_load(a_wo[0])
        A(f"s_waitcnt vmcnt({a_wo[0]})")
        q_check("LA_qok")
    A("LA_qpoll:")
    q_loads()
    A("s_waitcnt vmcnt(0)")
    q_check("LA_qok")
    poll_tail("LA_qpoll")
    A("LA_qok:")
    stamp(5)
    A(f"v_pk_add_f32 {vr(G,2)}, {vr(G,2)}, {vr(G+4,2)}\nv_pk_add_f32 {vr(G+8,2)}, {vr(G+8,2)}, {vr(G+12,2)}")
    A(f"s_mul_i32 s{s2}, s3, 288\nv_lshl_add_u32 v{T}, v0, 2, s{s2}")
    A(f"v_pk_add_f32 {vr(G,2)}, {vr(G,2)}, {vr(G+8,2)}\nv_cvt_pk_bf16_f32 v{G}, v{G}, v{G+1}")
    A(f"ds_write_b32 v{T}, v{G} offset:{L_Q}")
    w2_load(a_wo[1])
    A("s_waitcnt lgkmcnt(0)\ns_barrier")
    for ks in range(4): A(f"ds_read_b128 {vr(QF+4*ks,4)}, v{QR} offset:{L_Q+64*ks}")
    for ks in range(4):
        A(f"s_waitcnt lgkmcnt({0 if debug else 3-ks})")
        A(f"v_mfma_f32_16x16x32_bf16 {vr(ACC,4)}, {vr(KF+4*ks,4)}, {vr(QF+4*ks,4)}, {vr(ACC,4) if ks else 0}")
    for ks in range(4):
        for hh in range(2): A(f"ds_read_b64_tr_b16 {vr(VF+4*ks+2*hh,2)}, v{VR_} offset:{ks*8192+hh*1024}")
    A(f"s_mov_b32 s{s2}, 0x3db504f3")
    A(f"v_cvt_pk_bf16_f32 v{T}, v{ACC}, v{ACC+1}\nv_cvt_pk_bf16_f32 v{T+1}, v{ACC+2}, v{ACC+3}")
    A(f"v_lshlrev_b32 v{U}, 16, v{T}\nv_and_b32 v{U+1}, 0xffff0000, v{T}\nv_lshlrev_b32 v{U+2}, 16, v{T+1}\nv_and_b32 v{U+3}, 0xffff0000, v{T+1}")
    A(f"v_pk_mul_f32 {vr(U,2)}, {vr(U,2)}, s[{s2}:{s2+1}] op_sel_hi:[1,0]\nv_pk_mul_f32 {vr(U+2,2)}, {vr(U+2,2)}, s[{s2}:{s2+1}] op_sel_hi:[1,0]")
    A(f"v_cvt_pk_bf16_f32 v{T}, v{U}, v{U+1}\nv_cvt_pk_bf16_f32 v{T+1}, v{U+2}, v{U+3}")
    A(f"v_lshlrev_b32 v{U}, 16, v{T}\nv_and_b32 v{U+1}, 0xffff0000, v{T}\nv_lshlrev_b32 v{U+2}, 16, v{T+1}\nv_and_b32 v{U+3}, 0xffff0000, v{T+1}")
    A(f"v_max3_f32 v{T}, v{U}, v{U+1}, v{U+2}\nv_max_f32 v{T}, v{T}, v{U+3}")
    A(f"ds_max_f32 v{HM}, v{T} offset:{L_M}")
    w2_load(a_wo[2])
    A("s_waitcnt lgkmcnt(0)\ns_barrier")
    A(f"ds_read_b32 v{MB}, v{HM} offset:{L_M}")
    A(f"s_mov_b32 s{s2}, 0x3fb8aa3b")
    A("s_waitcnt lgkmcnt(0)")
    A(f"v_pk_add_f32 {vr(U,2)}, {vr(U,2)}, {vr(MB,2)} op_sel_hi:[1,0] neg_lo:[0,1] neg_hi:[0,1]\nv_pk_add_f32 {vr(U+2,2)}, {vr(U+2,2)}, {vr(MB,2)} op_sel_hi:[1,0] neg_lo:[0,1] neg_hi:[0,1]")
    A(f"v_pk_mul_f32 {vr(U,2)}, {vr(U,2)}, s[{s2}:{s2+1}] op_sel_hi:[1,0]\nv_pk_mul_f32 {vr(U+2,2)}, {vr(U+2,2)}, s[{s2}:{s2+1}] op_sel_hi:[1,0]")
    for r in range(4): A(f"v_exp_f32 v{U+r}, v{U+r}")
    A(f"v_cvt_pk_bf16_f32 v{T}, v{U}, v{U+1}\nv_cvt_pk_bf16_f32 v{T+1}, v{U+2}, v{U+3}")
    A(f"ds_write_b64 v{PW}, {vr(T,2)} offset:{L_P}")
    A(f"v_mul_f32 v{MB}, s{s2}, v{MB}")
    w2_load(a_wo[3])
    A("s_waitcnt lgkmcnt(0)\ns_barrier")
    for ks in range(4): A(f"ds_read_b128 {vr(QF+4*ks,4)}, v{QR} offset:{L_P+64*ks}")
    for ks in range(4):
        A(f"s_waitcnt lgkmcnt({0 if debug else 3-ks})")
        A(f"v_mfma_f32_16x16x32_bf16 {vr(LA,4)}, {vr(ONE,4)}, {vr(QF+4*ks,4)}, {vr(LA,4) if ks else 0}")
        A(f"v_mfma_f32_16x16x32_bf16 {vr(ACC,4)}, {vr(VF+4*ks,4)}, {vr(QF+4*ks,4)}, {vr(ACC,4) if ks else 0}")
    poll_init()
    A(f"v_mov_b32 v{T+3}, s{sTAG}")
    A(f"v_rcp_f32 v{RI}, v{LA}\nv_log_f32 v{T+2}, v{LA}")
    A("s_mov_b32 exec_lo, 0x00ff00ff\ns_mov_b32 exec_hi, 0x00ff00ff")
    A(f"v_add_f32 v{T+2}, v{T+2}, v{MB}")
    A(f"v_pk_mul_f32 {vr(ACC,2)}, {vr(ACC,2)}, {vr(RI,2)} op_sel_hi:[1,0]\nv_pk_mul_f32 {vr(ACC+2,2)}, {vr(ACC+2,2)}, {vr(RI,2)} op_sel_hi:[1,0]")
    A(f"v_cvt_pk_bf16_f32 v{T}, v{ACC}, v{ACC+1}\nv_cvt_pk_bf16_f32 v{T+1}, v{ACC+2}, v{ACC+3}")
    publish(T, VOP)
    A("s_mov_b64 exec, -1")
    stamp(6)
    A(f"s_cmp_eq_u32 s3, {owave}\ns_cbranch_scc1 LA_opoll")
    keep = w2n[0]
    w2_load(a_wo[4])
    A("s_branch LA_ogot")
    A("LA_opoll:")
    for u in range(4): A(f"buffer_load_dwordx4 {vr(G+4*u,4)}, v{VOG}, {srd(SRD_WS)}, s{sPATH} offen offset:{u*1024} sc1")
    A("s_waitcnt vmcnt(0)")
    check4([G+3, G+7, G+11, G+15], "LA_ook")
    poll_tail("LA_opoll")
    A("LA_ook:")
    w2n[0] = keep
    w2_load(a_wo[4])
    stamp(7)
    A(f"v_max3_f32 v{T}, v{G+2}, v{G+6}, v{G+10}\nv_max_f32 v{T}, v{T}, v{G+14}")
    for u in range(2):
        A(f"v_lshlrev_b32 v{U+4*u}, 16, v{G+4*u}\nv_and_b32 v{U+4*u+1}, 0xffff0000, v{G+4*u}")
    A(f"v_max_f32_dpp v{T}, v{T}, v{T} row_ror:8 row_mask:0xf bank_mask:0xf")
    for u in range(2):
        A(f"v_lshlrev_b32 v{U+4*u+2}, 16, v{G+4*u+1}")
    A(f"v_mov_b32 v{T+1}, v{T}")
    for u in range(2):
        A(f"v_and_b32 v{U+4*u+3}, 0xffff0000, v{G+4*u+1}")
    A(f"v_permlane16_swap_b32 v{T}, v{T+1}\nv_max_f32 v{T}, v{T}, v{T+1}\nv_mov_b32 v{T+1}, v{T}")
    for u in range(2, 4):
        A(f"v_lshlrev_b32 v{U+4*u}, 16, v{G+4*u}")
    A(f"v_permlane32_swap_b32 v{T}, v{T+1}\nv_max_f32 v{T}, v{T}, v{T+1}")
    for u in range(4): A(f"v_sub_f32 v{G+4*u+2}, v{G+4*u+2}, v{T}")
    for u in range(4): A(f"v_exp_f32 v{G+4*u+2}, v{G+4*u+2}")
    for u in range(2, 4):
        A(f"v_and_b32 v{U+4*u+1}, 0xffff0000, v{G+4*u}\nv_lshlrev_b32 v{U+4*u+2}, 16, v{G+4*u+1}\nv_and_b32 v{U+4*u+3}, 0xffff0000, v{G+4*u+1}")
    A(f"v_pk_mul_f32 {vr(ACC,2)}, {vr(U,2)}, {vr(G+2,2)} op_sel_hi:[1,0]\nv_pk_mul_f32 {vr(ACC+2,2)}, {vr(U+2,2)}, {vr(G+2,2)} op_sel_hi:[1,0]")
    A(f"v_add_f32 v{T}, v{G+2}, v{G+6}\nv_add_f32 v{T+1}, v{G+10}, v{G+14}")
    for u in range(1, 4):
        A(f"v_pk_fma_f32 {vr(ACC,2)}, {vr(U+4*u,2)}, {vr(G+4*u+2,2)}, {vr(ACC,2)} op_sel_hi:[1,0,1]\nv_pk_fma_f32 {vr(ACC+2,2)}, {vr(U+4*u+2,2)}, {vr(G+4*u+2,2)}, {vr(ACC+2,2)} op_sel_hi:[1,0,1]")
        if u == 1: A(f"v_add_f32 v{T}, v{T}, v{T+1}")
    A(f"v_add_f32_dpp v{T}, v{T}, v{T} row_ror:8 row_mask:0xf bank_mask:0xf")
    for r in range(4): A(f"v_add_f32_dpp v{ACC+r}, v{ACC+r}, v{ACC+r} row_ror:8 row_mask:0xf bank_mask:0xf")
    A(f"v_mov_b32 v{T+1}, v{T}\nv_and_b32 v{T+2}, 7, v0\nv_lshlrev_b32 v{T+2}, 4, v{T+2}")
    A(f"v_permlane16_swap_b32 v{T}, v{T+1}\nv_permlane16_swap_b32 v{ACC}, v{ACC+1}\nv_permlane16_swap_b32 v{ACC+2}, v{ACC+3}")
    A(f"v_add_f32 v{T}, v{T}, v{T+1}\nv_add_f32 v{ACC}, v{ACC}, v{ACC+1}\nv_add_f32 v{ACC+2}, v{ACC+2}, v{ACC+3}\nv_mov_b32 v{T+1}, v{T}")
    A(f"v_lshl_add_u32 v{T+2}, v{SL}, 2, v{T+2}")
    A(f"v_permlane32_swap_b32 v{ACC}, v{ACC+2}\nv_permlane32_swap_b32 v{T}, v{T+1}")
    A(f"v_add_f32 v{T}, v{T}, v{T+1}\nv_add_f32 v{ACC}, v{ACC}, v{ACC+2}\nv_rcp_f32 v{T}, v{T}")
    A(f"v_mul_f32 v{ACC}, v{ACC}, v{T}\nv_cvt_pk_bf16_f32 v{ACC}, v{ACC}, v{ACC}")
    A(f"ds_write_b32 v{T+2}, v{ACC} offset:{L_O}")
    A("LA_ogot:")
    A("s_waitcnt lgkmcnt(0)\ns_barrier")
    w2_load(a_wo[5])
    stamp(8)
    stage3()
    stamp(9)
    write_stamps(10)
    if only == "A":
        A(f"s_cmp_lg_u32 s2, 0\ns_cbranch_scc1 LA_x\nv_mov_b32 v{T+2}, 0\nv_mov_b32 v{T+3}, s{sE}\nbuffer_store_dword v{T+3}, v{T+2}, {srd(SRD_WS)}, 0 offen sc1\nLA_x:")
    A("s_endpgm")

    V.next = base_role
    W1 = v("W1b", 64); VXS = v("VXS"); VXG = v("VXG"); VFG = v("VFG")
    hiB = V.next
    b_win = b_sched[0]
    A("L_roleB:")
    A(f"s_cmp_ge_u32 s{sS}, {0 if only == 'A' else 28}\ns_cbranch_scc1 L_end")
    A(f"s_mul_i32 s{sPROD}, s{sG}, 28\ns_add_u32 s{sPROD}, s{sPROD}, s{sS}")
    A(f"s_and_b32 s{s0}, s{sS}, 1\ns_lshl_b32 s{s0}, s{s0}, 9\ns_lshl_b32 s{s1}, s3, 2\ns_add_u32 s{s0}, s{s0}, s{s1}")
    A(f"s_lshl_b32 s{s1}, s{s0}, 1\nv_lshlrev_b32 v{T}, 2, v{CH}\nv_lshl_add_u32 v{T}, v{SL}, 1, v{T}\nv_add_u32 v{VXO}, s{s1}, v{T}")
    A(f"s_mul_i32 s{s0}, s{s0}, 7168\ns_lshr_b32 s{s1}, s{sPROD}, 2\ns_lshl_b32 s{s1}, s{s1}, 8\ns_add_u32 s{s0}, s{s0}, s{s1}")
    A(f"v_mul_u32_u24 v{T}, 7168, v{SL}\nv_add3_u32 v{VW1}, v{T}, v{CH}, s{s0}")
    pre_srd(SRD_X, 2048); pre_srd(SRD_W1, 7340032)
    for j in range(1, 16): A(f"s_mov_b32 s{sT1+j}, {j*32*7168}")
    A(f"s_bitcmp0_b32 s{sS}, 1")
    A("s_waitcnt lgkmcnt(0)")
    A(f"s_cselect_b64 s[{SRD_W1}:{SRD_W1+1}], s[16:17], s[18:19]")
    fin_srd(SRD_X, 4)
    A(f"buffer_load_dwordx4 {vr(XS,4)}, v{T+2}, {srd(SRD_X)}, 0 offen\nbuffer_load_dwordx4 {vr(XS+4,4)}, v{T+2}, {srd(SRD_X)}, 0 offen offset:16")
    A(f"buffer_load_ushort v{XO}, v{VXO}, {srd(SRD_X)}, 0 offen")
    A(f"s_load_dword s{sE}, s[26:27], 0")
    if xbar: A("s_barrier")
    nb_total = 16 + b_down[0]
    w2n[0] = 0
    def b_load(n):
        if n < 16: A(f"buffer_load_dwordx4 {vr(W1+4*n,4)}, v{VW1}, {srd(SRD_W1)}, {'0' if n == 0 else f's{sT1+n}'} offen {pol}")
        else: w2_load()
    for n in range(b_win): b_load(n)
    build_srd(SRD_W2, 20, 7340032); build_srd(SRD_WS, 26, 268435456); build_srd(SRD_OUT, 22, 2048)
    stamp(0)
    A(f"s_lshl_b32 s{sF}, s{sG}, 4\ns_add_u32 s{sF}, s{sF}, s{sS}\ns_cmp_lt_u32 s{sS}, 16\ns_cselect_b32 s{sF}, s{sF}, -1")
    A(f"s_lshl_b32 s{s2}, s{sPROD}, 10\ns_add_u32 s{s2}, s{s2}, {XBASE}\nv_lshl_add_u32 v{VXG}, v0, 4, s{s2}")
    A(f"buffer_load_dwordx4 {vr(PT,4)}, v{VXG}, {srd(SRD_WS)}, 0 offen")
    A(f"s_lshl_b32 s{s2}, s{sF}, 5\nv_lshrrev_b32 v{T+3}, 3, v{CH}\nv_add_u32 v{T+3}, s{s2}, v{T+3}")
    A(f"buffer_load_ushort v{XF}, v{T+3}, {srd(SRD_X)}, 0 offen")
    A(f"s_and_b32 s{s2}, s{sPROD}, 0xfc\ns_lshl_b32 s{s2}, s{s2}, 10\ns_and_b32 s{s3}, s{sPROD}, 3\ns_lshl_b32 s{s3}, s{s3}, 8\ns_add_u32 s{s2}, s{s2}, s{s3}\ns_add_u32 s{s2}, s{s2}, {XBASE}")
    A(f"v_lshlrev_b32 v{T}, 10, v{SL}\nv_add3_u32 v{VXS}, v{T}, v{CH}, s{s2}")
    masks()
    A(f"s_lshl_b32 s{s0}, s{sPROD}, 5")
    w2_addr(s0)
    A(f"s_lshl_b32 s{s2}, s{sF}, 14\ns_lshl_b32 s{s3}, s3, 11\ns_add_u32 s{s2}, s{s2}, s{s3}\ns_add_u32 s{s2}, s{s2}, {PBASE}\nv_lshl_add_u32 v{VFG}, v0, 4, s{s2}")
    A(f"s_add_u32 s{sPROD}, s{sPROD}, 128")
    pp_addr()
    A(f"s_waitcnt vmcnt({b_win+2}) lgkmcnt(0)")
    get_tag()
    stamp(1)
    layernorm(16)
    af_build(0)
    stamp(2)
    seq = list(range(b_win)) + ["pt", "xf"]
    issued = b_win
    for j in range(16):
        if j < 15: af_build(j + 1)
        A(f"s_waitcnt vmcnt({len(seq)-1-seq.index(j)})")
        A(f"v_mfma_f32_16x16x32_bf16 {vr(ACC,4)}, {af(j)}, {vr(W1+4*j,4)}, {vr(ACC,4) if j else 0}")
        while issued < nb_total and issued - (j + 1) < b_sched[j + 1]:
            if issued == 16: A("s_barrier")
            b_load(issued); seq.append(issued); issued += 1
    assert issued == nb_total, (issued, nb_total)
    stamp(3)
    partial_store_lds()
    A("s_waitcnt lgkmcnt(0)\ns_barrier")
    A("s_cmp_lg_u32 s3, 0\ns_cbranch_scc1 LB_hgot")
    amp_pub()
    reduce8()
    publish(T, VXS)
    poll_init()
    stamp(4)
    A("LB_xpoll:")
    A(f"buffer_load_dwordx4 {vr(G,4)}, v{VXG}, {srd(SRD_WS)}, s{sPATH} offen sc1")
    A("s_waitcnt vmcnt(0)")
    A(f"v_cmp_ne_u32 vcc, s{sTAG}, v{G+2}\ns_cmp_eq_u64 vcc, 0\ns_cbranch_scc1 LB_xok")
    poll_tail("LB_xpoll")
    A("LB_xok:")
    stamp(5)
    A(f"v_permlane16_swap_b32 v{G}, v{G+1}\nv_add_f32 v{G}, v{G}, v{G+1}")
    rbf(G, f"v{G}")
    A(f"s_mov_b32 s{s2}, 0x3d372713")
    A(f"v_mul_f32 v{U}, v{G}, v{G}\nv_mov_b32 v{G+1}, v{G}\nv_fma_f32 v{U}, v{U}, s{s2}, 1.0\nv_mul_f32 v{U}, v{U}, v{G}")
    A(f"v_mul_f32 v{U}, 0xc0135761, v{U}\nv_permlane32_swap_b32 v{G+1}, v{G+2}\nv_exp_f32 v{U}, v{U}")
    A(f"v_lshrrev_b32 v{T+2}, 1, v{CH}\nv_add_f32 v{U}, 1.0, v{U}\nv_rcp_f32 v{U}, v{U}\nv_lshl_add_u32 v{T+2}, v{SL}, 2, v{T+2}\nv_mul_f32 v{U}, v{U}, v{G}")
    rbf(U, f"v{U}")
    A(f"v_mul_f32 v{U}, v{U}, v{G+2}\ns_mov_b32 exec_hi, 0\nv_cvt_pk_bf16_f32 v{U}, v{U}, v{U}")
    A(f"ds_write_b32 v{T+2}, v{U} offset:{L_O}")
    A("s_mov_b32 exec_hi, -1")
    A("LB_hgot:")
    A("s_waitcnt lgkmcnt(0)\ns_barrier")
    w2_load(b_down[1])
    stamp(6)
    stage3()
    stamp(7)
    if only == "B": A("s_branch LB_done")
    A(f"s_cmp_eq_u32 s{sF}, -1\ns_cbranch_scc1 LB_done")
    A(f"s_cmp_eq_u32 s3, 7\ns_cselect_b32 s{s1}, 0, 1024")
    A(f"s_mov_b32 s{s2}, 0x0c0c0400\ns_mov_b32 s{s3}, 0x04000c0c")
    A("LB_fpoll:")
    A(f"buffer_load_dwordx4 {vr(G,4)}, v{VFG}, {srd(SRD_WS)}, 0 offen sc1")
    A(f"buffer_load_dwordx4 {vr(G+4,4)}, v{VFG}, {srd(SRD_WS)}, s{s1} offen sc1")
    A("s_waitcnt vmcnt(0)")
    for u in range(2):
        A(f"v_perm_b32 v{T+2*u}, v{G+4*u+1}, v{G+4*u}, s{s2}\nv_perm_b32 v{T+2*u+1}, v{G+4*u+3}, v{G+4*u+2}, s{s3}\nv_or_b32 v{T+2*u}, v{T+2*u}, v{T+2*u+1}")
    A(f"v_cmp_ne_u32 vcc, s{sTAG}, v{T}\nv_cmp_ne_u32 s[94:95], s{sTAG}, v{T+2}\ns_or_b64 s[94:95], s[94:95], vcc\ns_cbranch_scc0 LB_fok")
    A(f"s_sub_u32 s{sCNT}, s{sCNT}, 1\ns_cbranch_scc0 LB_fpoll\ns_mov_b32 s{sCNT}, 0")
    A("LB_fok:")
    stamp(8)
    for r in range(8): A(f"v_and_b32 v{G+r}, s{sMSK}, v{G+r}")
    A("s_cmp_eq_u32 s3, 7\ns_cbranch_scc1 LB_f1")
    A(f"v_pk_add_f32 {vr(G,2)}, {vr(G,2)}, {vr(G+4,2)}\nv_pk_add_f32 {vr(G+2,2)}, {vr(G+2,2)}, {vr(G+6,2)}")
    A("LB_f1:")
    for c in ("row_ror:4", "row_ror:8"):
        for r in range(4): A(f"v_add_f32_dpp v{G+r}, v{G+r}, v{G+r} {c} row_mask:0xf bank_mask:0xf")
    A(f"v_and_b32 v{T}, 3, v0\nv_lshlrev_b32 v{T}, 7, v{T}")
    A(f"v_permlane16_swap_b32 v{G}, v{G+1}\nv_permlane16_swap_b32 v{G+2}, v{G+3}")
    A(f"v_add_f32 v{G}, v{G}, v{G+1}\nv_add_f32 v{G+2}, v{G+2}, v{G+3}")
    A(f"v_lshl_add_u32 v{T}, v{SL}, 5, v{T}\ns_lshl_b32 s{s2}, s3, 2\nv_add_u32 v{T}, s{s2}, v{T}")
    A(f"v_permlane32_swap_b32 v{G}, v{G+2}\nv_add_f32 v{G}, v{G}, v{G+2}")
    A("s_mov_b32 exec_lo, 0x000f000f\ns_mov_b32 exec_hi, 0x000f000f")
    A(f"ds_write_b32 v{T}, v{G} offset:{L_F}")
    A("s_mov_b64 exec, -1")
    A("s_waitcnt lgkmcnt(0)\ns_barrier")
    A("s_cmp_lg_u32 s3, 0\ns_cbranch_scc1 LB_done")
    A(f"v_lshlrev_b32 v{T+1}, 1, v{CH}")
    A(f"ds_read_b128 {vr(G,4)}, v{T+1} offset:{L_F}\nds_read_b128 {vr(G+4,4)}, v{T+1} offset:{L_F+16}")
    A(f"s_lshl_b32 s{s2}, s{sF}, 5\nv_lshrrev_b32 v{T}, 3, v{CH}\nv_add_u32 v{T}, s{s2}, v{T}\nv_lshlrev_b32 v{XF}, 16, v{XF}")
    A("s_waitcnt lgkmcnt(0)")
    A(f"v_pk_add_f32 {vr(G,2)}, {vr(G,2)}, {vr(G+2,2)}\nv_pk_add_f32 {vr(G+4,2)}, {vr(G+4,2)}, {vr(G+6,2)}")
    A(f"v_add_f32 v{G}, v{G}, v{G+1}\nv_add_f32 v{G+4}, v{G+4}, v{G+5}")
    A(f"v_cvt_pk_bf16_f32 v{G}, v{G}, v{G+4}")
    A(f"v_lshlrev_b32 v{G+1}, 16, v{G}\nv_and_b32 v{G+2}, 0xffff0000, v{G}")
    A(f"v_add_f32 v{G+1}, v{XF}, v{G+1}")
    rbf(G+1, f"v{G+1}")
    A(f"v_add_f32 v{G+1}, v{G+1}, v{G+2}\nv_cvt_pk_bf16_f32 v{G+1}, v{G+1}, v{G+1}")
    A("s_mov_b32 exec_lo, 0xffff\ns_mov_b32 exec_hi, 0")
    A(f"buffer_store_short v{G+1}, v{T}, {srd(SRD_OUT)}, 0 offen")
    A(f"s_cmp_lg_u32 s{sF}, 0\ns_cbranch_scc1 LB_noep")
    A(f"s_mov_b32 exec_lo, 1\nv_mov_b32 v{T+2}, 0\nv_mov_b32 v{T+3}, s{sE}")
    A(f"buffer_store_dword v{T+3}, v{T+2}, {srd(SRD_WS)}, 0 offen sc1")
    A("LB_noep:")
    A("s_mov_b64 exec, -1")
    A("LB_done:")
    if only == "B":
        A(f"s_cmp_lg_u32 s2, 1\ns_cbranch_scc1 LB_x\ns_sleep 127\nv_mov_b32 v{T+2}, 0\nv_mov_b32 v{T+3}, s{sE}\nbuffer_store_dword v{T+3}, v{T+2}, {srd(SRD_WS)}, 0 offen sc1\nLB_x:")
    if amp:
        A(f"s_cmp_lg_u32 s{sF}, 0\ns_cbranch_scc1 L_end\ns_cmp_lg_u32 s3, 0\ns_cbranch_scc1 L_end")
        A("s_memrealtime s[6:7]")
        A(f"v_lshlrev_b32 v{T}, 5, v0\nv_add_u32 v{T}, {TSBASE}, v{T}")
        A(f"buffer_load_dwordx4 {vr(G,4)}, v{T}, {srd(SRD_WS)}, 0 offen sc1\nbuffer_load_dwordx4 {vr(G+4,4)}, v{T}, {srd(SRD_WS)}, 0 offen offset:16 sc1\ns_waitcnt vmcnt(0) lgkmcnt(0)")
        for q in range(4):
            A(f"v_subrev_u32 v{G+2*q}, s100, v{G+2*q}\nv_add_u32 v{G+2*q}, 5000, v{G+2*q}\nv_cmp_eq_u32 vcc, s{sTAG}, v{G+2*q+1}")
            A(f"v_cndmask_b32 v{U+q}, -1, v{G+2*q}, vcc\nv_cndmask_b32 v{U+4+q}, 0, v{G+2*q}, vcc")
        A(f"v_min_u32 v{U}, v{U}, v{U+1}\nv_min_u32 v{U+2}, v{U+2}, v{U+3}\nv_min_u32 v{U}, v{U}, v{U+2}")
        A(f"v_max_u32 v{U+4}, v{U+4}, v{U+5}\nv_max_u32 v{U+6}, v{U+6}, v{U+7}\nv_max_u32 v{U+4}, v{U+4}, v{U+6}")
        A("s_mov_b32 s8, -1\ns_mov_b32 s9, 0")
        for ln in range(64):
            A(f"v_readlane_b32 s10, v{U}, {ln}\nv_readlane_b32 s11, v{U+4}, {ln}\ns_min_u32 s8, s8, s10\ns_max_u32 s9, s9, s11")
        A("s_sub_u32 s6, s6, s100\ns_add_u32 s6, s6, 5000")
        if amp == "skew": A("s_sub_u32 s12, s9, s8")
        elif amp == "total": A("s_sub_u32 s12, s6, s8")
        elif amp == "fromlast": A("s_sub_u32 s12, s6, s9")
        elif amp == "zero": A("s_mov_b32 s12, 0")
        else:
            x = int(amp)
            A(f"v_readlane_b32 s12, v{G+2*(x&3)}, {x>>2}\ns_sub_u32 s12, s12, s8")
        A(f"s_mul_i32 s12, s12, 10\ns_add_u32 s12, s12, s8\ns_sub_u32 s12, s12, 5000\ns_add_u32 s12, s12, 3000")
        A(f"LB_pad:\ns_memrealtime s[4:5]\ns_waitcnt lgkmcnt(0)\ns_sub_u32 s4, s4, s100\ns_cmp_lt_i32 s4, s12\ns_cbranch_scc1 LB_pad")
    elif diagpad:
        A(f"LB_pad:\ns_memrealtime s[4:5]\ns_waitcnt lgkmcnt(0)\ns_sub_u32 s4, s4, s100\ns_cmp_lt_u32 s4, {diagpad*100}\ns_cbranch_scc1 LB_pad")
    stamp(9)
    write_stamps(10)
    A("L_end:")
    A("s_endpgm")

    body, nins = fix_hazards(L)
    nv = max(hiA, hiB)
    acc = (nv + 3) // 4 * 4
    head = [l for l in open(f"cdna_kernels/{NAME}.s.ref").read().split("\n") if l.startswith(";") and "@launch" not in l and "Override" not in l and "grid=ceil" not in l]
    out = "\n".join(head) + f"\n; @launch grid=(256,1,1) block=(512,1,1) lds={lds}\n"
    out += f'.amdgcn_target "amdgcn-amd-amdhsa--gfx950"\n.text\n.globl {NAME}_kernel\n.p2align 8\n.type {NAME}_kernel,@function\n{NAME}_kernel:\n'
    out += "\n".join(("" if l.endswith(":") else "    ") + l for l in body) + "\n"
    out += f""".section .rodata,"a"
.p2align 6
.amdhsa_kernel {NAME}_kernel
  .amdhsa_next_free_vgpr {nv}
  .amdhsa_next_free_sgpr 102
  .amdhsa_accum_offset {acc}
  .amdhsa_group_segment_fixed_size 0
  .amdhsa_kernarg_size 96
  .amdhsa_user_sgpr_count 2
  .amdhsa_user_sgpr_kernarg_segment_ptr 1
  .amdhsa_system_sgpr_workgroup_id_x 1
  .amdhsa_float_denorm_mode_32 3
.end_amdhsa_kernel
"""
    return out

if __name__ == "__main__":
    kw = eval("dict(" + (sys.argv[2] if len(sys.argv) > 2 else "") + ")")
    txt = gen(**kw)
    open(sys.argv[1], "w").write(txt)
```

```python
import sys
from asmdsl import fix_hazards, Regs

NAME = "parallel_sum__sliding_block_cached__geglu_ffn__decode"
QBASE = 0x10000
OBASE = 0x40000
XBASE = 0xC0000
PBASE = 0x100000
TSBASE = 0x300000
DELTA = 0x400000
L_R = 0; L_Q = 4096; L_P = 6656; L_M = 9216; L_O = 9280; L_F = 9472; L_K = 12288; L_V = 45056
LDS_BYTES = 83968
NW = 9

def roles(kw):
    import numpy as np
    wg = np.arange(256); x = wg & 7; i = wg >> 3
    return {"A": (x % 2 == 1), "B": (x % 2 == 0) & (i < 28)}

def gen(debug=False, pol="nt", a_w=3, a_w2=4, a_pre="KK", a_mid="KKV", a_post="VVV", a_pts=(1, 1), a_pubbar=True, a_pollwait=1, a_qbar=True,
        a_ww=3, b_sched=(3,) * 25, b_early=0, b_pos=6, b_ww=3, b_pubbar=True, fsleep=0,
        spin=2000000, limit=48, diagpad=0, apar=1, xbar=True, codepf=True, only=None,
        clk="s_memrealtime", amp=None, probe=None, osleep=0, fullline=True, pst="sc1", pld="sc1", ptouch=None):
    if amp: diagpad = 30
    L = []
    def A(s):
        for x in s.split("\n"):
            x = x.strip()
            if x: L.append(x)
    def stamp(k):
        if debug and (debug != "lite" or k == 9): A(f"{clk} s[{4+2*k}:{5+2*k}]")
    full = debug and debug != "lite"
    V = Regs("v", 1, 168)
    v = lambda name, n=1: V.alloc(name, n)
    vr = lambda r, n: f"v[{r}:{r+n-1}]"
    SL = v("SL"); CH = v("CH"); XD = v("XD")
    T = v("T", 8); M = v("M", 4); TB = v("TB", 4); AF = v("AF", 8); ACC = v("ACC", 4); PB = v("PB", 4)
    W1 = v("W1", 32); W2 = v("W2", 32); XS = v("XS", 16); U = v("U", 16)
    assert XS == W2 + 32 and U == XS + 16
    XO = XS + 8; G = XS
    QF = v("QF", 16)
    MB = v("MB", 2); SD = v("SD", 2); RI = v("RI", 2)
    VW1 = v("VW1"); VW2 = v("VW2"); VXO = v("VXO"); VPP = v("VPP"); XF = v("XF"); VRW = v("VRW"); VOR = v("VOR")
    R0 = V.next
    SRD_W1, SRD_W2, SRD_WS, SRD_X, SRD_OUT = 28, 32, 44, 48, 52
    SRD_K, SRD_V = 28, 32
    sE, sTAG, sG, sS, sPROD, sF = 56, 57, 58, 59, 60, 61
    sO1, sO2, sDEL = 62, 63, 64
    s0, s1, s2, s3 = 66, 67, 68, 69
    sPATH, sRND, sCNT, sMSK = 70, 71, 72, 73
    C0, C1, C2 = 74, 76, 78
    srd = lambda r: f"s[{r}:{r+3}]"

    if debug or diagpad: A(f"{clk} s[80:81]")
    A("s_load_dwordx16 s[4:19], s[0:1], 0")
    A("s_load_dwordx8 s[20:27], s[0:1], 64")
    if codepf:
        A(f"s_getpc_b64 s[{C0}:{C0+1}]\nv_lshlrev_b32 v{T}, 7, v0\nv_cmp_gt_u32 vcc, CODE_LINES, v0\ns_and_saveexec_b64 s[{C1}:{C1+1}], vcc\ns_cbranch_execz L_nopf")
        A(f"global_load_dword v{W1+31}, v{T}, s[{C0}:{C0+1}]\nL_nopf:\ns_mov_b64 exec, -1")
    A(f"v_lshrrev_b32 v{T}, 6, v0\nv_and_b32 v0, 63, v0")
    A("s_cmp_ge_u32 s2, 256\ns_cbranch_scc1 L_end")
    A(f"v_readfirstlane_b32 s3, v{T}")
    A(f"v_lshrrev_b32 v{SL}, 4, v0\nv_and_b32 v{CH}, 15, v0\nv_lshlrev_b32 v{CH}, 4, v{CH}\nv_lshlrev_b32 v{T+2}, 5, v0")
    A(f"s_bfe_u32 s{sG}, s2, 0x20001\ns_lshr_b32 s{sS}, s2, 3")
    A(f"s_bitcmp1_b32 s2, 0\ns_cbranch_scc{1-apar} L_roleB")
    if only == "B": A("s_endpgm")
    A("s_cmp_eq_u32 s3, 8\ns_cbranch_scc1 L_roleSA")

    def build_srd(r, p, size):
        A(f"s_mov_b64 s[{r}:{r+1}], s[{p}:{p+1}]\ns_mov_b32 s{r+2}, {size}\ns_mov_b32 s{r+3}, 0x20000")
    def pre_srd(r, size): A(f"s_mov_b32 s{r+2}, {size}\ns_mov_b32 s{r+3}, 0x20000")
    def fin_srd(r, p): A(f"s_mov_b64 s[{r}:{r+1}], s[{p}:{p+1}]")
    def masks(J2):
        A(f"v_and_b32 v{T}, 1, v0\nv_lshlrev_b32 v{T}, 4, v{T}\nv_mov_b32 v{T+1}, 0xffff\nv_lshlrev_b32 v{T+1}, v{T}, v{T+1}")
        A(f"v_bfe_u32 v{T+2}, v0, 1, 2")
        for r, c in enumerate((C0, C1, C2)): A(f"v_cmp_eq_u32 s[{c}:{c+1}], {r}, v{T+2}")
        A(f"v_cmp_eq_u32 vcc, 3, v{T+2}")
        for r, c in enumerate((C0, C1, C2)): A(f"v_cndmask_b32 v{M+r}, 0, v{T+1}, s[{c}:{c+1}]")
        A(f"v_cndmask_b32 v{M+3}, 0, v{T+1}, vcc")
        A(f"v_and_b32 v{T}, {(J2-1)*16}, v{CH}\nv_lshl_add_u32 v{VOR}, v{SL}, 2, v{T}")
        A(f"s_lshl_b32 s{s2}, s3, 9\nv_lshlrev_b32 v{T}, 1, v{CH}\nv_lshl_add_u32 v{T}, v{SL}, 4, v{T}\nv_add_u32 v{VRW}, s{s2}, v{T}")
    def wave_sum(r):
        for c in ("row_shr:1", "row_shr:2", "row_shr:4", "row_shr:8"):
            A(f"v_add_f32_dpp v{r}, v{r}, v{r} {c} row_mask:0xf bank_mask:0xf bound_ctrl:0")
        A(f"v_add_f32_dpp v{r}, v{r}, v{r} row_bcast:15 row_mask:0xa bank_mask:0xf")
        A(f"v_add_f32_dpp v{r}, v{r}, v{r} row_bcast:31 row_mask:0xc bank_mask:0xf")
    def rbf(dst, src):
        A(f"v_cvt_pk_bf16_f32 v{dst}, {src}, {src}\nv_and_b32 v{dst}, 0xffff0000, v{dst}")
    def layernorm():
        for k in range(8):
            A(f"v_lshlrev_b32 v{U+2*k}, 16, v{XS+k}\nv_and_b32 v{U+2*k+1}, 0xffff0000, v{XS+k}")
        A(f"v_pk_add_f32 {vr(T,2)}, {vr(U,2)}, {vr(U+2,2)}\nv_pk_add_f32 {vr(T+2,2)}, {vr(U+4,2)}, {vr(U+6,2)}")
        A(f"v_pk_add_f32 {vr(T+4,2)}, {vr(U+8,2)}, {vr(U+10,2)}\nv_pk_add_f32 {vr(T+6,2)}, {vr(U+12,2)}, {vr(U+14,2)}")
        A(f"v_pk_add_f32 {vr(T,2)}, {vr(T,2)}, {vr(T+2,2)}\nv_pk_add_f32 {vr(T+4,2)}, {vr(T+4,2)}, {vr(T+6,2)}")
        A(f"v_pk_add_f32 {vr(T,2)}, {vr(T,2)}, {vr(T+4,2)}\nv_add_f32 v{T}, v{T}, v{T+1}")
        wave_sum(T)
        A(f"v_mul_f32 v{T}, 0x3a800000, v{T}\nv_readlane_b32 s{s2}, v{T}, 63")
        for k in range(8):
            A(f"v_pk_add_f32 {vr(U+2*k,2)}, {vr(U+2*k,2)}, s[{s2}:{s2+1}] op_sel_hi:[1,0] neg_lo:[0,1] neg_hi:[0,1]")
        A(f"v_pk_mul_f32 {vr(T,2)}, {vr(U,2)}, {vr(U,2)}\nv_pk_mul_f32 {vr(T+2,2)}, {vr(U+2,2)}, {vr(U+2,2)}")
        for k in range(2, 8):
            t = T + 2 * (k & 1)
            A(f"v_pk_fma_f32 {vr(t,2)}, {vr(U+2*k,2)}, {vr(U+2*k,2)}, {vr(t,2)}")
        A(f"v_pk_add_f32 {vr(T,2)}, {vr(T,2)}, {vr(T+2,2)}\nv_add_f32 v{T}, v{T}, v{T+1}")
        rbf(MB, f"s{s2}")
        wave_sum(T)
        A(f"v_mul_f32 v{T}, 0x3a800000, v{T}\nv_readlane_b32 s{s2}, v{T}, 63")
        A(f"v_lshlrev_b32 v{U}, 16, v{XO}\nv_sub_f32 v{U}, v{U}, v{MB}")
        rbf(SD, f"s{s2}"); A(f"v_add_f32 v{SD}, 0x3727c5ac, v{SD}"); rbf(SD, f"v{SD}"); A(f"v_sqrt_f32 v{SD}, v{SD}")
        rbf(U, f"v{U}")
        rbf(SD, f"v{SD}"); A(f"v_rcp_f32 v{RI}, v{SD}")
        A(f"v_mul_f32 v{T}, v{U}, v{RI}\nv_fma_f32 v{T+1}, -v{T}, v{SD}, v{U}\nv_fma_f32 v{T}, v{T+1}, v{RI}, v{T}")
        A(f"v_cvt_pk_bf16_f32 v{XD}, v{T}, v{T}")
    def af_build(j):
        for r in range(4): A(f"v_and_b32_dpp v{AF+4*(j&1)+r}, v{XD}, v{M+r} row_newbcast:{j} row_mask:0xf bank_mask:0xf")
    def af(j): return vr(AF+4*(j&1), 4)
    def get_tag(bytes_=True):
        A(f"s_add_u32 s{sE}, s{sE}, 1\ns_mul_i32 s{sTAG}, s{sE}, 0x01010101")
        if bytes_:
            A(f"v_mov_b32 v{TB}, s{sTAG}\nv_lshrrev_b32 v{TB+1}, 8, v{TB}\nv_lshrrev_b32 v{TB+2}, 16, v{TB}\nv_lshrrev_b32 v{TB+3}, 24, v{TB}")
            A(f"s_mov_b32 s{sMSK}, 0xffffff00")
        A(f"s_mov_b32 s{sCNT}, {spin}\ns_mov_b32 s{sDEL}, {DELTA}")
    def amp_pub():
        if not amp: return
        A(f"s_lshl_b32 s{s2}, s2, 3\ns_add_u32 s{s2}, s{s2}, {TSBASE}\nv_mov_b32 v{T}, s80\nv_mov_b32 v{T+1}, s{sTAG}\nv_mov_b32 v{T+2}, s{s2}")
        A(f"s_mov_b64 exec, 1\nbuffer_store_dwordx2 {vr(T,2)}, v{T+2}, {srd(SRD_WS)}, 0 offen sc1\ns_mov_b64 exec, -1\ns_nop 1")
    def x_loads():
        A(f"buffer_load_dwordx4 {vr(XS,4)}, v{T+2}, {srd(SRD_X)}, 0 offen\nbuffer_load_dwordx4 {vr(XS+4,4)}, v{T+2}, {srd(SRD_X)}, 0 offen offset:16")
        A(f"buffer_load_ushort v{XO}, v{VXO}, {srd(SRD_X)}, 0 offen")
    def partial_store_lds():
        A("s_mov_b32 exec_hi, 0")
        A(f"ds_write_b128 v{VRW}, {vr(ACC,4)} offset:{L_R}")
        A("s_mov_b32 exec_hi, -1")
    def reduce8():
        for k in range(8): A(f"ds_read_b64 {vr(U+2*k,2)}, v{T+4} offset:{L_R+k*512}")
        A(f"v_mov_b32 v{PB+2}, s{sTAG}\nv_mov_b32 v{PB+3}, s{sTAG}")
        A(f"s_waitcnt lgkmcnt({0 if full else 4})")
        A(f"v_pk_add_f32 {vr(U,2)}, {vr(U,2)}, {vr(U+2,2)}\nv_pk_add_f32 {vr(U+4,2)}, {vr(U+4,2)}, {vr(U+6,2)}")
        A("s_waitcnt lgkmcnt(0)")
        A(f"v_pk_add_f32 {vr(U+8,2)}, {vr(U+8,2)}, {vr(U+10,2)}\nv_pk_add_f32 {vr(U+12,2)}, {vr(U+12,2)}, {vr(U+14,2)}")
        A(f"v_pk_add_f32 {vr(U,2)}, {vr(U,2)}, {vr(U+4,2)}\nv_pk_add_f32 {vr(U+8,2)}, {vr(U+8,2)}, {vr(U+12,2)}")
        A(f"v_pk_add_f32 {vr(PB,2)}, {vr(U,2)}, {vr(U+8,2)}")
    def pub_local(data, addr, off=0):
        A(f"buffer_store_dwordx4 {vr(data,4)}, v{addr}, {srd(SRD_WS)}, 0 offen")
    def pub_global(data, addr):
        A(f"buffer_store_dwordx4 {vr(data,4)}, v{addr}, {srd(SRD_WS)}, s{sDEL} offen sc1")
    def poll_init():
        A(f"s_mov_b32 s{sPATH}, 0\ns_mov_b32 s{sRND}, 0")
    def poll_tail(lbl, late=None, sleep=0):
        if sleep: A(f"s_sleep {sleep}")
        A(f"s_add_u32 s{sRND}, s{sRND}, 1\ns_cmp_lt_u32 s{sRND}, {limit}\ns_cbranch_scc1 {lbl}")
        if late:
            A(f"s_cmp_lg_u32 s{sRND}, {limit}\ns_cbranch_scc1 {lbl}_sw")
            late()
            A(f"{lbl}_sw:")
        A(f"s_xor_b32 s{sPATH}, s{sPATH}, s{sDEL}")
        A(f"s_sub_u32 s{sCNT}, s{sCNT}, 1\ns_cbranch_scc0 {lbl}\ns_mov_b32 s{sCNT}, 0")
    def w2_addr(srow):
        A(f"s_lshl_b32 s{s2}, s{srow}, 11\ns_lshl_b32 s{s3}, s3, 8\ns_add_u32 s{s2}, s{s2}, s{s3}")
        A(f"v_lshlrev_b32 v{T}, 11, v{SL}\nv_add3_u32 v{VW2}, v{T}, v{CH}, s{s2}\ns_mov_b32 s{sO2}, 0")
    cnt = {"w1": 0, "w2": 0}
    def w1_load(step):
        j = cnt["w1"]; cnt["w1"] += 1
        A(f"buffer_load_dwordx4 {vr(W1+4*(j&7),4)}, v{VW1}, {srd(SRD_W1)}, s{sO1} offen {pol}")
        if j < 15: A(f"s_add_u32 s{sO1}, s{sO1}, {step}")
    def w2_load(n=1):
        for _ in range(n):
            j = cnt["w2"]; cnt["w2"] += 1
            A(f"buffer_load_dwordx4 {vr(W2+4*j,4)}, v{VW2}, {srd(SRD_W2)}, s{sO2} offen {pol}\ns_add_u32 s{sO2}, s{sO2}, 8192")
    def pp_addr():
        if fullline:
            A(f"v_bfe_u32 v{T}, v0, 2, 2\nv_lshlrev_b32 v{T}, 15, v{T}\nv_and_b32 v{T+1}, 3, v0\nv_lshlrev_b32 v{T+1}, 5, v{T+1}\nv_and_b32 v{T+2}, 16, v0")
            A(f"v_add3_u32 v{T}, v{T}, v{T+1}, v{T+2}")
            A(f"s_lshl_b32 s{s2}, s3, 17\ns_lshl_b32 s{s3}, s{sPROD}, 7\ns_add_u32 s{s2}, s{s2}, s{s3}\ns_add_u32 s{s2}, s{s2}, {PBASE}")
            A(f"v_add_u32 v{VPP}, s{s2}, v{T}")
            return
        A(f"v_bfe_u32 v{T}, v0, 1, 3\nv_lshlrev_b32 v{T}, 14, v{T}\nv_and_b32 v{T+1}, 1, v0\nv_lshlrev_b32 v{T+1}, 5, v{T+1}\nv_and_b32 v{T+2}, 16, v0")
        A(f"v_add3_u32 v{T}, v{T}, v{T+1}, v{T+2}")
        A(f"s_lshl_b32 s{s2}, s3, 17\ns_lshl_b32 s{s3}, s{sPROD}, 6\ns_add_u32 s{s2}, s{s2}, s{s3}\ns_add_u32 s{s2}, s{s2}, {PBASE}")
        A(f"v_add_u32 v{VPP}, s{s2}, v{T}")
    def stage3(n, nearly, younger=0):
        assert cnt["w2"] == n
        A(f"ds_read_b32 v{XD}, v{VOR} offset:{L_O}")
        A("s_waitcnt lgkmcnt(0)")
        af_build(0)
        for j in range(n):
            if j < n - 1: af_build(j + 1)
            if j >= nearly: A(f"s_waitcnt vmcnt({n-1-j+younger})")
            A(f"v_mfma_f32_16x16x32_bf16 {vr(ACC,4)}, {af(j)}, {vr(W2+4*j,4)}, {vr(ACC,4) if j else 0}")
        A("s_mov_b32 exec_hi, 0")
        for r in range(4): A(f"v_bfi_b32 v{T+r}, s{sMSK}, v{ACC+r}, v{TB+r}")
        A(f"buffer_store_dwordx4 {vr(T,4)}, v{VPP}, {srd(SRD_WS)}, 0 offen {pst}")
        A("s_mov_b32 exec_hi, -1")
    def write_stamps(n=10):
        if not debug: return
        A("s_waitcnt lgkmcnt(0)")
        for k in range(n): A(f"v_writelane_b32 v{T+4}, s{4+2*k}, {k}")
        A(f"v_writelane_b32 v{T+4}, s80, 15")
        A(f"s_lshl_b32 s{s2}, s2, 4\ns_add_u32 s{s2}, s{s2}, s3\ns_lshl_b32 s{s2}, s{s2}, 6\ns_add_u32 s{s2}, s{s2}, {TSBASE}")
        A(f"v_lshlrev_b32 v{T+5}, 2, v0\nv_add_u32 v{T+5}, s{s2}, v{T+5}")
        A("s_mov_b32 exec_lo, 0xffff\ns_mov_b32 exec_hi, 0")
        A(f"buffer_store_dword v{T+4}, v{T+5}, {srd(SRD_WS)}, 0 offen")
        A("s_mov_b64 exec, -1")
    def check4(regs, ok):
        A(f"v_cmp_ne_u32 vcc, s{sTAG}, v{regs[0]}\nv_cmp_ne_u32 s[{C0}:{C0+1}], s{sTAG}, v{regs[1]}\nv_cmp_ne_u32 s[{C1}:{C1+1}], s{sTAG}, v{regs[2]}\nv_cmp_ne_u32 s[{C2}:{C2+1}], s{sTAG}, v{regs[3]}")
        A(f"s_or_b64 s[{C0}:{C0+1}], s[{C0}:{C0+1}], vcc\ns_or_b64 s[{C1}:{C1+1}], s[{C1}:{C1+1}], s[{C2}:{C2+1}]\ns_or_b64 s[{C0}:{C0+1}], s[{C0}:{C0+1}], s[{C1}:{C1+1}]\ns_cbranch_scc0 {ok}")
    def gemv1(order, sched, win0, extra, step, n=16, other=None):
        pos_of = [p for p, e in enumerate(order) if e == "a"]
        seq = list(range(win0)) + extra
        st = {"issued": win0}
        def issue():
            e = order[st["issued"]]
            if e == "a": w1_load(step)
            elif other: other()
            else: w2_load()
            seq.append(st["issued"]); st["issued"] += 1
        af_build(0)
        for j in range(n):
            if j < n - 1: af_build(j + 1)
            pos = pos_of[j]
            while st["issued"] <= min(pos + sched[pos] - 2, len(order) - 1) or pos not in seq:
                A(f"s_waitcnt vmcnt({max(sched[st['issued'] - 1] - 1, 0)})"); issue()
            A(f"s_waitcnt vmcnt({len(seq)-1-seq.index(pos)})")
            A(f"v_mfma_f32_16x16x32_bf16 {vr(ACC,4)}, {af(j)}, {vr(W1+4*(j&7),4)}, {vr(ACC,4) if j else 0}")
            while st["issued"] < len(order) and st["issued"] - (pos + 1) < sched[pos + 1]:
                issue()
        return st["issued"]

    A(f"s_lshr_b32 s{s0}, s{sS}, 3\ns_lshl_b32 s{s0}, s{s0}, 8\ns_lshl_b32 s{s1}, s3, 2\ns_add_u32 s{s0}, s{s0}, s{s1}")
    A(f"s_lshl_b32 s{s1}, s{s0}, 1\nv_and_b32 v{T}, 7, v0\nv_lshlrev_b32 v{T}, 6, v{T}\nv_lshl_add_u32 v{T}, v{SL}, 1, v{T}\nv_add_u32 v{VXO}, s{s1}, v{T}")
    A(f"s_lshl_b32 s{s0}, s{s0}, 13\ns_lshl_b32 s{s1}, s{sG}, 3\ns_and_b32 s{s2}, s{sS}, 7\ns_add_u32 s{s1}, s{s1}, s{s2}\ns_lshl_b32 s{s1}, s{s1}, 8\ns_add_u32 s{s0}, s{s0}, s{s1}")
    A(f"v_lshlrev_b32 v{T}, 13, v{SL}\nv_add3_u32 v{VW1}, v{T}, v{CH}, s{s0}")
    pre_srd(SRD_X, 2048); pre_srd(SRD_W1, 8388608)
    A(f"s_mov_b32 s{sO1}, 0")
    A("s_waitcnt lgkmcnt(0)")
    fin_srd(SRD_X, 4); fin_srd(SRD_W1, 10)
    x_loads()
    A(f"s_load_dword s{sE}, s[26:27], 0")
    if xbar: A("s_barrier")
    cnt["w1"] = cnt["w2"] = 0
    for n in range(a_w): w1_load(32 * 8192)
    build_srd(SRD_WS, 26, 268435456)
    masks(8)
    V.next = R0
    KA = QF; VA = QF + 4; KR = QF + 8; VR_ = v("VR"); QR = v("QR"); PW = v("PW"); VQP = XF; VOP = v("VOP"); HM = v("HM")
    KF = W1; QF2 = W1 + 16; VF = XS; ONE = PB; LA = AF + 4
    hi = V.next
    SRD_K, SRD_V = 36, 40
    build_srd(SRD_K, 6, 67108864); build_srd(SRD_V, 8, 67108864); build_srd(SRD_W2, 12, 8388608)
    stamp(0)
    A(f"s_lshl_b32 s{s2}, s{sG}, 24\ns_lshl_b32 s{s3}, s{sS}, 15\ns_add_u32 s{s2}, s{s2}, s{s3}\ns_lshl_b32 s{sF}, s3, 12\ns_add_u32 s{s2}, s{s2}, s{sF}\ns_add_u32 s{s2}, s{s2}, {61440*256}")
    A(f"v_lshlrev_b32 v{T+2}, 8, v{SL}\nv_add_u32 v{T+2}, s{s2}, v{T+2}")
    A(f"v_lshlrev_b32 v{T+3}, 4, v{SL}\nv_xor_b32 v{T+3}, v{T+3}, v{CH}")
    for t in range(4): A(f"v_xor_b32 v{T+4}, {64*t}, v{T+3}\nv_add_u32 v{KA+t}, v{T+4}, v{T+2}")
    A(f"v_lshlrev_b32 v{T+4}, 5, v{SL}\nv_xor_b32 v{T+4}, v{T+4}, v{CH}\nv_add_u32 v{VA}, v{T+4}, v{T+2}")
    A(f"v_xor_b32 v{T+4}, 128, v{T+4}\nv_add_u32 v{VA+1}, v{T+4}, v{T+2}")
    A(f"s_add_u32 m0, s{sF}, {L_K}")
    A(f"v_lshl_add_u32 v{T+4}, v{CH}, 4, s{sF}")
    for ks in range(4): A(f"v_xor_b32 v{T+5}, {64*ks}, v{T+3}\nv_add_u32 v{KR+ks}, v{T+5}, v{T+4}")
    A(f"v_bfe_u32 v{T+4}, v0, 2, 2\nv_lshl_add_u32 v{T+5}, v{SL}, 3, v{T+4}\nv_lshlrev_b32 v{T+5}, 8, v{T+5}")
    A(f"v_and_b32 v{T+6}, 1, v{SL}\nv_lshl_or_b32 v{T+4}, v{T+6}, 2, v{T+4}\nv_xor_b32 v{T+4}, s3, v{T+4}\nv_lshlrev_b32 v{T+4}, 5, v{T+4}")
    A(f"v_and_b32 v{T+6}, 3, v0\nv_lshlrev_b32 v{T+6}, 3, v{T+6}\nv_add3_u32 v{VR_}, v{T+4}, v{T+5}, v{T+6}\nv_add_u32 v{VR_}, {L_V}, v{VR_}")
    A(f"v_and_b32 v{T+4}, 7, v0\nv_lshlrev_b32 v{HM}, 2, v{T+4}\nv_mul_u32_u24 v{T+4}, 288, v{T+4}\nv_lshl_add_u32 v{QR}, v{SL}, 4, v{T+4}")
    A(f"s_lshl_b32 s{s2}, s3, 5\nv_lshl_add_u32 v{PW}, v{SL}, 3, v{T+4}\nv_add_u32 v{PW}, s{s2}, v{PW}")
    A(f"s_lshl_b32 s{s2}, s{sG}, 15\ns_add_u32 s{s2}, s{s2}, s{sF}\ns_add_u32 s{s2}, s{s2}, {QBASE}\nv_lshl_add_u32 v{VQP}, v0, 4, s{s2}")
    A(f"s_lshl_b32 s{s2}, s{sG}, 17\ns_lshr_b32 s{s3}, s3, 1\ns_lshl_b32 s{s3}, s{s3}, 12\ns_add_u32 s{s2}, s{s2}, s{s3}")
    A(f"s_lshl_b32 s{s3}, s{sS}, 7\ns_add_u32 s{s2}, s{s2}, s{s3}\ns_and_b32 s{s3}, s3, 1\ns_lshl_b32 s{s3}, s{s3}, 6\ns_add_u32 s{s2}, s{s2}, s{s3}\ns_add_u32 s{s2}, s{s2}, {OBASE}")
    A(f"v_lshlrev_b32 v{T+4}, 12, v{HM}\nv_lshlrev_b32 v{T+5}, 4, v{SL}\nv_add3_u32 v{VOP}, v{T+4}, v{T+5}, s{s2}")
    A(f"s_lshl_b32 s{sPROD}, s{sG}, 5\ns_add_u32 s{sPROD}, s{sPROD}, s{sS}\ns_lshl_b32 s{s0}, s{sPROD}, 5")
    w2_addr(s0); pp_addr()
    for r in range(4): A(f"v_mov_b32 v{ONE+r}, 0x3f803f80")
    A(f"v_mov_b32 v{T}, 0xff800000\nds_write_b32 v{HM}, v{T} offset:{L_M}")
    A(f"s_waitcnt vmcnt({a_w}) lgkmcnt(0)")
    get_tag()
    poll_init()
    stamp(1)
    layernorm()
    stamp(2)
    kv = {"K": 0, "V": 0}
    def issue(e):
        if e == "W": w2_load(); return
        t = kv[e]; kv[e] += 1
        if e == "V" and t == 0: A(f"s_add_u32 m0, s{sF}, {L_V}")
        if e == "K": A(f"buffer_load_dwordx4 v{KA+t}, {srd(SRD_K)}, 0 offen offset:{t*1024} {pol} lds")
        else: A(f"buffer_load_dwordx4 v{VA+(t>>1)}, {srd(SRD_V)}, 0 offen offset:{t*1024} {pol} lds")
    allo = a_pre + a_mid + a_post
    assert allo.count("K") == 4 and allo.count("V") == 4 and "K" not in a_post and allo.index("V") > allo.rindex("K")
    pre = list(a_pre); npre = len(pre)
    sched = [max(min(a_w, 8 + npre - p), 1) for p in range(9)] + [1] * 16
    issued = gemv1(["a"] * 8 + ["w"] * npre, sched, a_w, [], 32 * 8192, 8, lambda: issue(pre.pop(0))) - 8
    assert issued == npre
    stamp(3)
    partial_store_lds()
    A("s_waitcnt lgkmcnt(0)\ns_barrier")
    nbar = 0
    if a_pubbar: A("s_barrier")
    stamp(4)
    for n, e in enumerate(a_mid):
        if npre + n >= a_w2: A(f"s_waitcnt vmcnt({a_w2-1})")
        issue(e)
    A(f"s_waitcnt vmcnt({a_pollwait})")
    def q_loads():
        for u in range(4): A(f"buffer_load_dwordx4 {vr(G+4*u,4)}, v{VQP}, {srd(SRD_WS)}, s{sPATH} offen offset:{u*1024} sc1")
    q_loads()
    if a_qbar: A("s_barrier"); nbar += 1
    for e in a_post: issue(e)
    A(f"s_waitcnt vmcnt({len(a_post)})")
    vyoung = len(a_post) - 1 - a_post.rindex("V") if "V" in a_post else 63
    for ks in range(4): A(f"ds_read_b128 {vr(KF+4*ks,4)}, v{KR+ks} offset:{L_K}")
    check4([G+2, G+6, G+10, G+14], "LA_qok")
    A("LA_qpoll:")
    q_loads()
    A("s_waitcnt vmcnt(0)")
    check4([G+2, G+6, G+10, G+14], "LA_qok")
    poll_tail("LA_qpoll")
    A("LA_qok:")
    stamp(5)
    A(f"v_pk_add_f32 {vr(G,2)}, {vr(G,2)}, {vr(G+4,2)}\nv_pk_add_f32 {vr(G+8,2)}, {vr(G+8,2)}, {vr(G+12,2)}")
    A(f"s_mul_i32 s{s2}, s3, 288\nv_lshl_add_u32 v{T}, v0, 2, s{s2}")
    A(f"v_pk_add_f32 {vr(G,2)}, {vr(G,2)}, {vr(G+8,2)}\nv_cvt_pk_bf16_f32 v{G}, v{G}, v{G+1}")
    A(f"ds_write_b32 v{T}, v{G} offset:{L_Q}")
    w2_load(a_pts[0])
    A("s_waitcnt lgkmcnt(0)\ns_barrier"); nbar += 1
    for ks in range(4): A(f"ds_read_b128 {vr(QF2+4*ks,4)}, v{QR} offset:{L_Q+64*ks}")
    for ks in range(4):
        A(f"s_waitcnt lgkmcnt({0 if full else 3-ks})")
        A(f"v_mfma_f32_16x16x32_bf16 {vr(ACC,4)}, {vr(KF+4*ks,4)}, {vr(QF2+4*ks,4)}, {vr(ACC,4) if ks else 0}")
    A(f"s_mov_b32 s{s2}, 0x3db504f3")
    A(f"v_cvt_pk_bf16_f32 v{T}, v{ACC}, v{ACC+1}\nv_cvt_pk_bf16_f32 v{T+1}, v{ACC+2}, v{ACC+3}")
    A(f"v_lshlrev_b32 v{U}, 16, v{T}\nv_and_b32 v{U+1}, 0xffff0000, v{T}\nv_lshlrev_b32 v{U+2}, 16, v{T+1}\nv_and_b32 v{U+3}, 0xffff0000, v{T+1}")
    A(f"v_pk_mul_f32 {vr(U,2)}, {vr(U,2)}, s[{s2}:{s2+1}] op_sel_hi:[1,0]\nv_pk_mul_f32 {vr(U+2,2)}, {vr(U+2,2)}, s[{s2}:{s2+1}] op_sel_hi:[1,0]")
    A(f"v_cvt_pk_bf16_f32 v{T}, v{U}, v{U+1}\nv_cvt_pk_bf16_f32 v{T+1}, v{U+2}, v{U+3}")
    A(f"v_lshlrev_b32 v{U}, 16, v{T}\nv_and_b32 v{U+1}, 0xffff0000, v{T}\nv_lshlrev_b32 v{U+2}, 16, v{T+1}\nv_and_b32 v{U+3}, 0xffff0000, v{T+1}")
    A(f"v_max3_f32 v{T}, v{U}, v{U+1}, v{U+2}\nv_max_f32 v{T}, v{T}, v{U+3}")
    A(f"ds_max_f32 v{HM}, v{T} offset:{L_M}")
    w2_load(a_pts[1])
    A("s_waitcnt lgkmcnt(0)\ns_barrier"); nbar += 1
    A(f"ds_read_b32 v{MB}, v{HM} offset:{L_M}")
    A(f"s_mov_b32 s{s2}, 0x3fb8aa3b")
    A("s_waitcnt lgkmcnt(0)")
    A(f"v_pk_add_f32 {vr(U,2)}, {vr(U,2)}, {vr(MB,2)} op_sel_hi:[1,0] neg_lo:[0,1] neg_hi:[0,1]\nv_pk_add_f32 {vr(U+2,2)}, {vr(U+2,2)}, {vr(MB,2)} op_sel_hi:[1,0] neg_lo:[0,1] neg_hi:[0,1]")
    A(f"v_pk_mul_f32 {vr(U,2)}, {vr(U,2)}, s[{s2}:{s2+1}] op_sel_hi:[1,0]\nv_pk_mul_f32 {vr(U+2,2)}, {vr(U+2,2)}, s[{s2}:{s2+1}] op_sel_hi:[1,0]")
    for r in range(4): A(f"v_exp_f32 v{U+r}, v{U+r}")
    A(f"v_cvt_pk_bf16_f32 v{T}, v{U}, v{U+1}\nv_cvt_pk_bf16_f32 v{T+1}, v{U+2}, v{U+3}")
    A(f"ds_write_b64 v{PW}, {vr(T,2)} offset:{L_P}")
    A(f"v_mul_f32 v{MB}, s{s2}, v{MB}")
    A("s_waitcnt lgkmcnt(0)\ns_barrier"); nbar += 1
    for ks in range(4): A(f"ds_read_b128 {vr(QF2+4*ks,4)}, v{QR} offset:{L_P+64*ks}")
    for ks in range(4):
        A(f"s_waitcnt lgkmcnt({0 if full else 3-ks})")
        A(f"v_mfma_f32_16x16x32_bf16 {vr(LA,4)}, {vr(ONE,4)}, {vr(QF2+4*ks,4)}, {vr(LA,4) if ks else 0}")
    if vyoung < 63:
        A(f"s_waitcnt vmcnt({vyoung + sum(a_pts)})\ns_barrier"); nbar += 1
    for ks in range(4):
        for hh in range(2): A(f"ds_read_b64_tr_b16 {vr(VF+4*ks+2*hh,2)}, v{VR_} offset:{ks*8192+hh*1024}")
    OG = QF + 12
    A(f"v_rcp_f32 v{RI}, v{LA}\nv_log_f32 v{OG+2}, v{LA}\nv_mov_b32 v{OG+3}, s{sTAG}")
    A(f"v_add_f32 v{OG+2}, v{OG+2}, v{MB}")
    for ks in range(4):
        A(f"s_waitcnt lgkmcnt({0 if full else 6-2*ks})")
        A(f"v_mfma_f32_16x16x32_bf16 {vr(ACC,4)}, {vr(VF+4*ks,4)}, {vr(QF2+4*ks,4)}, {vr(ACC,4) if ks else 0}")
    A("s_mov_b32 exec_lo, 0x00ff00ff\ns_mov_b32 exec_hi, 0x00ff00ff")
    A(f"v_pk_mul_f32 {vr(ACC,2)}, {vr(ACC,2)}, {vr(RI,2)} op_sel_hi:[1,0]\nv_pk_mul_f32 {vr(ACC+2,2)}, {vr(ACC+2,2)}, {vr(RI,2)} op_sel_hi:[1,0]")
    A(f"v_cvt_pk_bf16_f32 v{OG}, v{ACC}, v{ACC+1}\nv_cvt_pk_bf16_f32 v{OG+1}, v{ACC+2}, v{ACC+3}")
    pub_local(OG, VOP)
    A("s_mov_b64 exec, -1")
    A("s_barrier"); nbar += 1
    stamp(6)
    n0 = cnt["w2"]
    while cnt["w2"] < 8:
        if cnt["w2"] - n0 >= a_ww: A(f"s_waitcnt vmcnt({a_ww-1})")
        w2_load()
    A("s_mov_b32 exec_lo, 0x00ff00ff\ns_mov_b32 exec_hi, 0x00ff00ff")
    pub_global(OG, VOP)
    A("s_mov_b64 exec, -1")
    stamp(7)
    A("s_barrier")
    stamp(8)
    stage3(8, 0, 1)
    stamp(9)
    write_stamps()
    A("s_endpgm")

    A("L_roleSA:")
    VQS = R0; VOG = R0 + 1
    A(f"s_lshl_b32 s{s0}, s{sG}, 15\ns_and_b32 s{s1}, s{sS}, 7\ns_lshl_b32 s{s1}, s{s1}, 12\ns_add_u32 s{s0}, s{s0}, s{s1}\ns_lshr_b32 s{s1}, s{sS}, 3\ns_lshl_b32 s{s1}, s{s1}, 10\ns_add_u32 s{s0}, s{s0}, s{s1}\ns_add_u32 s{s0}, s{s0}, {QBASE}")
    A(f"v_lshl_add_u32 v{VQS}, v0, 4, s{s0}")
    A(f"s_lshl_b32 s{s0}, s{sG}, 17\ns_lshl_b32 s{s1}, s{sS}, 12\ns_add_u32 s{s0}, s{s0}, s{s1}\ns_add_u32 s{s0}, s{s0}, {OBASE}\nv_lshl_add_u32 v{VOG}, v0, 4, s{s0}")
    A("s_waitcnt lgkmcnt(0)")
    A(f"s_load_dword s{sE}, s[26:27], 0")
    build_srd(SRD_WS, 26, 268435456)
    if xbar: A("s_barrier")
    A(f"buffer_load_dwordx4 {vr(G,4)}, v{VQS}, {srd(SRD_WS)}, 0 offen")
    for u in range(4): A(f"buffer_load_dwordx4 {vr(G+8,4)}, v{VOG}, {srd(SRD_WS)}, 0 offen offset:{u*1024}")
    A(f"v_lshlrev_b32 v{T+4}, 3, v0\nv_and_b32 v{VOR}, 0x70, v{CH}\nv_lshl_add_u32 v{VOR}, v{SL}, 2, v{VOR}")
    A("s_waitcnt lgkmcnt(0)")
    get_tag(False)
    poll_init()
    amp_pub()
    A("s_waitcnt vmcnt(0)\ns_barrier")
    reduce8()
    pub_local(PB, VQS)
    if a_pubbar: A("s_barrier")
    pub_global(PB, VQS)
    stamp(4)
    for _ in range(nbar): A("s_barrier")
    A("LS_poll:")
    for u in range(4): A(f"buffer_load_dwordx4 {vr(G+4*u,4)}, v{VOG}, {srd(SRD_WS)}, s{sPATH} offen offset:{u*1024} sc1")
    A("s_waitcnt vmcnt(0)")
    check4([G+3, G+7, G+11, G+15], "LS_ok")
    poll_tail("LS_poll", None, osleep)
    A("LS_ok:")
    stamp(6)
    A(f"v_max3_f32 v{T}, v{G+2}, v{G+6}, v{G+10}\nv_max_f32 v{T}, v{T}, v{G+14}")
    for u in range(2):
        A(f"v_lshlrev_b32 v{U+4*u}, 16, v{G+4*u}\nv_and_b32 v{U+4*u+1}, 0xffff0000, v{G+4*u}")
    A(f"v_max_f32_dpp v{T}, v{T}, v{T} row_ror:8 row_mask:0xf bank_mask:0xf")
    for u in range(2):
        A(f"v_lshlrev_b32 v{U+4*u+2}, 16, v{G+4*u+1}")
    A(f"v_mov_b32 v{T+1}, v{T}")
    for u in range(2):
        A(f"v_and_b32 v{U+4*u+3}, 0xffff0000, v{G+4*u+1}")
    A(f"v_permlane16_swap_b32 v{T}, v{T+1}\nv_max_f32 v{T}, v{T}, v{T+1}\nv_mov_b32 v{T+1}, v{T}")
    for u in range(2, 4):
        A(f"v_lshlrev_b32 v{U+4*u}, 16, v{G+4*u}")
    A(f"v_permlane32_swap_b32 v{T}, v{T+1}\nv_max_f32 v{T}, v{T}, v{T+1}")
    for u in range(4): A(f"v_sub_f32 v{G+4*u+2}, v{G+4*u+2}, v{T}")
    for u in range(4): A(f"v_exp_f32 v{G+4*u+2}, v{G+4*u+2}")
    for u in range(2, 4):
        A(f"v_and_b32 v{U+4*u+1}, 0xffff0000, v{G+4*u}\nv_lshlrev_b32 v{U+4*u+2}, 16, v{G+4*u+1}\nv_and_b32 v{U+4*u+3}, 0xffff0000, v{G+4*u+1}")
    A(f"v_pk_mul_f32 {vr(ACC,2)}, {vr(U,2)}, {vr(G+2,2)} op_sel_hi:[1,0]\nv_pk_mul_f32 {vr(ACC+2,2)}, {vr(U+2,2)}, {vr(G+2,2)} op_sel_hi:[1,0]")
    A(f"v_add_f32 v{T}, v{G+2}, v{G+6}\nv_add_f32 v{T+1}, v{G+10}, v{G+14}")
    for u in range(1, 4):
        A(f"v_pk_fma_f32 {vr(ACC,2)}, {vr(U+4*u,2)}, {vr(G+4*u+2,2)}, {vr(ACC,2)} op_sel_hi:[1,0,1]\nv_pk_fma_f32 {vr(ACC+2,2)}, {vr(U+4*u+2,2)}, {vr(G+4*u+2,2)}, {vr(ACC+2,2)} op_sel_hi:[1,0,1]")
        if u == 1: A(f"v_add_f32 v{T}, v{T}, v{T+1}")
    A(f"v_add_f32_dpp v{T}, v{T}, v{T} row_ror:8 row_mask:0xf bank_mask:0xf")
    for r in range(4): A(f"v_add_f32_dpp v{ACC+r}, v{ACC+r}, v{ACC+r} row_ror:8 row_mask:0xf bank_mask:0xf")
    A(f"v_mov_b32 v{T+1}, v{T}")
    A(f"v_permlane16_swap_b32 v{T}, v{T+1}\nv_permlane16_swap_b32 v{ACC}, v{ACC+1}\nv_permlane16_swap_b32 v{ACC+2}, v{ACC+3}")
    A(f"v_add_f32 v{T}, v{T}, v{T+1}\nv_add_f32 v{ACC}, v{ACC}, v{ACC+1}\nv_add_f32 v{ACC+2}, v{ACC+2}, v{ACC+3}\nv_mov_b32 v{T+1}, v{T}")
    A(f"v_permlane32_swap_b32 v{ACC}, v{ACC+2}\nv_permlane32_swap_b32 v{T}, v{T+1}")
    A(f"v_add_f32 v{T}, v{T}, v{T+1}\nv_add_f32 v{ACC}, v{ACC}, v{ACC+2}\nv_rcp_f32 v{T}, v{T}")
    A(f"v_mul_f32 v{ACC}, v{ACC}, v{T}\nv_cvt_pk_bf16_f32 v{ACC}, v{ACC}, v{ACC}")
    A(f"ds_write_b32 v{VOR}, v{ACC} offset:{L_O}")
    A("s_waitcnt lgkmcnt(0)")
    stamp(7)
    A("s_barrier")
    stamp(9)
    write_stamps()
    if only == "A":
        A(f"s_cmp_lg_u32 s2, {apar}\ns_cbranch_scc1 LS_x\ns_sleep 100\nv_mov_b32 v{T+2}, 0\nv_mov_b32 v{T+3}, s{sE}\nbuffer_store_dword v{T+3}, v{T+2}, {srd(SRD_WS)}, 0 offen sc1\nLS_x:")
    A("s_endpgm")

    V.next = R0
    VXS = v("VXS"); VXG = v("VXG"); VFG = v("VFG")
    hi = max(hi, V.next)
    b_win = b_sched[0]
    A("L_roleB:")
    if only == "A": A("s_endpgm")
    A(f"s_cmp_ge_u32 s{sS}, 28\ns_cbranch_scc1 L_end")
    A(f"s_mul_i32 s{sPROD}, s{sG}, 28\ns_add_u32 s{sPROD}, s{sPROD}, s{sS}")
    A("s_cmp_eq_u32 s3, 8\ns_cbranch_scc1 L_roleSB")
    A(f"s_and_b32 s{s0}, s{sS}, 1\ns_lshl_b32 s{s0}, s{s0}, 9\ns_lshl_b32 s{s1}, s3, 2\ns_add_u32 s{s0}, s{s0}, s{s1}")
    A(f"s_lshl_b32 s{s1}, s{s0}, 1\nv_lshlrev_b32 v{T}, 2, v{CH}\nv_lshl_add_u32 v{T}, v{SL}, 1, v{T}\nv_add_u32 v{VXO}, s{s1}, v{T}")
    A(f"s_mul_i32 s{s0}, s{s0}, 7168\ns_lshr_b32 s{s1}, s{sPROD}, 2\ns_lshl_b32 s{s1}, s{s1}, 8\ns_add_u32 s{s0}, s{s0}, s{s1}")
    A(f"v_mul_u32_u24 v{T}, 7168, v{SL}\nv_add3_u32 v{VW1}, v{T}, v{CH}, s{s0}")
    pre_srd(SRD_X, 2048); pre_srd(SRD_W1, 7340032)
    A(f"s_mov_b32 s{sO1}, 0\ns_bitcmp0_b32 s{sS}, 1")
    A("s_waitcnt lgkmcnt(0)")
    A(f"s_cselect_b64 s[{SRD_W1}:{SRD_W1+1}], s[16:17], s[18:19]")
    fin_srd(SRD_X, 4)
    x_loads()
    A(f"s_load_dword s{sE}, s[26:27], 0")
    if xbar: A("s_barrier")
    cnt["w1"] = cnt["w2"] = 0
    assert b_pos >= b_win
    for n in range(b_win): w1_load(32 * 7168)
    build_srd(SRD_W2, 20, 7340032); build_srd(SRD_WS, 26, 268435456); build_srd(SRD_OUT, 22, 2048)
    stamp(0)
    A(f"s_lshl_b32 s{sF}, s{sG}, 4\ns_add_u32 s{sF}, s{sF}, s{sS}\ns_cmp_lt_u32 s{sS}, 16\ns_cselect_b32 s{sF}, s{sF}, -1")
    A(f"s_lshl_b32 s{s2}, s{sF}, 5\nv_lshrrev_b32 v{T+3}, 3, v{CH}\nv_add_u32 v{T+3}, s{s2}, v{T+3}")
    A(f"buffer_load_ushort v{XF}, v{T+3}, {srd(SRD_X)}, 0 offen")
    masks(8)
    A(f"s_lshl_b32 s{s0}, s{sPROD}, 5")
    w2_addr(s0)
    if fullline:
        A(f"s_lshl_b32 s{s2}, s3, 12\ns_lshr_b32 s{s3}, s{sF}, 1\ns_lshl_b32 s{s3}, s{s3}, 15\ns_add_u32 s{s2}, s{s2}, s{s3}\ns_and_b32 s{s3}, s{sF}, 1\ns_lshl_b32 s{s3}, s{s3}, 6\ns_add_u32 s{s2}, s{s2}, s{s3}\ns_add_u32 s{s2}, s{s2}, {PBASE}")
        A(f"v_lshrrev_b32 v{T}, 2, v0\nv_lshlrev_b32 v{T}, 7, v{T}\nv_and_b32 v{T+1}, 3, v0\nv_lshlrev_b32 v{T+1}, 4, v{T+1}\nv_add3_u32 v{VFG}, v{T}, v{T+1}, s{s2}")
    else:
        A(f"s_lshl_b32 s{s2}, s3, 11")
        A(f"s_lshl_b32 s{s3}, s{sF}, 14\ns_add_u32 s{s2}, s{s2}, s{s3}\ns_add_u32 s{s2}, s{s2}, {PBASE}\nv_lshl_add_u32 v{VFG}, v0, 4, s{s2}")
    A(f"s_add_u32 s{sPROD}, s{sPROD}, 128")
    pp_addr()
    A(f"s_waitcnt vmcnt({b_win+1}) lgkmcnt(0)")
    get_tag()
    stamp(1)
    layernorm()
    stamp(2)
    order = ["a"] * b_pos + ["w"] * b_early + ["a"] * (16 - b_pos)
    issued = gemv1(order, list(b_sched), b_win, ["xf"], 32 * 7168)
    assert issued == len(order)
    stamp(3)
    partial_store_lds()
    A("s_waitcnt lgkmcnt(0)\ns_barrier")
    if b_pubbar: A("s_barrier")
    n0 = cnt["w2"]
    while cnt["w2"] < 8:
        if cnt["w2"] - n0 >= b_ww: A(f"s_waitcnt vmcnt({b_ww-1})")
        w2_load()
    stamp(5)
    A("s_barrier")
    stamp(6)
    stage3(8, b_early)
    stamp(7)
    if only == "B": A("s_branch LB_done")
    A(f"s_cmp_eq_u32 s{sF}, -1\ns_cbranch_scc1 LB_done")
    A(f"s_cmp_lt_u32 s3, 7\ns_cselect_b32 s{s1}, {2048 if fullline else 1024}, 0")
    A(f"s_mov_b32 s{s2}, 0x0c0c0400\ns_mov_b32 s{s3}, 0x04000c0c")
    A("LB_fpoll:")
    A(f"buffer_load_dwordx4 {vr(G,4)}, v{VFG}, {srd(SRD_WS)}, 0 offen {pld}")
    A(f"buffer_load_dwordx4 {vr(G+4,4)}, v{VFG}, {srd(SRD_WS)}, s{s1} offen {pld}")
    A("s_waitcnt vmcnt(0)")
    for u in range(2):
        A(f"v_perm_b32 v{T+2*u}, v{G+4*u+1}, v{G+4*u}, s{s2}\nv_perm_b32 v{T+2*u+1}, v{G+4*u+3}, v{G+4*u+2}, s{s3}\nv_or_b32 v{T+2*u}, v{T+2*u}, v{T+2*u+1}")
    A(f"v_cmp_ne_u32 vcc, s{sTAG}, v{T}\nv_cmp_ne_u32 s[{C0}:{C0+1}], s{sTAG}, v{T+2}\ns_or_b64 s[{C0}:{C0+1}], s[{C0}:{C0+1}], vcc\ns_cbranch_scc0 LB_fok")
    if fsleep: A(f"s_sleep {fsleep}")
    A(f"s_sub_u32 s{sCNT}, s{sCNT}, 1\ns_cbranch_scc0 LB_fpoll\ns_mov_b32 s{sCNT}, 0")
    A("LB_fok:")
    stamp(8)
    for r in range(8): A(f"v_and_b32 v{G+r}, s{sMSK}, v{G+r}")
    A(f"s_cmp_eq_u32 s{s1}, 0\ns_cbranch_scc1 LB_f1")
    A(f"v_pk_add_f32 {vr(G,2)}, {vr(G,2)}, {vr(G+4,2)}\nv_pk_add_f32 {vr(G+2,2)}, {vr(G+2,2)}, {vr(G+6,2)}")
    A("LB_f1:")
    for c in ("row_ror:4", "row_ror:8"):
        for r in range(4): A(f"v_add_f32_dpp v{G+r}, v{G+r}, v{G+r} {c} row_mask:0xf bank_mask:0xf")
    A(f"v_and_b32 v{T}, 3, v0\nv_lshlrev_b32 v{T}, 7, v{T}")
    A(f"v_permlane16_swap_b32 v{G}, v{G+1}\nv_permlane16_swap_b32 v{G+2}, v{G+3}")
    A(f"v_add_f32 v{G}, v{G}, v{G+1}\nv_add_f32 v{G+2}, v{G+2}, v{G+3}")
    A(f"v_lshl_add_u32 v{T}, v{SL}, 5, v{T}\ns_lshl_b32 s{s2}, s3, 2\nv_add_u32 v{T}, s{s2}, v{T}")
    A(f"v_permlane32_swap_b32 v{G}, v{G+2}\nv_add_f32 v{G}, v{G}, v{G+2}")
    A("s_mov_b32 exec_lo, 0x000f000f\ns_mov_b32 exec_hi, 0x000f000f")
    A(f"ds_write_b32 v{T}, v{G} offset:{L_F}")
    A("s_mov_b64 exec, -1")
    A("s_waitcnt lgkmcnt(0)\ns_barrier")
    A("s_cmp_lg_u32 s3, 0\ns_cbranch_scc1 LB_done")
    A(f"v_lshlrev_b32 v{T+1}, 1, v{CH}")
    A(f"ds_read_b128 {vr(G,4)}, v{T+1} offset:{L_F}\nds_read_b128 {vr(G+4,4)}, v{T+1} offset:{L_F+16}")
    A(f"s_lshl_b32 s{s2}, s{sF}, 5\nv_lshrrev_b32 v{T}, 3, v{CH}\nv_add_u32 v{T}, s{s2}, v{T}\nv_lshlrev_b32 v{XF}, 16, v{XF}")
    A("s_waitcnt lgkmcnt(0)")
    A(f"v_pk_add_f32 {vr(G,2)}, {vr(G,2)}, {vr(G+2,2)}\nv_pk_add_f32 {vr(G+4,2)}, {vr(G+4,2)}, {vr(G+6,2)}")
    A(f"v_add_f32 v{G}, v{G}, v{G+1}\nv_add_f32 v{G+4}, v{G+4}, v{G+5}")
    A(f"v_cvt_pk_bf16_f32 v{G}, v{G}, v{G+4}")
    A(f"v_lshlrev_b32 v{G+1}, 16, v{G}\nv_and_b32 v{G+2}, 0xffff0000, v{G}")
    A(f"v_add_f32 v{G+1}, v{XF}, v{G+1}")
    rbf(G+1, f"v{G+1}")
    A(f"v_add_f32 v{G+1}, v{G+1}, v{G+2}\nv_cvt_pk_bf16_f32 v{G+1}, v{G+1}, v{G+1}")
    A("s_mov_b32 exec_lo, 0xffff\ns_mov_b32 exec_hi, 0")
    A(f"buffer_store_short v{G+1}, v{T}, {srd(SRD_OUT)}, 0 offen")
    A(f"s_cmp_lg_u32 s{sF}, 0\ns_cbranch_scc1 LB_noep")
    A(f"s_mov_b32 exec_lo, 1\nv_mov_b32 v{T+2}, 0\nv_mov_b32 v{T+3}, s{sE}")
    A(f"buffer_store_dword v{T+3}, v{T+2}, {srd(SRD_WS)}, 0 offen sc1")
    A("LB_noep:")
    A("s_mov_b64 exec, -1")
    A("LB_done:")
    if only == "B":
        A(f"s_cmp_lg_u32 s2, {1-apar}\ns_cbranch_scc1 LB_x\ns_sleep 127\nv_mov_b32 v{T+2}, 0\nv_mov_b32 v{T+3}, s{sE}\nbuffer_store_dword v{T+3}, v{T+2}, {srd(SRD_WS)}, 0 offen sc1\nLB_x:")
    if amp:
        A(f"s_cmp_lg_u32 s{sF}, 0\ns_cbranch_scc1 L_end\ns_cmp_lg_u32 s3, 0\ns_cbranch_scc1 L_end")
        A("s_memrealtime s[6:7]")
        A(f"v_lshlrev_b32 v{T}, 5, v0\nv_add_u32 v{T}, {TSBASE}, v{T}")
        A(f"buffer_load_dwordx4 {vr(G,4)}, v{T}, {srd(SRD_WS)}, 0 offen sc1\nbuffer_load_dwordx4 {vr(G+4,4)}, v{T}, {srd(SRD_WS)}, 0 offen offset:16 sc1\ns_waitcnt vmcnt(0) lgkmcnt(0)")
        for q in range(4):
            A(f"v_subrev_u32 v{G+2*q}, s80, v{G+2*q}\nv_add_u32 v{G+2*q}, 5000, v{G+2*q}\nv_cmp_eq_u32 vcc, s{sTAG}, v{G+2*q+1}")
            A(f"v_cndmask_b32 v{U+q}, -1, v{G+2*q}, vcc\nv_cndmask_b32 v{U+4+q}, 0, v{G+2*q}, vcc")
        A(f"v_min_u32 v{U}, v{U}, v{U+1}\nv_min_u32 v{U+2}, v{U+2}, v{U+3}\nv_min_u32 v{U}, v{U}, v{U+2}")
        A(f"v_max_u32 v{U+4}, v{U+4}, v{U+5}\nv_max_u32 v{U+6}, v{U+6}, v{U+7}\nv_max_u32 v{U+4}, v{U+4}, v{U+6}")
        A("s_mov_b32 s8, -1\ns_mov_b32 s9, 0")
        for ln in range(64):
            A(f"v_readlane_b32 s10, v{U}, {ln}\nv_readlane_b32 s11, v{U+4}, {ln}\ns_min_u32 s8, s8, s10\ns_max_u32 s9, s9, s11")
        A("s_sub_u32 s6, s6, s80\ns_add_u32 s6, s6, 5000")
        if amp == "skew": A("s_sub_u32 s12, s9, s8")
        elif amp == "total": A("s_sub_u32 s12, s6, s8")
        elif amp == "fromlast": A("s_sub_u32 s12, s6, s9")
        elif amp == "zero": A("s_mov_b32 s12, 0")
        A(f"s_mul_i32 s12, s12, 10\ns_add_u32 s12, s12, s8\ns_sub_u32 s12, s12, 5000\ns_add_u32 s12, s12, 3000")
        A(f"LB_pad:\ns_memrealtime s[4:5]\ns_waitcnt lgkmcnt(0)\ns_sub_u32 s4, s4, s80\ns_cmp_lt_i32 s4, s12\ns_cbranch_scc1 LB_pad")
    stamp(9)
    write_stamps()
    A("s_endpgm")
    A("L_roleSB:")
    A(f"s_lshl_b32 s{s2}, s{sPROD}, 10\ns_add_u32 s{s2}, s{s2}, {XBASE}\nv_lshl_add_u32 v{VXG}, v0, 4, s{s2}")
    A(f"s_and_b32 s{s2}, s{sPROD}, 0xfc\ns_lshl_b32 s{s2}, s{s2}, 10\ns_and_b32 s{s3}, s{sPROD}, 3\ns_lshl_b32 s{s3}, s{s3}, 8\ns_add_u32 s{s2}, s{s2}, s{s3}\ns_add_u32 s{s2}, s{s2}, {XBASE}")
    A(f"v_lshlrev_b32 v{T}, 10, v{SL}\nv_add3_u32 v{VXS}, v{T}, v{CH}, s{s2}")
    A("s_waitcnt lgkmcnt(0)")
    A(f"s_load_dword s{sE}, s[26:27], 0")
    build_srd(SRD_WS, 26, 268435456)
    if xbar: A("s_barrier")
    A(f"buffer_load_dwordx4 {vr(G,4)}, v{VXG}, {srd(SRD_WS)}, 0 offen")
    A(f"v_lshlrev_b32 v{T+4}, 3, v0")
    A("s_waitcnt lgkmcnt(0)")
    get_tag(False)
    poll_init()
    amp_pub()
    A("s_waitcnt vmcnt(0)\ns_barrier")
    reduce8()
    pub_local(PB, VXS)
    if b_pubbar: A("s_barrier")
    stamp(4)
    A("LB_xpoll:")
    A(f"buffer_load_dwordx4 {vr(G,4)}, v{VXG}, {srd(SRD_WS)}, s{sPATH} offen sc1")
    A("s_waitcnt vmcnt(0)")
    A(f"v_cmp_ne_u32 vcc, s{sTAG}, v{G+2}\ns_cmp_eq_u64 vcc, 0\ns_cbranch_scc1 LB_xok")
    poll_tail("LB_xpoll", lambda: pub_global(PB, VXS))
    A("LB_xok:")
    stamp(5)
    A(f"v_permlane16_swap_b32 v{G}, v{G+1}\nv_add_f32 v{G}, v{G}, v{G+1}")
    rbf(G, f"v{G}")
    A(f"s_mov_b32 s{s2}, 0x3d372713")
    A(f"v_mul_f32 v{U}, v{G}, v{G}\nv_mov_b32 v{G+1}, v{G}\nv_fma_f32 v{U}, v{U}, s{s2}, 1.0\nv_mul_f32 v{U}, v{U}, v{G}")
    A(f"v_mul_f32 v{U}, 0xc0135761, v{U}\nv_permlane32_swap_b32 v{G+1}, v{G+2}\nv_exp_f32 v{U}, v{U}")
    A(f"v_lshrrev_b32 v{T+2}, 1, v{CH}\nv_add_f32 v{U}, 1.0, v{U}\nv_rcp_f32 v{U}, v{U}\nv_lshl_add_u32 v{T+2}, v{SL}, 2, v{T+2}\nv_mul_f32 v{U}, v{U}, v{G}")
    rbf(U, f"v{U}")
    A(f"v_mul_f32 v{U}, v{U}, v{G+2}\ns_mov_b32 exec_hi, 0\nv_cvt_pk_bf16_f32 v{U}, v{U}, v{U}")
    A(f"ds_write_b32 v{T+2}, v{U} offset:{L_O}")
    A("s_mov_b32 exec_hi, -1")
    pub_global(PB, VXS)
    A("s_waitcnt lgkmcnt(0)\ns_barrier")
    stamp(9)
    write_stamps()
    A("L_end:")
    A("s_endpgm")

    body, nins = fix_hazards(L)
    nv = max(hi, R0 + 2)
    acc = (nv + 3) // 4 * 4
    head = [l for l in open(f"cdna_kernels/{NAME}.s.ref").read().split("\n") if l.startswith(";") and "@launch" not in l and "Override" not in l and "grid=ceil" not in l]
    out = "\n".join(head) + f"\n; @launch grid=(256,1,1) block=({NW*64},1,1) lds={LDS_BYTES}\n"
    out += f'.amdgcn_target "amdgcn-amd-amdhsa--gfx950"\n.text\n.globl {NAME}_kernel\n.p2align 8\n.type {NAME}_kernel,@function\n{NAME}_kernel:\n'
    txt = "\n".join(("" if l.endswith(":") else "    ") + l for l in body) + "\n"
    txt = txt.replace("CODE_LINES", f"(L_end - {NAME}_kernel) / 128")
    out += txt
    out += f""".section .rodata,"a"
.p2align 6
.amdhsa_kernel {NAME}_kernel
  .amdhsa_next_free_vgpr {nv}
  .amdhsa_next_free_sgpr 82
  .amdhsa_accum_offset {acc}
  .amdhsa_group_segment_fixed_size 0
  .amdhsa_kernarg_size 96
  .amdhsa_user_sgpr_count 2
  .amdhsa_user_sgpr_kernarg_segment_ptr 1
  .amdhsa_system_sgpr_workgroup_id_x 1
  .amdhsa_float_denorm_mode_32 3
.end_amdhsa_kernel
"""
    return out

if __name__ == "__main__":
    kw = eval("dict(" + (sys.argv[2] if len(sys.argv) > 2 else "") + ")")
    txt = gen(**kw)
    open(sys.argv[1], "w").write(txt)
```

```python
import sys
from asmdsl import fix_hazards, Regs

NAME = "parallel_sum__sliding_block_cached__geglu_ffn__decode"
QBASE = 0x10000
OBASE = 0x40000
XBASE = 0xC0000
PBASE = 0x100000
TSBASE = 0x300000
DELTA = 0x400000
L_R = 0; L_Q = 4096; L_P = 6656; L_M = 9216; L_O = 9280; L_F = 9472; L_S = 9984; L_K = 12288; L_V = 45056
LDS_BYTES = 83968
NW = 9

def roles(kw):
    import numpy as np
    wg = np.arange(256); x = wg & 7; i = wg >> 3
    return {"A": (x % 2 == 1), "B": (x % 2 == 0) & (i < 28)}

def gen(debug=False, pol="nt", a_w=3, a_w2=4, a_pre="KK", a_mid="KKV", a_post="VVV", a_pts=(1, 1), a_pubbar=True, a_pollwait=1, a_qbar=True,
        a_ww=3, b_sched=(4,) * 4 + (3,) * 21, b_early=1, b_pos=16, b_ww=7, b_pubbar=True, fsleep=0,
        spin=2000000, limit=48, diagpad=0, apar=1, xbar=True, codepf=True, only=None,
        clk="s_memrealtime", amp=None, probe=None, osleep=0, fullline=True, pst="sc1", pld="sc1", ptouch=None, onsets=1, xnsets=1, stag=4, w0=3, adv=3, sprio=3, sflag=True, tlb=False, tlbout=False, fnsets=1, fstag=2, fhint=0, fhsleep=0):
    if amp: diagpad = 30
    L = []
    def A(s):
        for x in s.split("\n"):
            x = x.strip()
            if x: L.append(x)
    def stamp(k):
        if debug and (debug != "lite" or k == 9): A(f"{clk} s[{4+2*k}:{5+2*k}]")
    full = debug and debug != "lite"
    V = Regs("v", 1, 168)
    v = lambda name, n=1: V.alloc(name, n)
    vr = lambda r, n: f"v[{r}:{r+n-1}]"
    SL = v("SL"); CH = v("CH"); XD = v("XD")
    T = v("T", 8); M = v("M", 4); TB = v("TB", 4); AF = v("AF", 8); ACC = v("ACC", 4); PB = v("PB", 4)
    W1 = v("W1", 32); W2 = v("W2", 32); XS = v("XS", 16); U = v("U", 16)
    assert XS == W2 + 32 and U == XS + 16
    XO = XS + 8; G = XS
    QF = v("QF", 16)
    MB = v("MB", 2); SD = v("SD", 2); RI = v("RI", 2)
    VW1 = v("VW1"); VW2 = v("VW2"); VXO = v("VXO"); VPP = v("VPP"); XF = v("XF"); VRW = v("VRW"); VOR = v("VOR")
    R0 = V.next
    SRD_W1, SRD_W2, SRD_WS, SRD_X, SRD_OUT = 28, 32, 44, 48, 52
    SRD_K, SRD_V = 28, 32
    sE, sTAG, sG, sS, sPROD, sF = 56, 57, 58, 59, 60, 61
    sO1, sO2, sDEL = 62, 63, 64
    s0, s1, s2, s3 = 66, 67, 68, 69
    sPATH, sRND, sCNT, sMSK = 70, 71, 72, 73
    C0, C1, C2 = 74, 76, 78
    srd = lambda r: f"s[{r}:{r+3}]"

    if debug or diagpad: A(f"{clk} s[80:81]")
    A("s_load_dwordx16 s[4:19], s[0:1], 0")
    A("s_load_dwordx8 s[20:27], s[0:1], 64")
    if codepf:
        A(f"s_getpc_b64 s[{C0}:{C0+1}]\nv_lshlrev_b32 v{T}, 7, v0\nv_cmp_gt_u32 vcc, CODE_LINES, v0\ns_and_saveexec_b64 s[{C1}:{C1+1}], vcc\ns_cbranch_execz L_nopf")
        A(f"global_load_dword v{W1+31}, v{T}, s[{C0}:{C0+1}]\nL_nopf:\ns_mov_b64 exec, -1")
    sST = 65
    isB = f"s_bitcmp{1-apar}_b32 s2, 0"
    A(f"v_lshrrev_b32 v{T}, 6, v0\nv_and_b32 v0, 63, v0\ns_bfe_u32 s{sG}, s2, 0x20001\nv_readfirstlane_b32 s3, v{T}")
    A(f"s_lshr_b32 s{sS}, s2, 3\nv_lshrrev_b32 v{SL}, 4, v0\nv_and_b32 v{CH}, 15, v0\nv_lshlrev_b32 v{CH}, 4, v{CH}")
    A(f"s_lshr_b32 s{s0}, s{sS}, 3\ns_and_b32 s{s1}, s{sS}, 7\ns_lshl3_add_u32 s{s1}, s{sG}, s{s1}")
    A(f"s_and_b32 s{s2}, s{sS}, 1\ns_lshl_b32 s{s2}, s{s2}, 1\ns_lshr_b32 s{s3}, s{sS}, 2\ns_mul_i32 s{sF}, s{sG}, 7\ns_add_u32 s{s3}, s{s3}, s{sF}")
    A(f"s_movk_i32 s{sST}, 0x2000\n{isB}")
    A(f"s_cselect_b32 s{s0}, s{s2}, s{s0}\ns_cselect_b32 s{s1}, s{s3}, s{s1}\ns_cmovk_i32 s{sST}, 0x1c00\ns_cselect_b32 s{s2}, 28, 32")
    A(f"s_cmp_ge_u32 s{sS}, s{s2}\ns_cbranch_scc1 L_end")
    if only == "A": A(f"{isB}\ns_cbranch_scc1 L_end")
    if only == "B": A(f"{isB}\ns_cbranch_scc0 L_end")
    A("s_cmp_eq_u32 s3, 8\ns_cbranch_scc1 L_roleS")
    A(f"s_lshl_b32 s{s0}, s{s0}, 6\ns_add_u32 s{s0}, s{s0}, s3\ns_lshl_b32 s{s0}, s{s0}, 2")
    A(f"s_mul_i32 s{s2}, s{s0}, s{sST}\ns_lshl_b32 s{s1}, s{s1}, 8\ns_add_u32 s{s2}, s{s2}, s{s1}")
    A(f"v_mad_u32_u24 v{VW1}, v{SL}, s{sST}, v{CH}\nv_add_u32 v{VW1}, s{s2}, v{VW1}")
    A(f"s_lshl_b32 s{SRD_W1+2}, s{sST}, 10\ns_mov_b32 s{SRD_W1+3}, 0x20000\ns_lshl_b32 s{sST}, s{sST}, 5\ns_mov_b32 s{sO1}, 0\ns_bitcmp0_b32 s{sS}, 1")
    A("s_waitcnt lgkmcnt(0)")
    A(f"s_cselect_b64 s[{SRD_W1}:{SRD_W1+1}], s[16:17], s[18:19]\n{isB}\ns_cselect_b64 s[{SRD_W1}:{SRD_W1+1}], s[{SRD_W1}:{SRD_W1+1}], s[10:11]")
    ENTRY_MARK = len(L)

    def build_srd(r, p, size):
        A(f"s_mov_b64 s[{r}:{r+1}], s[{p}:{p+1}]\ns_mov_b32 s{r+2}, {size}\ns_mov_b32 s{r+3}, 0x20000")
    def pre_srd(r, size): A(f"s_mov_b32 s{r+2}, {size}\ns_mov_b32 s{r+3}, 0x20000")
    def fin_srd(r, p): A(f"s_mov_b64 s[{r}:{r+1}], s[{p}:{p+1}]")
    def masks(J2):
        A(f"v_and_b32 v{T}, 1, v0\nv_lshlrev_b32 v{T}, 4, v{T}\nv_mov_b32 v{T+1}, 0xffff\nv_lshlrev_b32 v{T+1}, v{T}, v{T+1}")
        A(f"v_bfe_u32 v{T+2}, v0, 1, 2")
        for r, c in enumerate((C0, C1, C2)): A(f"v_cmp_eq_u32 s[{c}:{c+1}], {r}, v{T+2}")
        A(f"v_cmp_eq_u32 vcc, 3, v{T+2}")
        for r, c in enumerate((C0, C1, C2)): A(f"v_cndmask_b32 v{M+r}, 0, v{T+1}, s[{c}:{c+1}]")
        A(f"v_cndmask_b32 v{M+3}, 0, v{T+1}, vcc")
        A(f"v_and_b32 v{T}, {(J2-1)*16}, v{CH}\nv_lshl_add_u32 v{VOR}, v{SL}, 2, v{T}")
        A(f"s_lshl_b32 s{s2}, s3, 9\nv_lshlrev_b32 v{T}, 1, v{CH}\nv_lshl_add_u32 v{T}, v{SL}, 4, v{T}\nv_add_u32 v{VRW}, s{s2}, v{T}")
    def wave_sum(r):
        for c in ("row_shr:1", "row_shr:2", "row_shr:4", "row_shr:8"):
            A(f"v_add_f32_dpp v{r}, v{r}, v{r} {c} row_mask:0xf bank_mask:0xf bound_ctrl:0")
        A(f"v_add_f32_dpp v{r}, v{r}, v{r} row_bcast:15 row_mask:0xa bank_mask:0xf")
        A(f"v_add_f32_dpp v{r}, v{r}, v{r} row_bcast:31 row_mask:0xc bank_mask:0xf")
    def rbf(dst, src):
        A(f"v_cvt_pk_bf16_f32 v{dst}, {src}, {src}\nv_and_b32 v{dst}, 0xffff0000, v{dst}")
    def ln_stats():
        for k in range(8):
            A(f"v_lshlrev_b32 v{U+2*k}, 16, v{XS+k}\nv_and_b32 v{U+2*k+1}, 0xffff0000, v{XS+k}")
        A(f"v_pk_add_f32 {vr(T,2)}, {vr(U,2)}, {vr(U+2,2)}\nv_pk_add_f32 {vr(T+2,2)}, {vr(U+4,2)}, {vr(U+6,2)}")
        A(f"v_pk_add_f32 {vr(T+4,2)}, {vr(U+8,2)}, {vr(U+10,2)}\nv_pk_add_f32 {vr(T+6,2)}, {vr(U+12,2)}, {vr(U+14,2)}")
        A(f"v_pk_add_f32 {vr(T,2)}, {vr(T,2)}, {vr(T+2,2)}\nv_pk_add_f32 {vr(T+4,2)}, {vr(T+4,2)}, {vr(T+6,2)}")
        A(f"v_pk_add_f32 {vr(T,2)}, {vr(T,2)}, {vr(T+4,2)}\nv_add_f32 v{T}, v{T}, v{T+1}")
        wave_sum(T)
        A(f"v_mul_f32 v{T}, 0x3a800000, v{T}\nv_readlane_b32 s{s2}, v{T}, 63")
        for k in range(8):
            A(f"v_pk_add_f32 {vr(U+2*k,2)}, {vr(U+2*k,2)}, s[{s2}:{s2+1}] op_sel_hi:[1,0] neg_lo:[0,1] neg_hi:[0,1]")
        A(f"v_pk_mul_f32 {vr(T,2)}, {vr(U,2)}, {vr(U,2)}\nv_pk_mul_f32 {vr(T+2,2)}, {vr(U+2,2)}, {vr(U+2,2)}")
        for k in range(2, 8):
            t = T + 2 * (k & 1)
            A(f"v_pk_fma_f32 {vr(t,2)}, {vr(U+2*k,2)}, {vr(U+2*k,2)}, {vr(t,2)}")
        A(f"v_pk_add_f32 {vr(T,2)}, {vr(T,2)}, {vr(T+2,2)}\nv_add_f32 v{T}, v{T}, v{T+1}")
        rbf(MB, f"s{s2}")
        wave_sum(T)
        A(f"v_mul_f32 v{T}, 0x3a800000, v{T}\nv_readlane_b32 s{s2}, v{T}, 63")
        rbf(SD, f"s{s2}"); A(f"v_add_f32 v{SD}, 0x3727c5ac, v{SD}"); rbf(SD, f"v{SD}"); A(f"v_sqrt_f32 v{SD}, v{SD}")
        A("s_waitcnt lgkmcnt(0)")
        get_tag(False)
        A(f"v_mov_b32 v{T+4}, v{MB}\nv_mov_b32 v{T+3}, 0\nv_mov_b32 v{T+7}, 1")
        rbf(T+5, f"v{SD}"); A(f"v_rcp_f32 v{T+6}, v{T+5}\ns_nop 0")
        A(f"ds_write_b128 v{T+3}, {vr(T+4,4)} offset:{L_S}")
        if not sflag: A("s_waitcnt lgkmcnt(0)\ns_barrier")
    def ln_own(lbl):
        A(f"v_mov_b32 v{T+3}, 0\nv_lshlrev_b32 v{U}, 16, v{XO}")
        if not sflag: A("s_barrier")
        A(f"{lbl}:\nds_read_b128 {vr(T+4,4)}, v{T+3} offset:{L_S}\ns_waitcnt lgkmcnt(0)")
        if sflag: A(f"v_cmp_eq_u32 vcc, 0, v{T+7}\ns_cbranch_vccnz {lbl}")
        A(f"v_sub_f32 v{U}, v{U}, v{T+4}")
        rbf(U, f"v{U}")
        A(f"v_mul_f32 v{T}, v{U}, v{T+6}\nv_fma_f32 v{T+1}, -v{T}, v{T+5}, v{U}\nv_fma_f32 v{T}, v{T+1}, v{T+6}, v{T}")
        A(f"v_cvt_pk_bf16_f32 v{XD}, v{T}, v{T}")
    def af_build(j):
        for r in range(4): A(f"v_and_b32_dpp v{AF+4*(j&1)+r}, v{XD}, v{M+r} row_newbcast:{j} row_mask:0xf bank_mask:0xf")
    def af(j): return vr(AF+4*(j&1), 4)
    def get_tag(bytes_=True):
        A(f"s_add_u32 s{sE}, s{sE}, 1\ns_mul_i32 s{sTAG}, s{sE}, 0x01010101")
        if bytes_:
            A(f"v_mov_b32 v{TB}, s{sTAG}\nv_lshrrev_b32 v{TB+1}, 8, v{TB}\nv_lshrrev_b32 v{TB+2}, 16, v{TB}\nv_lshrrev_b32 v{TB+3}, 24, v{TB}")
            A(f"s_mov_b32 s{sMSK}, 0xffffff00")
        A(f"s_mov_b32 s{sCNT}, {spin}\ns_mov_b32 s{sDEL}, {DELTA}")
    def amp_pub():
        if not amp: return
        A(f"s_lshl_b32 s{s2}, s2, 3\ns_add_u32 s{s2}, s{s2}, {TSBASE}\nv_mov_b32 v{T}, s80\nv_mov_b32 v{T+1}, s{sTAG}\nv_mov_b32 v{T+2}, s{s2}")
        A(f"s_mov_b64 exec, 1\nbuffer_store_dwordx2 {vr(T,2)}, v{T+2}, {srd(SRD_WS)}, 0 offen sc1\ns_mov_b64 exec, -1\ns_nop 1")
    def x_stats_loads():
        build_srd(SRD_X, 4, 2048)
        A(f"v_lshlrev_b32 v{T+2}, 5, v0")
        A(f"buffer_load_dwordx4 {vr(XS,4)}, v{T+2}, {srd(SRD_X)}, 0 offen\nbuffer_load_dwordx4 {vr(XS+4,4)}, v{T+2}, {srd(SRD_X)}, 0 offen offset:16")
    def x_own_load(J):
        build_srd(SRD_X, 4, 2048)
        A(f"s_lshl_b32 s{s1}, s{s0}, 1\nv_and_b32 v{T}, {(J-1)*16}, v{CH}\nv_lshlrev_b32 v{T}, 2, v{T}\nv_lshl_add_u32 v{T}, v{SL}, 1, v{T}\nv_add_u32 v{VXO}, s{s1}, v{T}")
        A(f"buffer_load_ushort v{XO}, v{VXO}, {srd(SRD_X)}, 0 offen")
    def partial_store_lds():
        A("s_mov_b32 exec_hi, 0")
        A(f"ds_write_b128 v{VRW}, {vr(ACC,4)} offset:{L_R}")
        A("s_mov_b32 exec_hi, -1")
    def reduce8():
        for k in range(8): A(f"ds_read_b64 {vr(U+2*k,2)}, v{T+4} offset:{L_R+k*512}")
        A(f"v_mov_b32 v{PB+2}, s{sTAG}\nv_mov_b32 v{PB+3}, s{sTAG}")
        A(f"s_waitcnt lgkmcnt({0 if full else 4})")
        A(f"v_pk_add_f32 {vr(U,2)}, {vr(U,2)}, {vr(U+2,2)}\nv_pk_add_f32 {vr(U+4,2)}, {vr(U+4,2)}, {vr(U+6,2)}")
        A("s_waitcnt lgkmcnt(0)")
        A(f"v_pk_add_f32 {vr(U+8,2)}, {vr(U+8,2)}, {vr(U+10,2)}\nv_pk_add_f32 {vr(U+12,2)}, {vr(U+12,2)}, {vr(U+14,2)}")
        A(f"v_pk_add_f32 {vr(U,2)}, {vr(U,2)}, {vr(U+4,2)}\nv_pk_add_f32 {vr(U+8,2)}, {vr(U+8,2)}, {vr(U+12,2)}")
        A(f"v_pk_add_f32 {vr(PB,2)}, {vr(U,2)}, {vr(U+8,2)}")
    def pub_local(data, addr, off=0):
        A(f"buffer_store_dwordx4 {vr(data,4)}, v{addr}, {srd(SRD_WS)}, 0 offen")
    def pub_global(data, addr):
        A(f"buffer_store_dwordx4 {vr(data,4)}, v{addr}, {srd(SRD_WS)}, s{sDEL} offen sc1")
    def poll_init():
        A(f"s_mov_b32 s{sPATH}, 0\ns_mov_b32 s{sRND}, 0")
    def poll_tail(lbl, late=None, sleep=0):
        if sleep: A(f"s_sleep {sleep}")
        A(f"s_add_u32 s{sRND}, s{sRND}, 1\ns_cmp_lt_u32 s{sRND}, {limit}\ns_cbranch_scc1 {lbl}")
        if late:
            A(f"s_cmp_lg_u32 s{sRND}, {limit}\ns_cbranch_scc1 {lbl}_sw")
            late()
            A(f"{lbl}_sw:")
        A(f"s_xor_b32 s{sPATH}, s{sPATH}, s{sDEL}")
        A(f"s_sub_u32 s{sCNT}, s{sCNT}, 1\ns_cbranch_scc0 {lbl}\ns_mov_b32 s{sCNT}, 0")
    def pipe_poll(lbl, nsets, sets, nld, loads, check, copy, late=None):
        for k in range(nsets):
            loads(sets[k])
            if k < nsets - 1 and stag: A(f"s_sleep {stag}")
        A(f"{lbl}:")
        for k in range(nsets):
            A(f"s_waitcnt vmcnt({nld*(nsets-1)})")
            check(sets[k], f"{lbl}_ok{k}")
            if k == nsets - 1:
                A(f"s_add_u32 s{sRND}, s{sRND}, 1\ns_cmp_lt_u32 s{sRND}, {limit}\ns_cbranch_scc1 {lbl}_go")
                if late:
                    A(f"s_cmp_lg_u32 s{sRND}, {limit}\ns_cbranch_scc1 {lbl}_sw")
                    late()
                    A("s_waitcnt vmcnt(0)")
                    A(f"{lbl}_sw:")
                A(f"s_xor_b32 s{sPATH}, s{sPATH}, s{sDEL}")
                A(f"s_sub_u32 s{sCNT}, s{sCNT}, 1\ns_cbranch_scc1 {lbl}_ok{k}")
                A(f"{lbl}_go:")
            loads(sets[k])
        A(f"s_branch {lbl}")
        for k in range(nsets):
            A(f"{lbl}_ok{k}:")
            copy(sets[k])
            if k < nsets - 1: A(f"s_branch {lbl}_done")
        A(f"{lbl}_done:")
    def w2_addr(srow):
        A(f"s_lshl_b32 s{s2}, s{srow}, 11\ns_lshl_b32 s{s3}, s3, 8\ns_add_u32 s{s2}, s{s2}, s{s3}")
        A(f"v_lshlrev_b32 v{T}, 11, v{SL}\nv_add3_u32 v{VW2}, v{T}, v{CH}, s{s2}\ns_mov_b32 s{sO2}, 0")
    cnt = {"w1": 0, "w2": 0}
    def w1_load(step):
        j = cnt["w1"]; cnt["w1"] += 1
        A(f"buffer_load_dwordx4 {vr(W1+4*(j&7),4)}, v{VW1}, {srd(SRD_W1)}, s{sO1} offen {pol}")
        if j < 15: A(f"s_add_u32 s{sO1}, s{sO1}, s{sST}")
    def w2_load(n=1):
        for _ in range(n):
            j = cnt["w2"]; cnt["w2"] += 1
            A(f"buffer_load_dwordx4 {vr(W2+4*j,4)}, v{VW2}, {srd(SRD_W2)}, s{sO2} offen {pol}\ns_add_u32 s{sO2}, s{sO2}, 8192")
    def pp_addr():
        if fullline:
            A(f"v_bfe_u32 v{T}, v0, 2, 2\nv_lshlrev_b32 v{T}, 15, v{T}\nv_and_b32 v{T+1}, 3, v0\nv_lshlrev_b32 v{T+1}, 5, v{T+1}\nv_and_b32 v{T+2}, 16, v0")
            A(f"v_add3_u32 v{T}, v{T}, v{T+1}, v{T+2}")
            A(f"s_lshl_b32 s{s2}, s3, 17\ns_lshl_b32 s{s3}, s{sPROD}, 7\ns_add_u32 s{s2}, s{s2}, s{s3}\ns_add_u32 s{s2}, s{s2}, {PBASE}")
            A(f"v_add_u32 v{VPP}, s{s2}, v{T}")
            return
        A(f"v_bfe_u32 v{T}, v0, 1, 3\nv_lshlrev_b32 v{T}, 14, v{T}\nv_and_b32 v{T+1}, 1, v0\nv_lshlrev_b32 v{T+1}, 5, v{T+1}\nv_and_b32 v{T+2}, 16, v0")
        A(f"v_add3_u32 v{T}, v{T}, v{T+1}, v{T+2}")
        A(f"s_lshl_b32 s{s2}, s3, 17\ns_lshl_b32 s{s3}, s{sPROD}, 6\ns_add_u32 s{s2}, s{s2}, s{s3}\ns_add_u32 s{s2}, s{s2}, {PBASE}")
        A(f"v_add_u32 v{VPP}, s{s2}, v{T}")
    def stage3(n, nearly, younger=0):
        assert cnt["w2"] == n
        A(f"ds_read_b32 v{XD}, v{VOR} offset:{L_O}")
        A("s_waitcnt lgkmcnt(0)")
        af_build(0)
        for j in range(n):
            if j < n - 1: af_build(j + 1)
            if j >= nearly: A(f"s_waitcnt vmcnt({n-1-j+younger})")
            A(f"v_mfma_f32_16x16x32_bf16 {vr(ACC,4)}, {af(j)}, {vr(W2+4*j,4)}, {vr(ACC,4) if j else 0}")
        A("s_mov_b32 exec_hi, 0")
        for r in range(4): A(f"v_bfi_b32 v{T+r}, s{sMSK}, v{ACC+r}, v{TB+r}")
        A(f"buffer_store_dwordx4 {vr(T,4)}, v{VPP}, {srd(SRD_WS)}, 0 offen {pst}")
        A("s_mov_b32 exec_hi, -1")
    def write_stamps(n=10):
        if not debug: return
        A("s_waitcnt lgkmcnt(0)")
        for k in range(n): A(f"v_writelane_b32 v{T+4}, s{4+2*k}, {k}")
        A(f"v_writelane_b32 v{T+4}, s80, 15")
        A(f"s_lshl_b32 s{s2}, s2, 4\ns_add_u32 s{s2}, s{s2}, s3\ns_lshl_b32 s{s2}, s{s2}, 6\ns_add_u32 s{s2}, s{s2}, {TSBASE}")
        A(f"v_lshlrev_b32 v{T+5}, 2, v0\nv_add_u32 v{T+5}, s{s2}, v{T+5}")
        A("s_mov_b32 exec_lo, 0xffff\ns_mov_b32 exec_hi, 0")
        A(f"buffer_store_dword v{T+4}, v{T+5}, {srd(SRD_WS)}, 0 offen")
        A("s_mov_b64 exec, -1")
    def check4(regs, ok):
        A(f"v_cmp_ne_u32 vcc, s{sTAG}, v{regs[0]}\nv_cmp_ne_u32 s[{C0}:{C0+1}], s{sTAG}, v{regs[1]}\nv_cmp_ne_u32 s[{C1}:{C1+1}], s{sTAG}, v{regs[2]}\nv_cmp_ne_u32 s[{C2}:{C2+1}], s{sTAG}, v{regs[3]}")
        A(f"s_or_b64 s[{C0}:{C0+1}], s[{C0}:{C0+1}], vcc\ns_or_b64 s[{C1}:{C1+1}], s[{C1}:{C1+1}], s[{C2}:{C2+1}]\ns_or_b64 s[{C0}:{C0+1}], s[{C0}:{C0+1}], s[{C1}:{C1+1}]\ns_cbranch_scc0 {ok}")
    def gemv1(order, sched, win0, extra, step, n=16, other=None):
        pos_of = [p for p, e in enumerate(order) if e == "a"]
        seq = list(extra)
        st = {"issued": win0}
        def issue():
            e = order[st["issued"]]
            if e == "a": w1_load(step)
            elif other: other()
            else: w2_load()
            seq.append(st["issued"]); st["issued"] += 1
        af_build(0)
        for j in range(n):
            if j < n - 1: af_build(j + 1)
            pos = pos_of[j]
            while st["issued"] <= min(pos + sched[pos] - 2, len(order) - 1) or pos not in seq:
                A(f"s_waitcnt vmcnt({max(sched[st['issued'] - 1] - 1, 0)})"); issue()
            A(f"s_waitcnt vmcnt({len(seq)-1-seq.index(pos)})")
            A(f"v_mfma_f32_16x16x32_bf16 {vr(ACC,4)}, {af(j)}, {vr(W1+4*(j&7),4)}, {vr(ACC,4) if j else 0}")
            while st["issued"] < len(order) and st["issued"] - (pos + 1) < sched[pos + 1]:
                issue()
        return st["issued"]

    cnt["w1"] = cnt["w2"] = 0
    for n in range(w0): w1_load(0)
    A(f"s_load_dword s{sE}, s[26:27], 0")
    A(f"{isB}\ns_cbranch_scc1 L_roleB\ns_branch L_roleA")
    A("L_roleS:")
    if sprio: A(f"s_setprio {sprio}")
    pre_srd(SRD_X, 2048)
    A(f"v_lshlrev_b32 v{T+2}, 5, v0")
    A("s_waitcnt lgkmcnt(0)")
    fin_srd(SRD_X, 4)
    A(f"buffer_load_dwordx4 {vr(XS,4)}, v{T+2}, {srd(SRD_X)}, 0 offen\nbuffer_load_dwordx4 {vr(XS+4,4)}, v{T+2}, {srd(SRD_X)}, 0 offen offset:16")
    A("s_branch L_roleS2")
    A("L_roleA:")
    x_own_load(8)
    for n in range(w0, a_w): w1_load(0)
    seqA = list(range(w0)) + ["x"] + list(range(w0, a_w))
    build_srd(SRD_WS, 26, 268435456)
    masks(8)
    V.next = R0
    KA = QF; VA = QF + 4; KR = QF + 8; VR_ = v("VR"); QR = v("QR"); PW = v("PW"); VQP = XF; VOP = v("VOP"); HM = v("HM")
    KF = W1; QF2 = W1 + 16; VF = XS; ONE = PB; LA = AF + 4
    hi = V.next
    SRD_K, SRD_V = 36, 40
    build_srd(SRD_K, 6, 67108864); build_srd(SRD_V, 8, 67108864); build_srd(SRD_W2, 12, 8388608)
    stamp(0)
    A(f"s_lshl_b32 s{s2}, s{sG}, 24\ns_lshl_b32 s{s3}, s{sS}, 15\ns_add_u32 s{s2}, s{s2}, s{s3}\ns_lshl_b32 s{sF}, s3, 12\ns_add_u32 s{s2}, s{s2}, s{sF}\ns_add_u32 s{s2}, s{s2}, {61440*256}")
    A(f"v_lshlrev_b32 v{T+2}, 8, v{SL}\nv_add_u32 v{T+2}, s{s2}, v{T+2}")
    A(f"v_lshlrev_b32 v{T+3}, 4, v{SL}\nv_xor_b32 v{T+3}, v{T+3}, v{CH}")
    for t in range(4): A(f"v_xor_b32 v{T+4}, {64*t}, v{T+3}\nv_add_u32 v{KA+t}, v{T+4}, v{T+2}")
    A(f"v_lshlrev_b32 v{T+4}, 5, v{SL}\nv_xor_b32 v{T+4}, v{T+4}, v{CH}\nv_add_u32 v{VA}, v{T+4}, v{T+2}")
    A(f"v_xor_b32 v{T+4}, 128, v{T+4}\nv_add_u32 v{VA+1}, v{T+4}, v{T+2}")
    A(f"s_add_u32 m0, s{sF}, {L_K}")
    A(f"v_lshl_add_u32 v{T+4}, v{CH}, 4, s{sF}")
    for ks in range(4): A(f"v_xor_b32 v{T+5}, {64*ks}, v{T+3}\nv_add_u32 v{KR+ks}, v{T+5}, v{T+4}")
    A(f"v_bfe_u32 v{T+4}, v0, 2, 2\nv_lshl_add_u32 v{T+5}, v{SL}, 3, v{T+4}\nv_lshlrev_b32 v{T+5}, 8, v{T+5}")
    A(f"v_and_b32 v{T+6}, 1, v{SL}\nv_lshl_or_b32 v{T+4}, v{T+6}, 2, v{T+4}\nv_xor_b32 v{T+4}, s3, v{T+4}\nv_lshlrev_b32 v{T+4}, 5, v{T+4}")
    A(f"v_and_b32 v{T+6}, 3, v0\nv_lshlrev_b32 v{T+6}, 3, v{T+6}\nv_add3_u32 v{VR_}, v{T+4}, v{T+5}, v{T+6}\nv_add_u32 v{VR_}, {L_V}, v{VR_}")
    A(f"v_and_b32 v{T+4}, 7, v0\nv_lshlrev_b32 v{HM}, 2, v{T+4}\nv_mul_u32_u24 v{T+4}, 288, v{T+4}\nv_lshl_add_u32 v{QR}, v{SL}, 4, v{T+4}")
    A(f"s_lshl_b32 s{s2}, s3, 5\nv_lshl_add_u32 v{PW}, v{SL}, 3, v{T+4}\nv_add_u32 v{PW}, s{s2}, v{PW}")
    A(f"s_lshl_b32 s{s2}, s{sG}, 15\ns_add_u32 s{s2}, s{s2}, s{sF}\ns_add_u32 s{s2}, s{s2}, {QBASE}\nv_lshl_add_u32 v{VQP}, v0, 4, s{s2}")
    A(f"s_lshl_b32 s{s2}, s{sG}, 17\ns_lshr_b32 s{s3}, s3, 1\ns_lshl_b32 s{s3}, s{s3}, 12\ns_add_u32 s{s2}, s{s2}, s{s3}")
    A(f"s_lshl_b32 s{s3}, s{sS}, 7\ns_add_u32 s{s2}, s{s2}, s{s3}\ns_and_b32 s{s3}, s3, 1\ns_lshl_b32 s{s3}, s{s3}, 6\ns_add_u32 s{s2}, s{s2}, s{s3}\ns_add_u32 s{s2}, s{s2}, {OBASE}")
    A(f"v_lshlrev_b32 v{T+4}, 12, v{HM}\nv_lshlrev_b32 v{T+5}, 4, v{SL}\nv_add3_u32 v{VOP}, v{T+4}, v{T+5}, s{s2}")
    A(f"s_lshl_b32 s{sPROD}, s{sG}, 5\ns_add_u32 s{sPROD}, s{sPROD}, s{sS}\ns_lshl_b32 s{s0}, s{sPROD}, 5")
    w2_addr(s0); pp_addr()
    for r in range(4): A(f"v_mov_b32 v{ONE+r}, 0x3f803f80")
    A(f"v_mov_b32 v{T}, 0xff800000\nds_write_b32 v{HM}, v{T} offset:{L_M}")
    A("s_waitcnt lgkmcnt(0)")
    get_tag()
    poll_init()
    if sflag: A("s_barrier")
    na = a_w
    for n in range(adv):
        A(f"s_waitcnt vmcnt({len(seqA)-1-seqA.index(n)})"); w1_load(0); seqA.append(na); na += 1
    A(f"s_waitcnt vmcnt({len(seqA)-1-seqA.index('x')})")
    stamp(1)
    ln_own("LA_ln")
    stamp(2)
    kv = {"K": 0, "V": 0}
    def issue(e):
        if e == "W": w2_load(); return
        t = kv[e]; kv[e] += 1
        if e == "V" and t == 0: A(f"s_add_u32 m0, s{sF}, {L_V}")
        if e == "K": A(f"buffer_load_dwordx4 v{KA+t}, {srd(SRD_K)}, 0 offen offset:{t*1024} {pol} lds")
        else: A(f"buffer_load_dwordx4 v{VA+(t>>1)}, {srd(SRD_V)}, 0 offen offset:{t*1024} {pol} lds")
    allo = a_pre + a_mid + a_post
    assert allo.count("K") == 4 and allo.count("V") == 4 and "K" not in a_post and allo.index("V") > allo.rindex("K")
    pre = list(a_pre); npre = len(pre)
    sched = [max(min(a_w, 8 + npre - p), 1) for p in range(9)] + [1] * 16
    issued = gemv1(["a"] * 8 + ["w"] * npre, sched, na, seqA, 0, 8, lambda: issue(pre.pop(0))) - 8
    assert issued == npre
    stamp(3)
    partial_store_lds()
    A("s_waitcnt lgkmcnt(0)\ns_barrier")
    nbar = 0
    if a_pubbar: A("s_barrier")
    stamp(4)
    for n, e in enumerate(a_mid):
        if npre + n >= a_w2: A(f"s_waitcnt vmcnt({a_w2-1})")
        issue(e)
    A(f"s_waitcnt vmcnt({a_pollwait})")
    def q_loads():
        for u in range(4): A(f"buffer_load_dwordx4 {vr(G+4*u,4)}, v{VQP}, {srd(SRD_WS)}, s{sPATH} offen offset:{u*1024} sc1")
    if debug and probe == "qr": A("s_waitcnt lgkmcnt(0)\ns_add_u32 s4, s80, 0")
    q_loads()
    if a_qbar: A("s_barrier"); nbar += 1
    for e in a_post: issue(e)
    A(f"s_waitcnt vmcnt({len(a_post)})")
    vyoung = len(a_post) - 1 - a_post.rindex("V") if "V" in a_post else 63
    for ks in range(4): A(f"ds_read_b128 {vr(KF+4*ks,4)}, v{KR+ks} offset:{L_K}")
    check4([G+2, G+6, G+10, G+14], "LA_qok")
    if debug and probe == "qr": A("s_add_u32 s4, s80, 100")
    A("LA_qpoll:")
    q_loads()
    A("s_waitcnt vmcnt(0)")
    check4([G+2, G+6, G+10, G+14], "LA_qok")
    poll_tail("LA_qpoll")
    A("LA_qok:")
    stamp(5)
    A(f"v_pk_add_f32 {vr(G,2)}, {vr(G,2)}, {vr(G+4,2)}\nv_pk_add_f32 {vr(G+8,2)}, {vr(G+8,2)}, {vr(G+12,2)}")
    A(f"s_mul_i32 s{s2}, s3, 288\nv_lshl_add_u32 v{T}, v0, 2, s{s2}")
    A(f"v_pk_add_f32 {vr(G,2)}, {vr(G,2)}, {vr(G+8,2)}\nv_cvt_pk_bf16_f32 v{G}, v{G}, v{G+1}")
    A(f"ds_write_b32 v{T}, v{G} offset:{L_Q}")
    w2_load(a_pts[0])
    A("s_waitcnt lgkmcnt(0)\ns_barrier"); nbar += 1
    for ks in range(4): A(f"ds_read_b128 {vr(QF2+4*ks,4)}, v{QR} offset:{L_Q+64*ks}")
    for ks in range(4):
        A(f"s_waitcnt lgkmcnt({0 if full else 3-ks})")
        A(f"v_mfma_f32_16x16x32_bf16 {vr(ACC,4)}, {vr(KF+4*ks,4)}, {vr(QF2+4*ks,4)}, {vr(ACC,4) if ks else 0}")
    A(f"s_mov_b32 s{s2}, 0x3db504f3")
    A(f"v_cvt_pk_bf16_f32 v{T}, v{ACC}, v{ACC+1}\nv_cvt_pk_bf16_f32 v{T+1}, v{ACC+2}, v{ACC+3}")
    A(f"v_lshlrev_b32 v{U}, 16, v{T}\nv_and_b32 v{U+1}, 0xffff0000, v{T}\nv_lshlrev_b32 v{U+2}, 16, v{T+1}\nv_and_b32 v{U+3}, 0xffff0000, v{T+1}")
    A(f"v_pk_mul_f32 {vr(U,2)}, {vr(U,2)}, s[{s2}:{s2+1}] op_sel_hi:[1,0]\nv_pk_mul_f32 {vr(U+2,2)}, {vr(U+2,2)}, s[{s2}:{s2+1}] op_sel_hi:[1,0]")
    A(f"v_cvt_pk_bf16_f32 v{T}, v{U}, v{U+1}\nv_cvt_pk_bf16_f32 v{T+1}, v{U+2}, v{U+3}")
    A(f"v_lshlrev_b32 v{U}, 16, v{T}\nv_and_b32 v{U+1}, 0xffff0000, v{T}\nv_lshlrev_b32 v{U+2}, 16, v{T+1}\nv_and_b32 v{U+3}, 0xffff0000, v{T+1}")
    A(f"v_max3_f32 v{T}, v{U}, v{U+1}, v{U+2}\nv_max_f32 v{T}, v{T}, v{U+3}")
    A(f"ds_max_f32 v{HM}, v{T} offset:{L_M}")
    w2_load(a_pts[1])
    A("s_waitcnt lgkmcnt(0)\ns_barrier"); nbar += 1
    A(f"ds_read_b32 v{MB}, v{HM} offset:{L_M}")
    A(f"s_mov_b32 s{s2}, 0x3fb8aa3b")
    A("s_waitcnt lgkmcnt(0)")
    A(f"v_pk_add_f32 {vr(U,2)}, {vr(U,2)}, {vr(MB,2)} op_sel_hi:[1,0] neg_lo:[0,1] neg_hi:[0,1]\nv_pk_add_f32 {vr(U+2,2)}, {vr(U+2,2)}, {vr(MB,2)} op_sel_hi:[1,0] neg_lo:[0,1] neg_hi:[0,1]")
    A(f"v_pk_mul_f32 {vr(U,2)}, {vr(U,2)}, s[{s2}:{s2+1}] op_sel_hi:[1,0]\nv_pk_mul_f32 {vr(U+2,2)}, {vr(U+2,2)}, s[{s2}:{s2+1}] op_sel_hi:[1,0]")
    for r in range(4): A(f"v_exp_f32 v{U+r}, v{U+r}")
    A(f"v_cvt_pk_bf16_f32 v{T}, v{U}, v{U+1}\nv_cvt_pk_bf16_f32 v{T+1}, v{U+2}, v{U+3}")
    A(f"ds_write_b64 v{PW}, {vr(T,2)} offset:{L_P}")
    A(f"v_mul_f32 v{MB}, s{s2}, v{MB}")
    A("s_waitcnt lgkmcnt(0)\ns_barrier"); nbar += 1
    for ks in range(4): A(f"ds_read_b128 {vr(QF2+4*ks,4)}, v{QR} offset:{L_P+64*ks}")
    for ks in range(4):
        A(f"s_waitcnt lgkmcnt({0 if full else 3-ks})")
        A(f"v_mfma_f32_16x16x32_bf16 {vr(LA,4)}, {vr(ONE,4)}, {vr(QF2+4*ks,4)}, {vr(LA,4) if ks else 0}")
    if vyoung < 63:
        A(f"s_waitcnt vmcnt({vyoung + sum(a_pts)})\ns_barrier"); nbar += 1
    for ks in range(4):
        for hh in range(2): A(f"ds_read_b64_tr_b16 {vr(VF+4*ks+2*hh,2)}, v{VR_} offset:{ks*8192+hh*1024}")
    OG = QF + 12
    A(f"v_rcp_f32 v{RI}, v{LA}\nv_log_f32 v{OG+2}, v{LA}\nv_mov_b32 v{OG+3}, s{sTAG}")
    A(f"v_add_f32 v{OG+2}, v{OG+2}, v{MB}")
    for ks in range(4):
        A(f"s_waitcnt lgkmcnt({0 if full else 6-2*ks})")
        A(f"v_mfma_f32_16x16x32_bf16 {vr(ACC,4)}, {vr(VF+4*ks,4)}, {vr(QF2+4*ks,4)}, {vr(ACC,4) if ks else 0}")
    A("s_mov_b32 exec_lo, 0x00ff00ff\ns_mov_b32 exec_hi, 0x00ff00ff")
    A(f"v_pk_mul_f32 {vr(ACC,2)}, {vr(ACC,2)}, {vr(RI,2)} op_sel_hi:[1,0]\nv_pk_mul_f32 {vr(ACC+2,2)}, {vr(ACC+2,2)}, {vr(RI,2)} op_sel_hi:[1,0]")
    A(f"v_cvt_pk_bf16_f32 v{OG}, v{ACC}, v{ACC+1}\nv_cvt_pk_bf16_f32 v{OG+1}, v{ACC+2}, v{ACC+3}")
    pub_local(OG, VOP)
    A("s_mov_b64 exec, -1")
    A("s_barrier"); nbar += 1
    stamp(6)
    n0 = cnt["w2"]
    while cnt["w2"] < 8:
        if cnt["w2"] - n0 >= a_ww: A(f"s_waitcnt vmcnt({a_ww-1})")
        w2_load()
    A("s_mov_b32 exec_lo, 0x00ff00ff\ns_mov_b32 exec_hi, 0x00ff00ff")
    pub_global(OG, VOP)
    A("s_mov_b64 exec, -1")
    stamp(7)
    A("s_barrier")
    stamp(8)
    stage3(8, 0, 1)
    stamp(9)
    write_stamps()
    A("s_endpgm")

    A("L_roleS2:")
    if sflag: A(f"v_mov_b32 v{T+3}, 0\nds_write_b32 v{T+3}, v{T+3} offset:{L_S+12}\ns_waitcnt lgkmcnt(0)\ns_barrier")
    A(f"s_load_dword s{sE}, s[26:27], 0")
    build_srd(SRD_WS, 26, 268435456)
    A(f"{isB}\ns_cbranch_scc1 L_roleSB")
    VQS = R0; VOG = R0 + 1
    A(f"s_lshl_b32 s{s0}, s{sG}, 15\ns_and_b32 s{s1}, s{sS}, 7\ns_lshl_b32 s{s1}, s{s1}, 12\ns_add_u32 s{s0}, s{s0}, s{s1}\ns_lshr_b32 s{s1}, s{sS}, 3\ns_lshl_b32 s{s1}, s{s1}, 10\ns_add_u32 s{s0}, s{s0}, s{s1}\ns_add_u32 s{s0}, s{s0}, {QBASE}")
    A(f"v_lshl_add_u32 v{VQS}, v0, 4, s{s0}")
    A(f"s_lshl_b32 s{s0}, s{sG}, 17\ns_lshl_b32 s{s1}, s{sS}, 12\ns_add_u32 s{s0}, s{s0}, s{s1}\ns_add_u32 s{s0}, s{s0}, {OBASE}\nv_lshl_add_u32 v{VOG}, v0, 4, s{s0}")
    A("s_waitcnt vmcnt(0)")
    ln_stats()
    A(f"buffer_load_dwordx4 {vr(G,4)}, v{VQS}, {srd(SRD_WS)}, 0 offen")
    for u in range(4): A(f"buffer_load_dwordx4 {vr(G+8,4)}, v{VOG}, {srd(SRD_WS)}, 0 offen offset:{u*1024}")
    if tlb:
        A(f"s_lshl_b32 s{s0}, s{sG}, 24\ns_lshl_b32 s{s1}, s{sS}, 15\ns_add_u32 s{s0}, s{s0}, s{s1}\ns_add_u32 s{s0}, s{s0}, {61440*256}\nv_mov_b32 v{T}, s{s0}")
        A(f"s_lshl_b32 s{s0}, s{sG}, 21\ns_lshl_b32 s{s1}, s{sS}, 16\ns_add_u32 s{s0}, s{s0}, s{s1}\nv_mov_b32 v{T+1}, s{s0}\ns_mov_b64 exec, 1")
        A(f"global_load_dword v{G+12}, v{T}, s[6:7] {pol}\nglobal_load_dword v{G+13}, v{T}, s[8:9] {pol}\nglobal_load_dword v{G+14}, v{T+1}, s[12:13] {pol}\ns_mov_b64 exec, -1")
    A(f"v_lshlrev_b32 v{T+4}, 3, v0\nv_and_b32 v{VOR}, 0x70, v{CH}\nv_lshl_add_u32 v{VOR}, v{SL}, 2, v{VOR}")
    poll_init()
    amp_pub()
    A("s_waitcnt vmcnt(0)\ns_barrier")
    reduce8()
    pub_local(PB, VQS)
    if a_pubbar: A("s_barrier")
    pub_global(PB, VQS)
    stamp(4)
    for _ in range(nbar): A("s_barrier")
    def o_loads(r):
        for u in range(4): A(f"buffer_load_dwordx4 {vr(r+4*u,4)}, v{VOG}, {srd(SRD_WS)}, s{sPATH} offen offset:{u*1024} sc1")
    def o_copy(r):
        for u in range(4):
            A(f"v_pk_mov_b32 {vr(G+4*u,2)}, {vr(r+4*u,2)}, {vr(r+4*u,2)} op_sel:[0,1]\nv_mov_b32 v{G+4*u+2}, v{r+4*u+2}")
    if onsets > 1:
        pipe_poll("LS_poll", onsets, [W1 + 16 * k for k in range(4)], 4, o_loads, lambda r, ok: check4([r+3, r+7, r+11, r+15], ok), o_copy)
    else:
        A("LS_poll:")
        o_loads(G)
        A("s_waitcnt vmcnt(0)")
        check4([G+3, G+7, G+11, G+15], "LS_ok")
        poll_tail("LS_poll", None, osleep)
    A("LS_ok:")
    stamp(6)
    A(f"v_max3_f32 v{T}, v{G+2}, v{G+6}, v{G+10}\nv_max_f32 v{T}, v{T}, v{G+14}")
    for u in range(2):
        A(f"v_lshlrev_b32 v{U+4*u}, 16, v{G+4*u}\nv_and_b32 v{U+4*u+1}, 0xffff0000, v{G+4*u}")
    A(f"v_max_f32_dpp v{T}, v{T}, v{T} row_ror:8 row_mask:0xf bank_mask:0xf")
    for u in range(2):
        A(f"v_lshlrev_b32 v{U+4*u+2}, 16, v{G+4*u+1}")
    A(f"v_mov_b32 v{T+1}, v{T}")
    for u in range(2):
        A(f"v_and_b32 v{U+4*u+3}, 0xffff0000, v{G+4*u+1}")
    A(f"v_permlane16_swap_b32 v{T}, v{T+1}\nv_max_f32 v{T}, v{T}, v{T+1}\nv_mov_b32 v{T+1}, v{T}")
    for u in range(2, 4):
        A(f"v_lshlrev_b32 v{U+4*u}, 16, v{G+4*u}")
    A(f"v_permlane32_swap_b32 v{T}, v{T+1}\nv_max_f32 v{T}, v{T}, v{T+1}")
    for u in range(4): A(f"v_sub_f32 v{G+4*u+2}, v{G+4*u+2}, v{T}")
    for u in range(4): A(f"v_exp_f32 v{G+4*u+2}, v{G+4*u+2}")
    for u in range(2, 4):
        A(f"v_and_b32 v{U+4*u+1}, 0xffff0000, v{G+4*u}\nv_lshlrev_b32 v{U+4*u+2}, 16, v{G+4*u+1}\nv_and_b32 v{U+4*u+3}, 0xffff0000, v{G+4*u+1}")
    A(f"v_pk_mul_f32 {vr(ACC,2)}, {vr(U,2)}, {vr(G+2,2)} op_sel_hi:[1,0]\nv_pk_mul_f32 {vr(ACC+2,2)}, {vr(U+2,2)}, {vr(G+2,2)} op_sel_hi:[1,0]")
    A(f"v_add_f32 v{T}, v{G+2}, v{G+6}\nv_add_f32 v{T+1}, v{G+10}, v{G+14}")
    for u in range(1, 4):
        A(f"v_pk_fma_f32 {vr(ACC,2)}, {vr(U+4*u,2)}, {vr(G+4*u+2,2)}, {vr(ACC,2)} op_sel_hi:[1,0,1]\nv_pk_fma_f32 {vr(ACC+2,2)}, {vr(U+4*u+2,2)}, {vr(G+4*u+2,2)}, {vr(ACC+2,2)} op_sel_hi:[1,0,1]")
        if u == 1: A(f"v_add_f32 v{T}, v{T}, v{T+1}")
    A(f"v_add_f32_dpp v{T}, v{T}, v{T} row_ror:8 row_mask:0xf bank_mask:0xf")
    for r in range(4): A(f"v_add_f32_dpp v{ACC+r}, v{ACC+r}, v{ACC+r} row_ror:8 row_mask:0xf bank_mask:0xf")
    A(f"v_mov_b32 v{T+1}, v{T}")
    A(f"v_permlane16_swap_b32 v{T}, v{T+1}\nv_permlane16_swap_b32 v{ACC}, v{ACC+1}\nv_permlane16_swap_b32 v{ACC+2}, v{ACC+3}")
    A(f"v_add_f32 v{T}, v{T}, v{T+1}\nv_add_f32 v{ACC}, v{ACC}, v{ACC+1}\nv_add_f32 v{ACC+2}, v{ACC+2}, v{ACC+3}\nv_mov_b32 v{T+1}, v{T}")
    A(f"v_permlane32_swap_b32 v{ACC}, v{ACC+2}\nv_permlane32_swap_b32 v{T}, v{T+1}")
    A(f"v_add_f32 v{T}, v{T}, v{T+1}\nv_add_f32 v{ACC}, v{ACC}, v{ACC+2}\nv_rcp_f32 v{T}, v{T}")
    A(f"v_mul_f32 v{ACC}, v{ACC}, v{T}\nv_cvt_pk_bf16_f32 v{ACC}, v{ACC}, v{ACC}")
    A(f"ds_write_b32 v{VOR}, v{ACC} offset:{L_O}")
    A("s_waitcnt lgkmcnt(0)")
    stamp(7)
    A("s_barrier")
    stamp(9)
    write_stamps()
    if only == "A":
        A(f"s_cmp_lg_u32 s2, {apar}\ns_cbranch_scc1 LS_x\ns_sleep 100\nv_mov_b32 v{T+2}, 0\nv_mov_b32 v{T+3}, s{sE}\nbuffer_store_dword v{T+3}, v{T+2}, {srd(SRD_WS)}, 0 offen sc1\nLS_x:")
    A("s_endpgm")

    V.next = R0
    VXS = v("VXS"); VXG = v("VXG"); VFG = v("VFG")
    hi = max(hi, V.next)
    b_win = b_sched[0]
    A("L_roleB:")
    cnt["w1"] = w0; cnt["w2"] = 0
    x_own_load(16)
    assert b_pos >= b_win + adv and b_win >= w0
    for n in range(w0, b_win): w1_load(0)
    seqB = list(range(w0)) + ["x"] + list(range(w0, b_win)) + ["xf"]
    A(f"s_mul_i32 s{sPROD}, s{sG}, 28\ns_add_u32 s{sPROD}, s{sPROD}, s{sS}")
    build_srd(SRD_W2, 20, 7340032); build_srd(SRD_WS, 26, 268435456); build_srd(SRD_OUT, 22, 2048)
    stamp(0)
    A(f"s_lshl_b32 s{sF}, s{sG}, 4\ns_add_u32 s{sF}, s{sF}, s{sS}\ns_cmp_lt_u32 s{sS}, 16\ns_cselect_b32 s{sF}, s{sF}, -1")
    A(f"s_lshl_b32 s{s2}, s{sF}, 5\nv_lshrrev_b32 v{T+3}, 3, v{CH}\nv_add_u32 v{T+3}, s{s2}, v{T+3}")
    A(f"buffer_load_ushort v{XF}, v{T+3}, {srd(SRD_X)}, 0 offen")
    masks(8)
    A(f"s_lshl_b32 s{s0}, s{sPROD}, 5")
    w2_addr(s0)
    if fullline:
        A(f"s_lshl_b32 s{s2}, s3, 12\ns_lshr_b32 s{s3}, s{sF}, 1\ns_lshl_b32 s{s3}, s{s3}, 15\ns_add_u32 s{s2}, s{s2}, s{s3}\ns_and_b32 s{s3}, s{sF}, 1\ns_lshl_b32 s{s3}, s{s3}, 6\ns_add_u32 s{s2}, s{s2}, s{s3}\ns_add_u32 s{s2}, s{s2}, {PBASE}")
        A(f"v_lshrrev_b32 v{T}, 2, v0\nv_lshlrev_b32 v{T}, 7, v{T}\nv_and_b32 v{T+1}, 3, v0\nv_lshlrev_b32 v{T+1}, 4, v{T+1}\nv_add3_u32 v{VFG}, v{T}, v{T+1}, s{s2}")
    else:
        A(f"s_lshl_b32 s{s2}, s3, 11")
        A(f"s_lshl_b32 s{s3}, s{sF}, 14\ns_add_u32 s{s2}, s{s2}, s{s3}\ns_add_u32 s{s2}, s{s2}, {PBASE}\nv_lshl_add_u32 v{VFG}, v0, 4, s{s2}")
    A(f"s_add_u32 s{sPROD}, s{sPROD}, 128")
    pp_addr()
    A("s_waitcnt lgkmcnt(0)")
    get_tag()
    if sflag: A("s_barrier")
    nb = b_win
    for n in range(adv):
        A(f"s_waitcnt vmcnt({len(seqB)-1-seqB.index(n)})"); w1_load(0); seqB.append(nb); nb += 1
    A(f"s_waitcnt vmcnt({len(seqB)-1-seqB.index('x')})")
    stamp(1)
    ln_own("LB_ln")
    stamp(2)
    order = ["a"] * b_pos + ["w"] * b_early + ["a"] * (16 - b_pos)
    issued = gemv1(order, list(b_sched), nb, seqB, 0)
    assert issued == len(order)
    stamp(3)
    partial_store_lds()
    A("s_waitcnt lgkmcnt(0)\ns_barrier")
    if b_pubbar: A("s_barrier")
    n0 = cnt["w2"]
    while cnt["w2"] < 8:
        if cnt["w2"] - n0 >= b_ww: A(f"s_waitcnt vmcnt({b_ww-1})")
        w2_load()
    stamp(5)
    A("s_barrier")
    stamp(6)
    stage3(8, b_early)
    stamp(7)
    if only == "B": A("s_branch LB_done")
    A(f"s_cmp_eq_u32 s{sF}, -1\ns_cbranch_scc1 LB_done")
    A(f"s_cmp_lt_u32 s3, 7\ns_cselect_b32 s{s1}, {2048 if fullline else 1024}, 0")
    A(f"s_mov_b32 s{s2}, 0x0c0c0400\ns_mov_b32 s{s3}, 0x04000c0c")
    def f_ld(r):
        A(f"buffer_load_dwordx4 {vr(r,4)}, v{VFG}, {srd(SRD_WS)}, 0 offen {pld}")
        A(f"buffer_load_dwordx4 {vr(r+4,4)}, v{VFG}, {srd(SRD_WS)}, s{s1} offen {pld}")
    def f_chk(r, ok):
        for u in range(2):
            A(f"v_perm_b32 v{T+2*u}, v{r+4*u+1}, v{r+4*u}, s{s2}\nv_perm_b32 v{T+2*u+1}, v{r+4*u+3}, v{r+4*u+2}, s{s3}\nv_or_b32 v{T+2*u}, v{T+2*u}, v{T+2*u+1}")
        A(f"v_cmp_ne_u32 vcc, s{sTAG}, v{T}\nv_cmp_ne_u32 s[{C0}:{C0+1}], s{sTAG}, v{T+2}\ns_or_b64 s[{C0}:{C0+1}], s[{C0}:{C0+1}], vcc\ns_cbranch_scc0 {ok}")
    if fhint:
        A(f"s_mov_b64 exec, {hex((1 << (4 * fhint)) - 1)}" if fhint < 8 else "s_mov_b32 exec_hi, 0")
        A("LB_fh:")
        A(f"buffer_load_dwordx4 {vr(G,4)}, v{VFG}, {srd(SRD_WS)}, s{s1} offen {pld}\ns_waitcnt vmcnt(0)")
        A(f"v_perm_b32 v{T}, v{G+1}, v{G}, s{s2}\nv_perm_b32 v{T+1}, v{G+3}, v{G+2}, s{s3}\nv_or_b32 v{T}, v{T}, v{T+1}")
        A(f"v_cmp_ne_u32 vcc, s{sTAG}, v{T}\ns_cbranch_vccz LB_fh2")
        if fhsleep: A(f"s_sleep {fhsleep}")
        A(f"s_sub_u32 s{sCNT}, s{sCNT}, 1\ns_cbranch_scc0 LB_fh\ns_mov_b32 s{sCNT}, 0")
        A("LB_fh2:\ns_mov_b64 exec, -1")
    sets = [W1 + 8 * k for k in range(fnsets)]
    for k in range(fnsets):
        f_ld(sets[k])
        if k < fnsets - 1 and fstag: A(f"s_sleep {fstag}")
    A("LB_fpoll:")
    for k in range(fnsets):
        A(f"s_waitcnt vmcnt({2*(fnsets-1)})")
        f_chk(sets[k], f"LB_fok{k}")
        if k == fnsets - 1:
            if fsleep: A(f"s_sleep {fsleep}")
            A(f"s_sub_u32 s{sCNT}, s{sCNT}, 1\ns_cbranch_scc1 LB_fok{k}")
        f_ld(sets[k])
    A("s_branch LB_fpoll")
    for k in range(fnsets):
        A(f"LB_fok{k}:")
        for r in range(8): A(f"v_and_b32 v{G+r}, s{sMSK}, v{sets[k]+r}")
        if k < fnsets - 1: A("s_branch LB_fok")
    A("LB_fok:")
    stamp(8)
    A(f"s_cmp_eq_u32 s{s1}, 0\ns_cbranch_scc1 LB_f1")
    A(f"v_pk_add_f32 {vr(G,2)}, {vr(G,2)}, {vr(G+4,2)}\nv_pk_add_f32 {vr(G+2,2)}, {vr(G+2,2)}, {vr(G+6,2)}")
    A("LB_f1:")
    for c in ("row_ror:4", "row_ror:8"):
        for r in range(4): A(f"v_add_f32_dpp v{G+r}, v{G+r}, v{G+r} {c} row_mask:0xf bank_mask:0xf")
    A(f"v_and_b32 v{T}, 3, v0\nv_lshlrev_b32 v{T}, 7, v{T}")
    A(f"v_permlane16_swap_b32 v{G}, v{G+1}\nv_permlane16_swap_b32 v{G+2}, v{G+3}")
    A(f"v_add_f32 v{G}, v{G}, v{G+1}\nv_add_f32 v{G+2}, v{G+2}, v{G+3}")
    A(f"v_lshl_add_u32 v{T}, v{SL}, 5, v{T}\ns_lshl_b32 s{s2}, s3, 2\nv_add_u32 v{T}, s{s2}, v{T}")
    A(f"v_permlane32_swap_b32 v{G}, v{G+2}\nv_add_f32 v{G}, v{G}, v{G+2}")
    A("s_mov_b32 exec_lo, 0x000f000f\ns_mov_b32 exec_hi, 0x000f000f")
    A(f"ds_write_b32 v{T}, v{G} offset:{L_F}")
    A("s_mov_b64 exec, -1")
    A("s_waitcnt lgkmcnt(0)\ns_barrier")
    A("s_cmp_lg_u32 s3, 0\ns_cbranch_scc1 LB_done")
    A(f"v_lshlrev_b32 v{T+1}, 1, v{CH}")
    A(f"ds_read_b128 {vr(G,4)}, v{T+1} offset:{L_F}\nds_read_b128 {vr(G+4,4)}, v{T+1} offset:{L_F+16}")
    A(f"s_lshl_b32 s{s2}, s{sF}, 5\nv_lshrrev_b32 v{T}, 3, v{CH}\nv_add_u32 v{T}, s{s2}, v{T}\nv_lshlrev_b32 v{XF}, 16, v{XF}")
    A("s_waitcnt lgkmcnt(0)")
    A(f"v_pk_add_f32 {vr(G,2)}, {vr(G,2)}, {vr(G+2,2)}\nv_pk_add_f32 {vr(G+4,2)}, {vr(G+4,2)}, {vr(G+6,2)}")
    A(f"v_add_f32 v{G}, v{G}, v{G+1}\nv_add_f32 v{G+4}, v{G+4}, v{G+5}")
    A(f"v_cvt_pk_bf16_f32 v{G}, v{G}, v{G+4}")
    A(f"v_lshlrev_b32 v{G+1}, 16, v{G}\nv_and_b32 v{G+2}, 0xffff0000, v{G}")
    A(f"v_add_f32 v{G+1}, v{XF}, v{G+1}")
    rbf(G+1, f"v{G+1}")
    A(f"v_add_f32 v{G+1}, v{G+1}, v{G+2}\nv_cvt_pk_bf16_f32 v{G+1}, v{G+1}, v{G+1}")
    A("s_mov_b32 exec_lo, 0xffff\ns_mov_b32 exec_hi, 0")
    A(f"buffer_store_short v{G+1}, v{T}, {srd(SRD_OUT)}, 0 offen")
    A(f"s_cmp_lg_u32 s{sF}, 0\ns_cbranch_scc1 LB_noep")
    A(f"s_mov_b32 exec_lo, 1\nv_mov_b32 v{T+2}, 0\nv_mov_b32 v{T+3}, s{sE}")
    A(f"buffer_store_dword v{T+3}, v{T+2}, {srd(SRD_WS)}, 0 offen")
    A("LB_noep:")
    A("s_mov_b64 exec, -1")
    A("LB_done:")
    if only == "B":
        A(f"s_cmp_lg_u32 s2, {1-apar}\ns_cbranch_scc1 LB_x\ns_sleep 127\nv_mov_b32 v{T+2}, 0\nv_mov_b32 v{T+3}, s{sE}\nbuffer_store_dword v{T+3}, v{T+2}, {srd(SRD_WS)}, 0 offen sc1\nLB_x:")
    if amp:
        A(f"s_cmp_lg_u32 s{sF}, 0\ns_cbranch_scc1 L_end\ns_cmp_lg_u32 s3, 0\ns_cbranch_scc1 L_end")
        A("s_memrealtime s[6:7]")
        A(f"v_lshlrev_b32 v{T}, 5, v0\nv_add_u32 v{T}, {TSBASE}, v{T}")
        A(f"buffer_load_dwordx4 {vr(G,4)}, v{T}, {srd(SRD_WS)}, 0 offen sc1\nbuffer_load_dwordx4 {vr(G+4,4)}, v{T}, {srd(SRD_WS)}, 0 offen offset:16 sc1\ns_waitcnt vmcnt(0) lgkmcnt(0)")
        for q in range(4):
            A(f"v_subrev_u32 v{G+2*q}, s80, v{G+2*q}\nv_add_u32 v{G+2*q}, 5000, v{G+2*q}\nv_cmp_eq_u32 vcc, s{sTAG}, v{G+2*q+1}")
            A(f"v_cndmask_b32 v{U+q}, -1, v{G+2*q}, vcc\nv_cndmask_b32 v{U+4+q}, 0, v{G+2*q}, vcc")
        A(f"v_min_u32 v{U}, v{U}, v{U+1}\nv_min_u32 v{U+2}, v{U+2}, v{U+3}\nv_min_u32 v{U}, v{U}, v{U+2}")
        A(f"v_max_u32 v{U+4}, v{U+4}, v{U+5}\nv_max_u32 v{U+6}, v{U+6}, v{U+7}\nv_max_u32 v{U+4}, v{U+4}, v{U+6}")
        A("s_mov_b32 s8, -1\ns_mov_b32 s9, 0")
        for ln in range(64):
            A(f"v_readlane_b32 s10, v{U}, {ln}\nv_readlane_b32 s11, v{U+4}, {ln}\ns_min_u32 s8, s8, s10\ns_max_u32 s9, s9, s11")
        A("s_sub_u32 s6, s6, s80\ns_add_u32 s6, s6, 5000")
        if amp == "skew": A("s_sub_u32 s12, s9, s8")
        elif amp == "total": A("s_sub_u32 s12, s6, s8")
        elif amp == "fromlast": A("s_sub_u32 s12, s6, s9")
        elif amp == "zero": A("s_mov_b32 s12, 0")
        A(f"s_mul_i32 s12, s12, 10\ns_add_u32 s12, s12, s8\ns_sub_u32 s12, s12, 5000\ns_add_u32 s12, s12, 3000")
        A(f"LB_pad:\ns_memrealtime s[4:5]\ns_waitcnt lgkmcnt(0)\ns_sub_u32 s4, s4, s80\ns_cmp_lt_i32 s4, s12\ns_cbranch_scc1 LB_pad")
    stamp(9)
    write_stamps()
    A("s_endpgm")
    A("L_roleSB:")
    A(f"s_mul_i32 s{sPROD}, s{sG}, 28\ns_add_u32 s{sPROD}, s{sPROD}, s{sS}")
    A(f"s_lshl_b32 s{s2}, s{sPROD}, 10\ns_add_u32 s{s2}, s{s2}, {XBASE}\nv_lshl_add_u32 v{VXG}, v0, 4, s{s2}")
    A(f"s_and_b32 s{s2}, s{sPROD}, 0xfc\ns_lshl_b32 s{s2}, s{s2}, 10\ns_and_b32 s{s3}, s{sPROD}, 3\ns_lshl_b32 s{s3}, s{s3}, 8\ns_add_u32 s{s2}, s{s2}, s{s3}\ns_add_u32 s{s2}, s{s2}, {XBASE}")
    A(f"v_lshlrev_b32 v{T}, 10, v{SL}\nv_add3_u32 v{VXS}, v{T}, v{CH}, s{s2}")
    A("s_waitcnt vmcnt(0)")
    ln_stats()
    A(f"buffer_load_dwordx4 {vr(G,4)}, v{VXG}, {srd(SRD_WS)}, 0 offen")
    if tlb or tlbout:
        A(f"s_lshl_b32 s{s0}, s{sPROD}, 16\nv_mov_b32 v{T}, s{s0}\nv_mov_b32 v{T+1}, 0\ns_mov_b64 exec, 1")
        if tlb: A(f"global_load_dword v{G+12}, v{T}, s[20:21] {pol}")
        if tlbout: A(f"global_load_dword v{G+13}, v{T+1}, s[22:23]")
        A("s_mov_b64 exec, -1")
    A(f"v_lshlrev_b32 v{T+4}, 3, v0")
    poll_init()
    amp_pub()
    A("s_waitcnt vmcnt(0)\ns_barrier")
    reduce8()
    pub_local(PB, VXS)
    if b_pubbar: A("s_barrier")
    stamp(4)
    def x_ld(r): A(f"buffer_load_dwordx4 {vr(r,4)}, v{VXG}, {srd(SRD_WS)}, s{sPATH} offen sc1")
    def x_chk(r, ok): A(f"v_cmp_ne_u32 vcc, s{sTAG}, v{r+2}\ns_cmp_eq_u64 vcc, 0\ns_cbranch_scc1 {ok}")
    if xnsets > 1:
        pipe_poll("LB_xpoll", xnsets, [W1 + 4 * k for k in range(8)], 1, x_ld, x_chk, lambda r: A(f"v_mov_b32 v{G}, v{r}\nv_mov_b32 v{G+1}, v{r+1}"), lambda: pub_global(PB, VXS))
    else:
        A("LB_xpoll:")
        x_ld(G)
        A("s_waitcnt vmcnt(0)")
        x_chk(G, "LB_xok")
        poll_tail("LB_xpoll", lambda: pub_global(PB, VXS))
    A("LB_xok:")
    stamp(5)
    A(f"v_permlane16_swap_b32 v{G}, v{G+1}\nv_add_f32 v{G}, v{G}, v{G+1}")
    rbf(G, f"v{G}")
    A(f"s_mov_b32 s{s2}, 0x3d372713")
    A(f"v_mul_f32 v{U}, v{G}, v{G}\nv_mov_b32 v{G+1}, v{G}\nv_fma_f32 v{U}, v{U}, s{s2}, 1.0\nv_mul_f32 v{U}, v{U}, v{G}")
    A(f"v_mul_f32 v{U}, 0xc0135761, v{U}\nv_permlane32_swap_b32 v{G+1}, v{G+2}\nv_exp_f32 v{U}, v{U}")
    A(f"v_lshrrev_b32 v{T+2}, 1, v{CH}\nv_add_f32 v{U}, 1.0, v{U}\nv_rcp_f32 v{U}, v{U}\nv_lshl_add_u32 v{T+2}, v{SL}, 2, v{T+2}\nv_mul_f32 v{U}, v{U}, v{G}")
    rbf(U, f"v{U}")
    A(f"v_mul_f32 v{U}, v{U}, v{G+2}\ns_mov_b32 exec_hi, 0\nv_cvt_pk_bf16_f32 v{U}, v{U}, v{U}")
    A(f"ds_write_b32 v{T+2}, v{U} offset:{L_O}")
    A("s_mov_b32 exec_hi, -1")
    pub_global(PB, VXS)
    A("s_waitcnt lgkmcnt(0)\ns_barrier")
    stamp(9)
    write_stamps()
    A("L_end:")
    A("s_endpgm")

    body, nins = fix_hazards(L)
    nv = max(hi, R0 + 2)
    acc = (nv + 3) // 4 * 4
    head = [l for l in open(f"cdna_kernels/{NAME}.s.ref").read().split("\n") if l.startswith(";") and "@launch" not in l and "Override" not in l and "grid=ceil" not in l]
    out = "\n".join(head) + f"\n; @launch grid=(256,1,1) block=({NW*64},1,1) lds={LDS_BYTES}\n"
    out += f'.amdgcn_target "amdgcn-amd-amdhsa--gfx950"\n.text\n.globl {NAME}_kernel\n.p2align 8\n.type {NAME}_kernel,@function\n{NAME}_kernel:\n'
    txt = "\n".join(("" if l.endswith(":") else "    ") + l for l in body) + "\n"
    txt = txt.replace("CODE_LINES", f"(L_end - {NAME}_kernel) / 128")
    out += txt
    out += f""".section .rodata,"a"
.p2align 6
.amdhsa_kernel {NAME}_kernel
  .amdhsa_next_free_vgpr {nv}
  .amdhsa_next_free_sgpr 82
  .amdhsa_accum_offset {acc}
  .amdhsa_group_segment_fixed_size 0
  .amdhsa_kernarg_size 96
  .amdhsa_user_sgpr_count 2
  .amdhsa_user_sgpr_kernarg_segment_ptr 1
  .amdhsa_system_sgpr_workgroup_id_x 1
  .amdhsa_float_denorm_mode_32 3
.end_amdhsa_kernel
"""
    return out

if __name__ == "__main__":
    kw = eval("dict(" + (sys.argv[2] if len(sys.argv) > 2 else "") + ")")
    txt = gen(**kw)
    open(sys.argv[1], "w").write(txt)
```

```python
import sys
from asmdsl import fix_hazards, Regs

NAME = "parallel_sum__sliding_block_cached__geglu_ffn__decode"
QBASE = 0x10000
OBASE = 0x40000
XBASE = 0xC0000
PBASE = 0x100000
TSBASE = 0x300000
DELTA = 0x400000
L_R = 0; L_Q = 4096; L_P = 6656; L_M = 9216; L_O = 9280; L_F = 9472; L_S = 9984; L_K = 12288; L_V = 45056
LDS_BYTES = 83968
NW = 9

def roles(kw):
    import numpy as np
    wg = np.arange(256); x = wg & 7; i = wg >> 3
    return {"A": (x % 2 == 1), "B": (x % 2 == 0) & (i < 28)}

def gen(debug=False, pol="nt", a_w=3, a_w2=4, a_pre="KK", a_mid="KKV", a_post="VVV", a_pts=(1, 1), a_pubbar=True, a_pollwait=1, a_qbar=True,
        a_ww=3, b_sched=(3,) * 25, b_early=1, b_pos=16, b_ww=4, b_pubbar=True, fsleep=0,
        spin=2000000, limit=32, diagpad=0, apar=1, xbar=True, codepf=True, only=None,
        clk="s_memrealtime", amp=None, probe=None, osleep=0, fullline=True, pst="sc1", pld="sc1", ptouch=None, onsets=1, xnsets=1, stag=4, w0=3, adv=3, sprio=3, sflag=True, tlb=False, tlbout=False, fnsets=1, fstag=2, fhint=0, fhsleep=0, nogl=False, dupP=False, dupO=False, opol="", qpol="", xpol="", tq=True, to=True, tx=True, xsleep=0, qsleep=0):
    if amp: diagpad = 30
    L = []
    def A(s):
        for x in s.split("\n"):
            x = x.strip()
            if x: L.append(x)
    def stamp(k):
        if debug and (debug != "lite" or k == 9): A(f"{clk} s[{4+2*k}:{5+2*k}]")
    full = debug and debug != "lite"
    V = Regs("v", 1, 168)
    v = lambda name, n=1: V.alloc(name, n)
    vr = lambda r, n: f"v[{r}:{r+n-1}]"
    SL = v("SL"); CH = v("CH"); XD = v("XD")
    T = v("T", 8); M = v("M", 4); TB = v("TB", 4); AF = v("AF", 8); ACC = v("ACC", 4); PB = v("PB", 4)
    W1 = v("W1", 32); W2 = v("W2", 32); XS = v("XS", 16); U = v("U", 16)
    assert XS == W2 + 32 and U == XS + 16
    XO = XS + 8; G = XS
    QF = v("QF", 16)
    MB = v("MB", 2); SD = v("SD", 2); RI = v("RI", 2)
    VW1 = v("VW1"); VW2 = v("VW2"); VXO = v("VXO"); VPP = v("VPP"); XF = v("XF"); VRW = v("VRW"); VOR = v("VOR")
    R0 = V.next
    SRD_W1, SRD_W2, SRD_WS, SRD_X, SRD_OUT = 28, 32, 44, 48, 52
    SRD_K, SRD_V = 28, 32
    sE, sTAG, sG, sS, sPROD, sF = 56, 57, 58, 59, 60, 61
    sO1, sO2, sDEL = 62, 63, 64
    s0, s1, s2, s3 = 66, 67, 68, 69
    sPATH, sRND, sCNT, sMSK = 70, 71, 72, 73
    C0, C1, C2 = 74, 76, 78
    sTL, sCUR, sTX = 82, 83, 84
    srd = lambda r: f"s[{r}:{r+3}]"

    if debug or diagpad: A(f"{clk} s[80:81]")
    A("s_load_dwordx16 s[4:19], s[0:1], 0")
    A("s_load_dwordx8 s[20:27], s[0:1], 64")
    if codepf:
        A(f"s_getpc_b64 s[{C0}:{C0+1}]\nv_lshlrev_b32 v{T}, 7, v0\nv_cmp_gt_u32 vcc, CODE_LINES, v0\ns_and_saveexec_b64 s[{C1}:{C1+1}], vcc\ns_cbranch_execz L_nopf")
        A(f"global_load_dword v{W1+31}, v{T}, s[{C0}:{C0+1}]\nL_nopf:\ns_mov_b64 exec, -1")
    sST = 65
    isB = f"s_bitcmp{1-apar}_b32 s2, 0"
    A(f"v_lshrrev_b32 v{T}, 6, v0\nv_and_b32 v0, 63, v0\ns_bfe_u32 s{sG}, s2, 0x20001\nv_readfirstlane_b32 s3, v{T}")
    A(f"s_lshr_b32 s{sS}, s2, 3\nv_lshrrev_b32 v{SL}, 4, v0\nv_and_b32 v{CH}, 15, v0\nv_lshlrev_b32 v{CH}, 4, v{CH}")
    A(f"s_lshr_b32 s{s0}, s{sS}, 3\ns_and_b32 s{s1}, s{sS}, 7\ns_lshl3_add_u32 s{s1}, s{sG}, s{s1}")
    A(f"s_and_b32 s{s2}, s{sS}, 1\ns_lshl_b32 s{s2}, s{s2}, 1\ns_lshr_b32 s{s3}, s{sS}, 2\ns_mul_i32 s{sF}, s{sG}, 7\ns_add_u32 s{s3}, s{s3}, s{sF}")
    A(f"s_movk_i32 s{sST}, 0x2000\n{isB}")
    A(f"s_cselect_b32 s{s0}, s{s2}, s{s0}\ns_cselect_b32 s{s1}, s{s3}, s{s1}\ns_cmovk_i32 s{sST}, 0x1c00\ns_cselect_b32 s{s2}, 28, 32")
    A(f"s_cmp_ge_u32 s{sS}, s{s2}\ns_cbranch_scc1 L_end")
    if only == "A": A(f"{isB}\ns_cbranch_scc1 L_end")
    if only == "B": A(f"{isB}\ns_cbranch_scc0 L_end")
    A("s_cmp_eq_u32 s3, 8\ns_cbranch_scc1 L_roleS")
    A(f"s_lshl_b32 s{s0}, s{s0}, 6\ns_add_u32 s{s0}, s{s0}, s3\ns_lshl_b32 s{s0}, s{s0}, 2")
    A(f"s_mul_i32 s{s2}, s{s0}, s{sST}\ns_lshl_b32 s{s1}, s{s1}, 8\ns_add_u32 s{s2}, s{s2}, s{s1}")
    A(f"v_mad_u32_u24 v{VW1}, v{SL}, s{sST}, v{CH}\nv_add_u32 v{VW1}, s{s2}, v{VW1}")
    A(f"s_lshl_b32 s{SRD_W1+2}, s{sST}, 10\ns_mov_b32 s{SRD_W1+3}, 0x20000\ns_lshl_b32 s{sST}, s{sST}, 5\ns_mov_b32 s{sO1}, 0\ns_bitcmp0_b32 s{sS}, 1")
    A("s_waitcnt lgkmcnt(0)")
    A(f"s_cselect_b64 s[{SRD_W1}:{SRD_W1+1}], s[16:17], s[18:19]\n{isB}\ns_cselect_b64 s[{SRD_W1}:{SRD_W1+1}], s[{SRD_W1}:{SRD_W1+1}], s[10:11]")
    ENTRY_MARK = len(L)

    def build_srd(r, p, size):
        A(f"s_mov_b64 s[{r}:{r+1}], s[{p}:{p+1}]\ns_mov_b32 s{r+2}, {size}\ns_mov_b32 s{r+3}, 0x20000")
    def pre_srd(r, size): A(f"s_mov_b32 s{r+2}, {size}\ns_mov_b32 s{r+3}, 0x20000")
    def fin_srd(r, p): A(f"s_mov_b64 s[{r}:{r+1}], s[{p}:{p+1}]")
    def masks(J2):
        A(f"v_and_b32 v{T}, 1, v0\nv_lshlrev_b32 v{T}, 4, v{T}\nv_mov_b32 v{T+1}, 0xffff\nv_lshlrev_b32 v{T+1}, v{T}, v{T+1}")
        A(f"v_bfe_u32 v{T+2}, v0, 1, 2")
        for r, c in enumerate((C0, C1, C2)): A(f"v_cmp_eq_u32 s[{c}:{c+1}], {r}, v{T+2}")
        A(f"v_cmp_eq_u32 vcc, 3, v{T+2}")
        for r, c in enumerate((C0, C1, C2)): A(f"v_cndmask_b32 v{M+r}, 0, v{T+1}, s[{c}:{c+1}]")
        A(f"v_cndmask_b32 v{M+3}, 0, v{T+1}, vcc")
        A(f"v_and_b32 v{T}, {(J2-1)*16}, v{CH}\nv_lshl_add_u32 v{VOR}, v{SL}, 2, v{T}")
        A(f"s_lshl_b32 s{s2}, s3, 9\nv_lshlrev_b32 v{T}, 1, v{CH}\nv_lshl_add_u32 v{T}, v{SL}, 4, v{T}\nv_add_u32 v{VRW}, s{s2}, v{T}")
    def wave_sum(r):
        for c in ("row_shr:1", "row_shr:2", "row_shr:4", "row_shr:8"):
            A(f"v_add_f32_dpp v{r}, v{r}, v{r} {c} row_mask:0xf bank_mask:0xf bound_ctrl:0")
        A(f"v_add_f32_dpp v{r}, v{r}, v{r} row_bcast:15 row_mask:0xa bank_mask:0xf")
        A(f"v_add_f32_dpp v{r}, v{r}, v{r} row_bcast:31 row_mask:0xc bank_mask:0xf")
    def rbf(dst, src):
        A(f"v_cvt_pk_bf16_f32 v{dst}, {src}, {src}\nv_and_b32 v{dst}, 0xffff0000, v{dst}")
    def ln_stats():
        for k in range(8):
            A(f"v_lshlrev_b32 v{U+2*k}, 16, v{XS+k}\nv_and_b32 v{U+2*k+1}, 0xffff0000, v{XS+k}")
        A(f"v_pk_add_f32 {vr(T,2)}, {vr(U,2)}, {vr(U+2,2)}\nv_pk_add_f32 {vr(T+2,2)}, {vr(U+4,2)}, {vr(U+6,2)}")
        A(f"v_pk_add_f32 {vr(T+4,2)}, {vr(U+8,2)}, {vr(U+10,2)}\nv_pk_add_f32 {vr(T+6,2)}, {vr(U+12,2)}, {vr(U+14,2)}")
        A(f"v_pk_add_f32 {vr(T,2)}, {vr(T,2)}, {vr(T+2,2)}\nv_pk_add_f32 {vr(T+4,2)}, {vr(T+4,2)}, {vr(T+6,2)}")
        A(f"v_pk_add_f32 {vr(T,2)}, {vr(T,2)}, {vr(T+4,2)}\nv_add_f32 v{T}, v{T}, v{T+1}")
        wave_sum(T)
        A(f"v_mul_f32 v{T}, 0x3a800000, v{T}\nv_readlane_b32 s{s2}, v{T}, 63")
        for k in range(8):
            A(f"v_pk_add_f32 {vr(U+2*k,2)}, {vr(U+2*k,2)}, s[{s2}:{s2+1}] op_sel_hi:[1,0] neg_lo:[0,1] neg_hi:[0,1]")
        A(f"v_pk_mul_f32 {vr(T,2)}, {vr(U,2)}, {vr(U,2)}\nv_pk_mul_f32 {vr(T+2,2)}, {vr(U+2,2)}, {vr(U+2,2)}")
        for k in range(2, 8):
            t = T + 2 * (k & 1)
            A(f"v_pk_fma_f32 {vr(t,2)}, {vr(U+2*k,2)}, {vr(U+2*k,2)}, {vr(t,2)}")
        A(f"v_pk_add_f32 {vr(T,2)}, {vr(T,2)}, {vr(T+2,2)}\nv_add_f32 v{T}, v{T}, v{T+1}")
        rbf(MB, f"s{s2}")
        wave_sum(T)
        A(f"v_mul_f32 v{T}, 0x3a800000, v{T}\nv_readlane_b32 s{s2}, v{T}, 63")
        rbf(SD, f"s{s2}"); A(f"v_add_f32 v{SD}, 0x3727c5ac, v{SD}"); rbf(SD, f"v{SD}"); A(f"v_sqrt_f32 v{SD}, v{SD}")
        A("s_waitcnt lgkmcnt(0)")
        get_tag(False)
        A(f"v_mov_b32 v{T+4}, v{MB}\nv_mov_b32 v{T+3}, 0\nv_mov_b32 v{T+7}, 1")
        rbf(T+5, f"v{SD}"); A(f"v_rcp_f32 v{T+6}, v{T+5}\ns_nop 0")
        A(f"ds_write_b128 v{T+3}, {vr(T+4,4)} offset:{L_S}")
        if not sflag: A("s_waitcnt lgkmcnt(0)\ns_barrier")
    def ln_own(lbl):
        A(f"v_mov_b32 v{T+3}, 0\nv_lshlrev_b32 v{U}, 16, v{XO}")
        if not sflag: A("s_barrier")
        A(f"{lbl}:\nds_read_b128 {vr(T+4,4)}, v{T+3} offset:{L_S}\ns_waitcnt lgkmcnt(0)")
        if sflag: A(f"v_cmp_eq_u32 vcc, 0, v{T+7}\ns_cbranch_vccnz {lbl}")
        A(f"v_sub_f32 v{U}, v{U}, v{T+4}")
        rbf(U, f"v{U}")
        A(f"v_mul_f32 v{T}, v{U}, v{T+6}\nv_fma_f32 v{T+1}, -v{T}, v{T+5}, v{U}\nv_fma_f32 v{T}, v{T+1}, v{T+6}, v{T}")
        A(f"v_cvt_pk_bf16_f32 v{XD}, v{T}, v{T}")
    def af_build(j):
        for r in range(4): A(f"v_and_b32_dpp v{AF+4*(j&1)+r}, v{XD}, v{M+r} row_newbcast:{j} row_mask:0xf bank_mask:0xf")
    def af(j): return vr(AF+4*(j&1), 4)
    def get_tag(bytes_=True):
        A(f"s_add_u32 s{sE}, s{sE}, 1\ns_mul_i32 s{sTAG}, s{sE}, 0x01010101")
        if bytes_:
            A(f"v_mov_b32 v{TB}, s{sTAG}\nv_lshrrev_b32 v{TB+1}, 8, v{TB}\nv_lshrrev_b32 v{TB+2}, 16, v{TB}\nv_lshrrev_b32 v{TB+3}, 24, v{TB}")
            A(f"s_mov_b32 s{sMSK}, 0xffffff00")
        A(f"s_mov_b32 s{sCNT}, {spin}\ns_mov_b32 s{sDEL}, {DELTA}")
        A(f"s_getreg_b32 s{sTX}, hwreg(HW_REG_XCC_ID, 0, 3)\ns_add_u32 s{sTX}, s{sTX}, 1\ns_lshl_b32 s{sTX}, s{sTX}, 28\ns_xor_b32 s{sTL}, s{sTAG}, s{sTX}")
    def amp_pub():
        if not amp: return
        A(f"s_lshl_b32 s{s2}, s2, 3\ns_add_u32 s{s2}, s{s2}, {TSBASE}\nv_mov_b32 v{T}, s80\nv_mov_b32 v{T+1}, s{sTAG}\nv_mov_b32 v{T+2}, s{s2}")
        A(f"s_mov_b64 exec, 1\nbuffer_store_dwordx2 {vr(T,2)}, v{T+2}, {srd(SRD_WS)}, 0 offen sc1\ns_mov_b64 exec, -1\ns_nop 1")
    def x_stats_loads():
        build_srd(SRD_X, 4, 2048)
        A(f"v_lshlrev_b32 v{T+2}, 5, v0")
        A(f"buffer_load_dwordx4 {vr(XS,4)}, v{T+2}, {srd(SRD_X)}, 0 offen\nbuffer_load_dwordx4 {vr(XS+4,4)}, v{T+2}, {srd(SRD_X)}, 0 offen offset:16")
    def x_own_load(J):
        build_srd(SRD_X, 4, 2048)
        A(f"s_lshl_b32 s{s1}, s{s0}, 1\nv_and_b32 v{T}, {(J-1)*16}, v{CH}\nv_lshlrev_b32 v{T}, 2, v{T}\nv_lshl_add_u32 v{T}, v{SL}, 1, v{T}\nv_add_u32 v{VXO}, s{s1}, v{T}")
        A(f"buffer_load_ushort v{XO}, v{VXO}, {srd(SRD_X)}, 0 offen")
    def partial_store_lds():
        A("s_mov_b32 exec_hi, 0")
        A(f"ds_write_b128 v{VRW}, {vr(ACC,4)} offset:{L_R}")
        A("s_mov_b32 exec_hi, -1")
    def reduce8(dst=None, tag=None):
        dst = PB if dst is None else dst; tag = sTL if tag is None else tag
        for k in range(8): A(f"ds_read_b64 {vr(U+2*k,2)}, v{T+4} offset:{L_R+k*512}")
        A(f"v_mov_b32 v{dst+2}, s{tag}\nv_mov_b32 v{dst+3}, s{tag}")
        A(f"s_waitcnt lgkmcnt({0 if full else 4})")
        A(f"v_pk_add_f32 {vr(U,2)}, {vr(U,2)}, {vr(U+2,2)}\nv_pk_add_f32 {vr(U+4,2)}, {vr(U+4,2)}, {vr(U+6,2)}")
        A("s_waitcnt lgkmcnt(0)")
        A(f"v_pk_add_f32 {vr(U+8,2)}, {vr(U+8,2)}, {vr(U+10,2)}\nv_pk_add_f32 {vr(U+12,2)}, {vr(U+12,2)}, {vr(U+14,2)}")
        A(f"v_pk_add_f32 {vr(U,2)}, {vr(U,2)}, {vr(U+4,2)}\nv_pk_add_f32 {vr(U+8,2)}, {vr(U+8,2)}, {vr(U+12,2)}")
        A(f"v_pk_add_f32 {vr(dst,2)}, {vr(U,2)}, {vr(U+8,2)}")
    def pub_local(data, addr, p=""):
        A(f"buffer_store_dwordx4 {vr(data,4)}, v{addr}, {srd(SRD_WS)}, 0 offen {p}")
    def pub_global(data, addr):
        A(f"buffer_store_dwordx4 {vr(data,4)}, v{addr}, {srd(SRD_WS)}, s{sDEL} offen sc1")
    def poll_init():
        A(f"s_mov_b32 s{sPATH}, 0\ns_mov_b32 s{sRND}, 0\ns_mov_b32 s{sCUR}, s{sTL}")
    def poll_tail(lbl, late=None, sleep=0):
        if sleep: A(f"s_sleep {sleep}")
        A(f"s_add_u32 s{sRND}, s{sRND}, 1\ns_cmp_lt_u32 s{sRND}, {limit}\ns_cbranch_scc1 {lbl}")
        if late:
            A(f"s_cmp_lg_u32 s{sRND}, {limit}\ns_cbranch_scc1 {lbl}_sw")
            late()
            A(f"{lbl}_sw:")
        A(f"s_xor_b32 s{sPATH}, s{sPATH}, s{sDEL}\ns_xor_b32 s{sCUR}, s{sCUR}, s{sTX}")
        A(f"s_sub_u32 s{sCNT}, s{sCNT}, 1\ns_cbranch_scc0 {lbl}\ns_mov_b32 s{sCNT}, 0")
    def w2_addr(srow):
        A(f"s_lshl_b32 s{s2}, s{srow}, 11\ns_lshl_b32 s{s3}, s3, 8\ns_add_u32 s{s2}, s{s2}, s{s3}")
        A(f"v_lshlrev_b32 v{T}, 11, v{SL}\nv_add3_u32 v{VW2}, v{T}, v{CH}, s{s2}\ns_mov_b32 s{sO2}, 0")
    cnt = {"w1": 0, "w2": 0}
    def w1_load(step):
        j = cnt["w1"]; cnt["w1"] += 1
        A(f"buffer_load_dwordx4 {vr(W1+4*(j&7),4)}, v{VW1}, {srd(SRD_W1)}, s{sO1} offen {pol}")
        if j < 15: A(f"s_add_u32 s{sO1}, s{sO1}, s{sST}")
    def w2_load(n=1):
        for _ in range(n):
            j = cnt["w2"]; cnt["w2"] += 1
            A(f"buffer_load_dwordx4 {vr(W2+4*j,4)}, v{VW2}, {srd(SRD_W2)}, s{sO2} offen {pol}\ns_add_u32 s{sO2}, s{sO2}, 8192")
    def pp_addr():
        if fullline:
            A(f"v_bfe_u32 v{T}, v0, 2, 2\nv_lshlrev_b32 v{T}, 15, v{T}\nv_and_b32 v{T+1}, 3, v0\nv_lshlrev_b32 v{T+1}, 5, v{T+1}\nv_and_b32 v{T+2}, 16, v0")
            A(f"v_add3_u32 v{T}, v{T}, v{T+1}, v{T+2}")
            A(f"s_lshl_b32 s{s2}, s3, 17\ns_lshl_b32 s{s3}, s{sPROD}, 7\ns_add_u32 s{s2}, s{s2}, s{s3}\ns_add_u32 s{s2}, s{s2}, {PBASE}")
            A(f"v_add_u32 v{VPP}, s{s2}, v{T}")
            return
        A(f"v_bfe_u32 v{T}, v0, 1, 3\nv_lshlrev_b32 v{T}, 14, v{T}\nv_and_b32 v{T+1}, 1, v0\nv_lshlrev_b32 v{T+1}, 5, v{T+1}\nv_and_b32 v{T+2}, 16, v0")
        A(f"v_add3_u32 v{T}, v{T}, v{T+1}, v{T+2}")
        A(f"s_lshl_b32 s{s2}, s3, 17\ns_lshl_b32 s{s3}, s{sPROD}, 6\ns_add_u32 s{s2}, s{s2}, s{s3}\ns_add_u32 s{s2}, s{s2}, {PBASE}")
        A(f"v_add_u32 v{VPP}, s{s2}, v{T}")
    def stage3(n, nearly, younger=0):
        assert cnt["w2"] == n
        A(f"ds_read_b32 v{XD}, v{VOR} offset:{L_O}")
        A("s_waitcnt lgkmcnt(0)")
        af_build(0)
        for j in range(n):
            if j < n - 1: af_build(j + 1)
            if j >= nearly: A(f"s_waitcnt vmcnt({n-1-j+younger})")
            A(f"v_mfma_f32_16x16x32_bf16 {vr(ACC,4)}, {af(j)}, {vr(W2+4*j,4)}, {vr(ACC,4) if j else 0}")
        A("s_mov_b32 exec_hi, 0")
        for r in range(4): A(f"v_bfi_b32 v{T+r}, s{sMSK}, v{ACC+r}, v{TB+r}")
        A(f"buffer_store_dwordx4 {vr(T,4)}, v{VPP}, {srd(SRD_WS)}, 0 offen {pst}")
        if dupP: A(f"buffer_store_dwordx4 {vr(T,4)}, v{VPP}, {srd(SRD_WS)}, s{sDEL} offen {pst}")
        A("s_mov_b32 exec_hi, -1")
    def write_stamps(n=10):
        if not debug: return
        A("s_waitcnt lgkmcnt(0)")
        for k in range(n): A(f"v_writelane_b32 v{T+4}, s{4+2*k}, {k}")
        A(f"v_writelane_b32 v{T+4}, s80, 15")
        A(f"s_lshl_b32 s{s2}, s2, 4\ns_add_u32 s{s2}, s{s2}, s3\ns_lshl_b32 s{s2}, s{s2}, 6\ns_add_u32 s{s2}, s{s2}, {TSBASE}")
        A(f"v_lshlrev_b32 v{T+5}, 2, v0\nv_add_u32 v{T+5}, s{s2}, v{T+5}")
        A("s_mov_b32 exec_lo, 0xffff\ns_mov_b32 exec_hi, 0")
        A(f"buffer_store_dword v{T+4}, v{T+5}, {srd(SRD_WS)}, 0 offen")
        A("s_mov_b64 exec, -1")
    def check4(regs, ok):
        A(f"v_cmp_ne_u32 vcc, s{sCUR}, v{regs[0]}\nv_cmp_ne_u32 s[{C0}:{C0+1}], s{sCUR}, v{regs[1]}\nv_cmp_ne_u32 s[{C1}:{C1+1}], s{sCUR}, v{regs[2]}\nv_cmp_ne_u32 s[{C2}:{C2+1}], s{sCUR}, v{regs[3]}")
        A(f"s_or_b64 s[{C0}:{C0+1}], s[{C0}:{C0+1}], vcc\ns_or_b64 s[{C1}:{C1+1}], s[{C1}:{C1+1}], s[{C2}:{C2+1}]\ns_or_b64 s[{C0}:{C0+1}], s[{C0}:{C0+1}], s[{C1}:{C1+1}]\ns_cbranch_scc0 {ok}")
    def gemv1(order, sched, win0, extra, step, n=16, other=None):
        pos_of = [p for p, e in enumerate(order) if e == "a"]
        seq = list(extra)
        st = {"issued": win0}
        def issue():
            e = order[st["issued"]]
            if e == "a": w1_load(step)
            elif other: other()
            else: w2_load()
            seq.append(st["issued"]); st["issued"] += 1
        af_build(0)
        for j in range(n):
            if j < n - 1: af_build(j + 1)
            pos = pos_of[j]
            while st["issued"] <= min(pos + sched[pos] - 2, len(order) - 1) or pos not in seq:
                A(f"s_waitcnt vmcnt({max(sched[st['issued'] - 1] - 1, 0)})"); issue()
            A(f"s_waitcnt vmcnt({len(seq)-1-seq.index(pos)})")
            A(f"v_mfma_f32_16x16x32_bf16 {vr(ACC,4)}, {af(j)}, {vr(W1+4*(j&7),4)}, {vr(ACC,4) if j else 0}")
            while st["issued"] < len(order) and st["issued"] - (pos + 1) < sched[pos + 1]:
                issue()
        return st["issued"]

    cnt["w1"] = cnt["w2"] = 0
    for n in range(w0): w1_load(0)
    A(f"s_load_dword s{sE}, s[26:27], 0")
    A(f"{isB}\ns_cbranch_scc1 L_roleB\ns_branch L_roleA")
    A("L_roleS:")
    if sprio: A(f"s_setprio {sprio}")
    pre_srd(SRD_X, 2048)
    A(f"v_lshlrev_b32 v{T+2}, 5, v0")
    A("s_waitcnt lgkmcnt(0)")
    fin_srd(SRD_X, 4)
    A(f"buffer_load_dwordx4 {vr(XS,4)}, v{T+2}, {srd(SRD_X)}, 0 offen\nbuffer_load_dwordx4 {vr(XS+4,4)}, v{T+2}, {srd(SRD_X)}, 0 offen offset:16")
    A("s_branch L_roleS2")
    A("L_roleA:")
    x_own_load(8)
    for n in range(w0, a_w): w1_load(0)
    seqA = list(range(w0)) + ["x"] + list(range(w0, a_w))
    build_srd(SRD_WS, 26, 268435456)
    masks(8)
    V.next = R0
    KA = QF; VA = QF + 4; KR = QF + 8; VR_ = v("VR"); QR = v("QR"); PW = v("PW"); VQP = XF; VOP = v("VOP"); HM = v("HM"); VST = v("VST")
    KF = W1; QF2 = W1 + 16; VF = XS; ONE = PB; LA = AF + 4
    hi = V.next
    SRD_K, SRD_V = 36, 40
    build_srd(SRD_K, 6, 67108864); build_srd(SRD_V, 8, 67108864); build_srd(SRD_W2, 12, 8388608)
    stamp(0)
    A(f"s_lshl_b32 s{s2}, s{sG}, 24\ns_lshl_b32 s{s3}, s{sS}, 15\ns_add_u32 s{s2}, s{s2}, s{s3}\ns_lshl_b32 s{sF}, s3, 12\ns_add_u32 s{s2}, s{s2}, s{sF}\ns_add_u32 s{s2}, s{s2}, {61440*256}")
    A(f"v_lshlrev_b32 v{T+2}, 8, v{SL}\nv_add_u32 v{T+2}, s{s2}, v{T+2}")
    A(f"v_lshlrev_b32 v{T+3}, 4, v{SL}\nv_xor_b32 v{T+3}, v{T+3}, v{CH}")
    for t in range(4): A(f"v_xor_b32 v{T+4}, {64*t}, v{T+3}\nv_add_u32 v{KA+t}, v{T+4}, v{T+2}")
    A(f"v_lshlrev_b32 v{T+4}, 5, v{SL}\nv_xor_b32 v{T+4}, v{T+4}, v{CH}\nv_add_u32 v{VA}, v{T+4}, v{T+2}")
    A(f"v_xor_b32 v{T+4}, 128, v{T+4}\nv_add_u32 v{VA+1}, v{T+4}, v{T+2}")
    A(f"s_add_u32 m0, s{sF}, {L_K}")
    A(f"v_lshl_add_u32 v{T+4}, v{CH}, 4, s{sF}")
    for ks in range(4): A(f"v_xor_b32 v{T+5}, {64*ks}, v{T+3}\nv_add_u32 v{KR+ks}, v{T+5}, v{T+4}")
    A(f"v_bfe_u32 v{T+4}, v0, 2, 2\nv_lshl_add_u32 v{T+5}, v{SL}, 3, v{T+4}\nv_lshlrev_b32 v{T+5}, 8, v{T+5}")
    A(f"v_and_b32 v{T+6}, 1, v{SL}\nv_lshl_or_b32 v{T+4}, v{T+6}, 2, v{T+4}\nv_xor_b32 v{T+4}, s3, v{T+4}\nv_lshlrev_b32 v{T+4}, 5, v{T+4}")
    A(f"v_and_b32 v{T+6}, 3, v0\nv_lshlrev_b32 v{T+6}, 3, v{T+6}\nv_add3_u32 v{VR_}, v{T+4}, v{T+5}, v{T+6}\nv_add_u32 v{VR_}, {L_V}, v{VR_}")
    A(f"v_and_b32 v{T+4}, 7, v0\nv_lshlrev_b32 v{HM}, 2, v{T+4}\nv_mul_u32_u24 v{T+4}, 288, v{T+4}\nv_lshl_add_u32 v{QR}, v{SL}, 4, v{T+4}")
    A(f"s_lshl_b32 s{s2}, s3, 5\nv_lshl_add_u32 v{PW}, v{SL}, 3, v{T+4}\nv_add_u32 v{PW}, s{s2}, v{PW}")
    A(f"s_lshl_b32 s{s2}, s{sG}, 15\ns_add_u32 s{s2}, s{s2}, s{sF}\ns_add_u32 s{s2}, s{s2}, {QBASE}\nv_lshl_add_u32 v{VQP}, v0, 4, s{s2}")
    A(f"s_lshl_b32 s{s2}, s{sG}, 17\ns_lshr_b32 s{s3}, s3, 1\ns_lshl_b32 s{s3}, s{s3}, 12\ns_add_u32 s{s2}, s{s2}, s{s3}")
    A(f"s_lshl_b32 s{s3}, s{sS}, 7\ns_add_u32 s{s2}, s{s2}, s{s3}\ns_and_b32 s{s3}, s3, 1\ns_lshl_b32 s{s3}, s{s3}, 6\ns_add_u32 s{s2}, s{s2}, s{s3}\ns_add_u32 s{s2}, s{s2}, {OBASE}")
    A(f"v_lshlrev_b32 v{T+4}, 12, v{HM}\nv_lshlrev_b32 v{T+5}, 4, v{SL}\nv_add3_u32 v{VOP}, v{T+4}, v{T+5}, s{s2}")
    A(f"s_lshl_b32 s{sPROD}, s{sG}, 5\ns_add_u32 s{sPROD}, s{sPROD}, s{sS}\ns_lshl_b32 s{s0}, s{sPROD}, 5")
    w2_addr(s0); pp_addr()
    A(f"s_lshl_b32 s{s2}, s3, 9\nv_lshlrev_b32 v{T}, 2, v{HM}\nv_lshl_add_u32 v{T}, v{SL}, 7, v{T}\nv_add_u32 v{VST}, s{s2}, v{T}")
    for r in range(4): A(f"v_mov_b32 v{ONE+r}, 0x3f803f80")
    A(f"v_mov_b32 v{T}, 0xff800000\nds_write_b32 v{HM}, v{T} offset:{L_M}")
    A("s_waitcnt lgkmcnt(0)")
    get_tag()
    poll_init()
    if sflag: A("s_barrier")
    na = a_w
    for n in range(adv):
        A(f"s_waitcnt vmcnt({len(seqA)-1-seqA.index(n)})"); w1_load(0); seqA.append(na); na += 1
    A(f"s_waitcnt vmcnt({len(seqA)-1-seqA.index('x')})")
    stamp(1)
    ln_own("LA_ln")
    stamp(2)
    kv = {"K": 0, "V": 0}
    def issue(e):
        if e == "W": w2_load(); return
        t = kv[e]; kv[e] += 1
        if e == "V" and t == 0: A(f"s_add_u32 m0, s{sF}, {L_V}")
        if e == "K": A(f"buffer_load_dwordx4 v{KA+t}, {srd(SRD_K)}, 0 offen offset:{t*1024} {pol} lds")
        else: A(f"buffer_load_dwordx4 v{VA+(t>>1)}, {srd(SRD_V)}, 0 offen offset:{t*1024} {pol} lds")
    allo = a_pre + a_mid + a_post
    assert allo.count("K") == 4 and allo.count("V") == 4 and "K" not in a_post and allo.index("V") > allo.rindex("K")
    pre = list(a_pre); npre = len(pre)
    sched = [max(min(a_w, 8 + npre - p), 1) for p in range(9)] + [1] * 16
    issued = gemv1(["a"] * 8 + ["w"] * npre, sched, na, seqA, 0, 8, lambda: issue(pre.pop(0))) - 8
    assert issued == npre
    stamp(3)
    partial_store_lds()
    A("s_waitcnt lgkmcnt(0)\ns_barrier")
    nbar = 0
    if a_pubbar: A("s_barrier")
    stamp(4)
    for n, e in enumerate(a_mid):
        if npre + n >= a_w2: A(f"s_waitcnt vmcnt({a_w2-1})")
        issue(e)
    A(f"s_waitcnt vmcnt({a_pollwait})")
    def q_loads():
        for u in range(4): A(f"buffer_load_dwordx4 {vr(G+4*u,4)}, v{VQP}, {srd(SRD_WS)}, s{sPATH} offen offset:{u*1024} sc1")
    if debug and probe == "qr": A("s_waitcnt lgkmcnt(0)\ns_add_u32 s4, s80, 0")
    q_loads()
    if a_qbar: A("s_barrier"); nbar += 1
    for e in a_post: issue(e)
    A(f"s_waitcnt vmcnt({len(a_post)})")
    vyoung = len(a_post) - 1 - a_post.rindex("V") if "V" in a_post else 63
    for ks in range(4): A(f"ds_read_b128 {vr(KF+4*ks,4)}, v{KR+ks} offset:{L_K}")
    check4([G+2, G+6, G+10, G+14], "LA_qok")
    if debug and probe == "qr": A("s_add_u32 s4, s80, 100")
    A("LA_qpoll:")
    q_loads()
    A("s_waitcnt vmcnt(0)")
    check4([G+2, G+6, G+10, G+14], "LA_qok")
    def late_q():
        A(f"v_lshlrev_b32 v{T+4}, 3, v0")
        reduce8(T, sTAG)
        A(f"s_lshl_b32 s{s0}, s{sG}, 15\ns_and_b32 s{s1}, s{sS}, 7\ns_lshl_b32 s{s1}, s{s1}, 12\ns_add_u32 s{s0}, s{s0}, s{s1}\ns_lshr_b32 s{s1}, s{sS}, 3\ns_lshl_b32 s{s1}, s{s1}, 10\ns_add_u32 s{s0}, s{s0}, s{s1}\ns_add_u32 s{s0}, s{s0}, {QBASE}")
        A(f"v_lshl_add_u32 v{T+4}, v0, 4, s{s0}")
        pub_global(T, T+4)
    poll_tail("LA_qpoll", late_q, qsleep)
    A("LA_qok:")
    stamp(5)
    A(f"v_pk_add_f32 {vr(G,2)}, {vr(G,2)}, {vr(G+4,2)}\nv_pk_add_f32 {vr(G+8,2)}, {vr(G+8,2)}, {vr(G+12,2)}")
    A(f"s_mul_i32 s{s2}, s3, 288\nv_lshl_add_u32 v{T}, v0, 2, s{s2}")
    A(f"v_pk_add_f32 {vr(G,2)}, {vr(G,2)}, {vr(G+8,2)}\nv_cvt_pk_bf16_f32 v{G}, v{G}, v{G+1}")
    A(f"ds_write_b32 v{T}, v{G} offset:{L_Q}")
    w2_load(a_pts[0])
    A("s_waitcnt lgkmcnt(0)\ns_barrier"); nbar += 1
    for ks in range(4): A(f"ds_read_b128 {vr(QF2+4*ks,4)}, v{QR} offset:{L_Q+64*ks}")
    for ks in range(4):
        A(f"s_waitcnt lgkmcnt({0 if full else 3-ks})")
        A(f"v_mfma_f32_16x16x32_bf16 {vr(ACC,4)}, {vr(KF+4*ks,4)}, {vr(QF2+4*ks,4)}, {vr(ACC,4) if ks else 0}")
    A(f"s_mov_b32 s{s2}, 0x3db504f3")
    A(f"v_cvt_pk_bf16_f32 v{T}, v{ACC}, v{ACC+1}\nv_cvt_pk_bf16_f32 v{T+1}, v{ACC+2}, v{ACC+3}")
    A(f"v_lshlrev_b32 v{U}, 16, v{T}\nv_and_b32 v{U+1}, 0xffff0000, v{T}\nv_lshlrev_b32 v{U+2}, 16, v{T+1}\nv_and_b32 v{U+3}, 0xffff0000, v{T+1}")
    A(f"v_pk_mul_f32 {vr(U,2)}, {vr(U,2)}, s[{s2}:{s2+1}] op_sel_hi:[1,0]\nv_pk_mul_f32 {vr(U+2,2)}, {vr(U+2,2)}, s[{s2}:{s2+1}] op_sel_hi:[1,0]")
    A(f"v_cvt_pk_bf16_f32 v{T}, v{U}, v{U+1}\nv_cvt_pk_bf16_f32 v{T+1}, v{U+2}, v{U+3}")
    A(f"v_lshlrev_b32 v{U}, 16, v{T}\nv_and_b32 v{U+1}, 0xffff0000, v{T}\nv_lshlrev_b32 v{U+2}, 16, v{T+1}\nv_and_b32 v{U+3}, 0xffff0000, v{T+1}")
    A(f"v_max3_f32 v{T}, v{U}, v{U+1}, v{U+2}\nv_max_f32 v{T}, v{T}, v{U+3}")
    A(f"ds_max_f32 v{HM}, v{T} offset:{L_M}")
    w2_load(a_pts[1])
    A("s_waitcnt lgkmcnt(0)\ns_barrier"); nbar += 1
    A(f"ds_read_b32 v{MB}, v{HM} offset:{L_M}")
    A(f"s_mov_b32 s{s2}, 0x3fb8aa3b")
    A("s_waitcnt lgkmcnt(0)")
    A(f"v_pk_add_f32 {vr(U,2)}, {vr(U,2)}, {vr(MB,2)} op_sel_hi:[1,0] neg_lo:[0,1] neg_hi:[0,1]\nv_pk_add_f32 {vr(U+2,2)}, {vr(U+2,2)}, {vr(MB,2)} op_sel_hi:[1,0] neg_lo:[0,1] neg_hi:[0,1]")
    A(f"v_pk_mul_f32 {vr(U,2)}, {vr(U,2)}, s[{s2}:{s2+1}] op_sel_hi:[1,0]\nv_pk_mul_f32 {vr(U+2,2)}, {vr(U+2,2)}, s[{s2}:{s2+1}] op_sel_hi:[1,0]")
    for r in range(4): A(f"v_exp_f32 v{U+r}, v{U+r}")
    A(f"v_cvt_pk_bf16_f32 v{T}, v{U}, v{U+1}\nv_cvt_pk_bf16_f32 v{T+1}, v{U+2}, v{U+3}")
    A(f"ds_write_b64 v{PW}, {vr(T,2)} offset:{L_P}")
    A(f"v_mul_f32 v{MB}, s{s2}, v{MB}")
    A("s_waitcnt lgkmcnt(0)\ns_barrier"); nbar += 1
    for ks in range(4): A(f"ds_read_b128 {vr(QF2+4*ks,4)}, v{QR} offset:{L_P+64*ks}")
    for ks in range(4):
        A(f"s_waitcnt lgkmcnt({0 if full else 3-ks})")
        A(f"v_mfma_f32_16x16x32_bf16 {vr(LA,4)}, {vr(ONE,4)}, {vr(QF2+4*ks,4)}, {vr(LA,4) if ks else 0}")
    if vyoung < 63:
        A(f"s_waitcnt vmcnt({vyoung + sum(a_pts)})\ns_barrier"); nbar += 1
    for ks in range(4):
        for hh in range(2): A(f"ds_read_b64_tr_b16 {vr(VF+4*ks+2*hh,2)}, v{VR_} offset:{ks*8192+hh*1024}")
    OG = QF + 12
    A(f"v_rcp_f32 v{RI}, v{LA}\nv_log_f32 v{OG+2}, v{LA}\nv_mov_b32 v{OG+3}, s{sTL}")
    A(f"v_add_f32 v{OG+2}, v{OG+2}, v{MB}")
    for ks in range(4):
        A(f"s_waitcnt lgkmcnt({0 if full else 6-2*ks})")
        A(f"v_mfma_f32_16x16x32_bf16 {vr(ACC,4)}, {vr(VF+4*ks,4)}, {vr(QF2+4*ks,4)}, {vr(ACC,4) if ks else 0}")
    A("s_mov_b32 exec_lo, 0x00ff00ff\ns_mov_b32 exec_hi, 0x00ff00ff")
    A(f"v_pk_mul_f32 {vr(ACC,2)}, {vr(ACC,2)}, {vr(RI,2)} op_sel_hi:[1,0]\nv_pk_mul_f32 {vr(ACC+2,2)}, {vr(ACC+2,2)}, {vr(RI,2)} op_sel_hi:[1,0]")
    A(f"v_cvt_pk_bf16_f32 v{OG}, v{ACC}, v{ACC+1}\nv_cvt_pk_bf16_f32 v{OG+1}, v{ACC+2}, v{ACC+3}")
    A(f"ds_write_b128 v{VST}, {vr(OG,4)} offset:{L_R}")
    pub_local(OG, VOP, opol)
    if dupO: A(f"buffer_store_dwordx4 {vr(OG,4)}, v{VOP}, {srd(SRD_WS)}, s{sDEL} offen")
    A("s_mov_b64 exec, -1")
    A("s_waitcnt lgkmcnt(0)\ns_barrier"); nbar += 1
    stamp(6)
    n0 = cnt["w2"]
    while cnt["w2"] < 8:
        if cnt["w2"] - n0 >= a_ww: A(f"s_waitcnt vmcnt({a_ww-1})")
        w2_load()
    stamp(7)
    A("s_barrier")
    stamp(8)
    stage3(8, 0)
    stamp(9)
    write_stamps()
    A("s_endpgm")

    A("L_roleS2:")
    if sflag: A(f"v_mov_b32 v{T+3}, 0\nds_write_b32 v{T+3}, v{T+3} offset:{L_S+12}\ns_waitcnt lgkmcnt(0)\ns_barrier")
    A(f"s_load_dword s{sE}, s[26:27], 0")
    build_srd(SRD_WS, 26, 268435456)
    A(f"{isB}\ns_cbranch_scc1 L_roleSB")
    VQS = R0; VOG = R0 + 1
    A(f"s_lshl_b32 s{s0}, s{sG}, 15\ns_and_b32 s{s1}, s{sS}, 7\ns_lshl_b32 s{s1}, s{s1}, 12\ns_add_u32 s{s0}, s{s0}, s{s1}\ns_lshr_b32 s{s1}, s{sS}, 3\ns_lshl_b32 s{s1}, s{s1}, 10\ns_add_u32 s{s0}, s{s0}, s{s1}\ns_add_u32 s{s0}, s{s0}, {QBASE}")
    A(f"v_lshl_add_u32 v{VQS}, v0, 4, s{s0}")
    A(f"s_lshl_b32 s{s0}, s{sG}, 17\ns_lshl_b32 s{s1}, s{sS}, 12\ns_add_u32 s{s0}, s{s0}, s{s1}\ns_add_u32 s{s0}, s{s0}, {OBASE}\nv_lshl_add_u32 v{VOG}, v0, 4, s{s0}")
    A("s_waitcnt vmcnt(0)")
    ln_stats()
    if tq: A(f"buffer_load_dwordx4 {vr(G,4)}, v{VQS}, {srd(SRD_WS)}, 0 offen")
    for u in range(4 if to else 0): A(f"buffer_load_dwordx4 {vr(G+8,4)}, v{VOG}, {srd(SRD_WS)}, 0 offen offset:{u*1024}")
    if tlb:
        A(f"s_lshl_b32 s{s0}, s{sG}, 24\ns_lshl_b32 s{s1}, s{sS}, 15\ns_add_u32 s{s0}, s{s0}, s{s1}\ns_add_u32 s{s0}, s{s0}, {61440*256}\nv_mov_b32 v{T}, s{s0}")
        A(f"s_lshl_b32 s{s0}, s{sG}, 21\ns_lshl_b32 s{s1}, s{sS}, 16\ns_add_u32 s{s0}, s{s0}, s{s1}\nv_mov_b32 v{T+1}, s{s0}\ns_mov_b64 exec, 1")
        A(f"global_load_dword v{G+12}, v{T}, s[6:7] {pol}\nglobal_load_dword v{G+13}, v{T}, s[8:9] {pol}\nglobal_load_dword v{G+14}, v{T+1}, s[12:13] {pol}\ns_mov_b64 exec, -1")
    A(f"v_lshlrev_b32 v{T+4}, 3, v0\nv_and_b32 v{VOR}, 0x70, v{CH}\nv_lshl_add_u32 v{VOR}, v{SL}, 2, v{VOR}")
    poll_init()
    amp_pub()
    A("s_waitcnt vmcnt(0)\ns_barrier")
    reduce8()
    pub_local(PB, VQS, qpol)
    if a_pubbar: A("s_barrier")
    stamp(4)
    for _ in range(nbar): A("s_barrier")
    A("LS_poll:")
    for u in range(4): A(f"buffer_load_dwordx4 {vr(G+4*u,4)}, v{VOG}, {srd(SRD_WS)}, s{sPATH} offen offset:{u*1024} sc1")
    A("s_waitcnt vmcnt(0)")
    check4([G+3, G+7, G+11, G+15], "LS_ok")
    def late_o():
        A(f"s_lshl_b32 s{s0}, s{sG}, 17\ns_lshl_b32 s{s1}, s{sS}, 7\ns_add_u32 s{s0}, s{s0}, s{s1}\ns_add_u32 s{s0}, s{s0}, {OBASE}")
        A(f"v_and_b32 v{T}, 7, v0\nv_lshlrev_b32 v{T}, 14, v{T}\nv_lshrrev_b32 v{T+1}, 3, v0\nv_lshlrev_b32 v{T+1}, 4, v{T+1}\nv_add3_u32 v{T}, v{T}, v{T+1}, s{s0}\nv_lshlrev_b32 v{T+2}, 4, v0")
        for u in range(4):
            A(f"ds_read_b128 {vr(W1+4*u,4)}, v{T+2} offset:{L_R+u*1024}\ns_waitcnt lgkmcnt(0)\nv_mov_b32 v{W1+4*u+3}, s{sTAG}")
            pub_global(W1+4*u, T)
            A(f"v_add_u32 v{T}, 4096, v{T}")
    poll_tail("LS_poll", late_o, osleep)
    A("LS_ok:")
    stamp(6)
    A(f"v_max3_f32 v{T}, v{G+2}, v{G+6}, v{G+10}\nv_max_f32 v{T}, v{T}, v{G+14}")
    for u in range(2):
        A(f"v_lshlrev_b32 v{U+4*u}, 16, v{G+4*u}\nv_and_b32 v{U+4*u+1}, 0xffff0000, v{G+4*u}")
    A(f"v_max_f32_dpp v{T}, v{T}, v{T} row_ror:8 row_mask:0xf bank_mask:0xf")
    for u in range(2):
        A(f"v_lshlrev_b32 v{U+4*u+2}, 16, v{G+4*u+1}")
    A(f"v_mov_b32 v{T+1}, v{T}")
    for u in range(2):
        A(f"v_and_b32 v{U+4*u+3}, 0xffff0000, v{G+4*u+1}")
    A(f"v_permlane16_swap_b32 v{T}, v{T+1}\nv_max_f32 v{T}, v{T}, v{T+1}\nv_mov_b32 v{T+1}, v{T}")
    for u in range(2, 4):
        A(f"v_lshlrev_b32 v{U+4*u}, 16, v{G+4*u}")
    A(f"v_permlane32_swap_b32 v{T}, v{T+1}\nv_max_f32 v{T}, v{T}, v{T+1}")
    for u in range(4): A(f"v_sub_f32 v{G+4*u+2}, v{G+4*u+2}, v{T}")
    for u in range(4): A(f"v_exp_f32 v{G+4*u+2}, v{G+4*u+2}")
    for u in range(2, 4):
        A(f"v_and_b32 v{U+4*u+1}, 0xffff0000, v{G+4*u}\nv_lshlrev_b32 v{U+4*u+2}, 16, v{G+4*u+1}\nv_and_b32 v{U+4*u+3}, 0xffff0000, v{G+4*u+1}")
    A(f"v_pk_mul_f32 {vr(ACC,2)}, {vr(U,2)}, {vr(G+2,2)} op_sel_hi:[1,0]\nv_pk_mul_f32 {vr(ACC+2,2)}, {vr(U+2,2)}, {vr(G+2,2)} op_sel_hi:[1,0]")
    A(f"v_add_f32 v{T}, v{G+2}, v{G+6}\nv_add_f32 v{T+1}, v{G+10}, v{G+14}")
    for u in range(1, 4):
        A(f"v_pk_fma_f32 {vr(ACC,2)}, {vr(U+4*u,2)}, {vr(G+4*u+2,2)}, {vr(ACC,2)} op_sel_hi:[1,0,1]\nv_pk_fma_f32 {vr(ACC+2,2)}, {vr(U+4*u+2,2)}, {vr(G+4*u+2,2)}, {vr(ACC+2,2)} op_sel_hi:[1,0,1]")
        if u == 1: A(f"v_add_f32 v{T}, v{T}, v{T+1}")
    A(f"v_add_f32_dpp v{T}, v{T}, v{T} row_ror:8 row_mask:0xf bank_mask:0xf")
    for r in range(4): A(f"v_add_f32_dpp v{ACC+r}, v{ACC+r}, v{ACC+r} row_ror:8 row_mask:0xf bank_mask:0xf")
    A(f"v_mov_b32 v{T+1}, v{T}")
    A(f"v_permlane16_swap_b32 v{T}, v{T+1}\nv_permlane16_swap_b32 v{ACC}, v{ACC+1}\nv_permlane16_swap_b32 v{ACC+2}, v{ACC+3}")
    A(f"v_add_f32 v{T}, v{T}, v{T+1}\nv_add_f32 v{ACC}, v{ACC}, v{ACC+1}\nv_add_f32 v{ACC+2}, v{ACC+2}, v{ACC+3}\nv_mov_b32 v{T+1}, v{T}")
    A(f"v_permlane32_swap_b32 v{ACC}, v{ACC+2}\nv_permlane32_swap_b32 v{T}, v{T+1}")
    A(f"v_add_f32 v{T}, v{T}, v{T+1}\nv_add_f32 v{ACC}, v{ACC}, v{ACC+2}\nv_rcp_f32 v{T}, v{T}")
    A(f"v_mul_f32 v{ACC}, v{ACC}, v{T}\nv_cvt_pk_bf16_f32 v{ACC}, v{ACC}, v{ACC}")
    A(f"ds_write_b32 v{VOR}, v{ACC} offset:{L_O}")
    A("s_waitcnt lgkmcnt(0)")
    stamp(7)
    A("s_barrier")
    stamp(9)
    write_stamps()
    if only == "A":
        A(f"s_cmp_lg_u32 s2, {apar}\ns_cbranch_scc1 LS_x\ns_sleep 100\nv_mov_b32 v{T+2}, 0\nv_mov_b32 v{T+3}, s{sE}\nbuffer_store_dword v{T+3}, v{T+2}, {srd(SRD_WS)}, 0 offen sc1\nLS_x:")
    A("s_endpgm")

    V.next = R0
    VXS = v("VXS"); VXG = v("VXG"); VFG = v("VFG")
    hi = max(hi, V.next)
    b_win = b_sched[0]
    A("L_roleB:")
    cnt["w1"] = w0; cnt["w2"] = 0
    x_own_load(16)
    assert b_pos >= b_win + adv and b_win >= w0
    for n in range(w0, b_win): w1_load(0)
    seqB = list(range(w0)) + ["x"] + list(range(w0, b_win)) + ["xf"]
    A(f"s_mul_i32 s{sPROD}, s{sG}, 28\ns_add_u32 s{sPROD}, s{sPROD}, s{sS}")
    build_srd(SRD_W2, 20, 7340032); build_srd(SRD_WS, 26, 268435456); build_srd(SRD_OUT, 22, 2048)
    stamp(0)
    A(f"s_lshl_b32 s{sF}, s{sG}, 4\ns_add_u32 s{sF}, s{sF}, s{sS}\ns_cmp_lt_u32 s{sS}, 16\ns_cselect_b32 s{sF}, s{sF}, -1")
    A(f"s_lshl_b32 s{s2}, s{sF}, 5\nv_lshrrev_b32 v{T+3}, 3, v{CH}\nv_add_u32 v{T+3}, s{s2}, v{T+3}")
    A(f"buffer_load_ushort v{XF}, v{T+3}, {srd(SRD_X)}, 0 offen")
    masks(8)
    A(f"s_lshl_b32 s{s0}, s{sPROD}, 5")
    w2_addr(s0)
    if fullline:
        A(f"s_lshl_b32 s{s2}, s3, 12\ns_lshr_b32 s{s3}, s{sF}, 1\ns_lshl_b32 s{s3}, s{s3}, 15\ns_add_u32 s{s2}, s{s2}, s{s3}\ns_and_b32 s{s3}, s{sF}, 1\ns_lshl_b32 s{s3}, s{s3}, 6\ns_add_u32 s{s2}, s{s2}, s{s3}\ns_add_u32 s{s2}, s{s2}, {PBASE}")
        A(f"v_lshrrev_b32 v{T}, 2, v0\nv_lshlrev_b32 v{T}, 7, v{T}\nv_and_b32 v{T+1}, 3, v0\nv_lshlrev_b32 v{T+1}, 4, v{T+1}\nv_add3_u32 v{VFG}, v{T}, v{T+1}, s{s2}")
    else:
        A(f"s_lshl_b32 s{s2}, s3, 11")
        A(f"s_lshl_b32 s{s3}, s{sF}, 14\ns_add_u32 s{s2}, s{s2}, s{s3}\ns_add_u32 s{s2}, s{s2}, {PBASE}\nv_lshl_add_u32 v{VFG}, v0, 4, s{s2}")
    A(f"s_add_u32 s{sPROD}, s{sPROD}, 128")
    pp_addr()
    A("s_waitcnt lgkmcnt(0)")
    get_tag()
    if sflag: A("s_barrier")
    nb = b_win
    for n in range(adv):
        A(f"s_waitcnt vmcnt({len(seqB)-1-seqB.index(n)})"); w1_load(0); seqB.append(nb); nb += 1
    A(f"s_waitcnt vmcnt({len(seqB)-1-seqB.index('x')})")
    stamp(1)
    ln_own("LB_ln")
    stamp(2)
    order = ["a"] * b_pos + ["w"] * b_early + ["a"] * (16 - b_pos)
    issued = gemv1(order, list(b_sched), nb, seqB, 0)
    assert issued == len(order)
    stamp(3)
    partial_store_lds()
    A("s_waitcnt lgkmcnt(0)\ns_barrier")
    if b_pubbar: A("s_barrier")
    n0 = cnt["w2"]
    while cnt["w2"] < 8:
        if cnt["w2"] - n0 >= b_ww: A(f"s_waitcnt vmcnt({b_ww-1})")
        w2_load()
    stamp(5)
    A("s_barrier")
    stamp(6)
    stage3(8, b_early)
    stamp(7)
    if only == "B": A("s_branch LB_done")
    A(f"s_cmp_eq_u32 s{sF}, -1\ns_cbranch_scc1 LB_done")
    A(f"s_cmp_lt_u32 s3, 7\ns_cselect_b32 s{s1}, {2048 if fullline else 1024}, 0")
    A(f"s_mov_b32 s{s2}, 0x0c0c0400\ns_mov_b32 s{s3}, 0x04000c0c")
    def f_ld(r):
        A(f"buffer_load_dwordx4 {vr(r,4)}, v{VFG}, {srd(SRD_WS)}, 0 offen {pld}")
        A(f"buffer_load_dwordx4 {vr(r+4,4)}, v{VFG}, {srd(SRD_WS)}, s{s1} offen {pld}")
    def f_chk(r, ok):
        for u in range(2):
            A(f"v_perm_b32 v{T+2*u}, v{r+4*u+1}, v{r+4*u}, s{s2}\nv_perm_b32 v{T+2*u+1}, v{r+4*u+3}, v{r+4*u+2}, s{s3}\nv_or_b32 v{T+2*u}, v{T+2*u}, v{T+2*u+1}")
        A(f"v_cmp_ne_u32 vcc, s{sTAG}, v{T}\nv_cmp_ne_u32 s[{C0}:{C0+1}], s{sTAG}, v{T+2}\ns_or_b64 s[{C0}:{C0+1}], s[{C0}:{C0+1}], vcc\ns_cbranch_scc0 {ok}")
    if fhint:
        A(f"s_mov_b64 exec, {hex((1 << (4 * fhint)) - 1)}" if fhint < 8 else "s_mov_b32 exec_hi, 0")
        A("LB_fh:")
        A(f"buffer_load_dwordx4 {vr(G,4)}, v{VFG}, {srd(SRD_WS)}, s{s1} offen {pld}\ns_waitcnt vmcnt(0)")
        A(f"v_perm_b32 v{T}, v{G+1}, v{G}, s{s2}\nv_perm_b32 v{T+1}, v{G+3}, v{G+2}, s{s3}\nv_or_b32 v{T}, v{T}, v{T+1}")
        A(f"v_cmp_ne_u32 vcc, s{sTAG}, v{T}\ns_cbranch_vccz LB_fh2")
        if fhsleep: A(f"s_sleep {fhsleep}")
        A(f"s_sub_u32 s{sCNT}, s{sCNT}, 1\ns_cbranch_scc0 LB_fh\ns_mov_b32 s{sCNT}, 0")
        A("LB_fh2:\ns_mov_b64 exec, -1")
    sets = [W1 + 8 * k for k in range(fnsets)]
    for k in range(fnsets):
        f_ld(sets[k])
        if k < fnsets - 1 and fstag: A(f"s_sleep {fstag}")
    A("LB_fpoll:")
    for k in range(fnsets):
        A(f"s_waitcnt vmcnt({2*(fnsets-1)})")
        f_chk(sets[k], f"LB_fok{k}")
        if k == fnsets - 1:
            if fsleep: A(f"s_sleep {fsleep}")
            A(f"s_sub_u32 s{sCNT}, s{sCNT}, 1\ns_cbranch_scc1 LB_fok{k}")
        f_ld(sets[k])
    A("s_branch LB_fpoll")
    for k in range(fnsets):
        A(f"LB_fok{k}:")
        for r in range(8): A(f"v_and_b32 v{G+r}, s{sMSK}, v{sets[k]+r}")
        if k < fnsets - 1: A("s_branch LB_fok")
    A("LB_fok:")
    stamp(8)
    A(f"s_cmp_eq_u32 s{s1}, 0\ns_cbranch_scc1 LB_f1")
    A(f"v_pk_add_f32 {vr(G,2)}, {vr(G,2)}, {vr(G+4,2)}\nv_pk_add_f32 {vr(G+2,2)}, {vr(G+2,2)}, {vr(G+6,2)}")
    A("LB_f1:")
    for c in ("row_ror:4", "row_ror:8"):
        for r in range(4): A(f"v_add_f32_dpp v{G+r}, v{G+r}, v{G+r} {c} row_mask:0xf bank_mask:0xf")
    A(f"v_and_b32 v{T}, 3, v0\nv_lshlrev_b32 v{T}, 7, v{T}")
    A(f"v_permlane16_swap_b32 v{G}, v{G+1}\nv_permlane16_swap_b32 v{G+2}, v{G+3}")
    A(f"v_add_f32 v{G}, v{G}, v{G+1}\nv_add_f32 v{G+2}, v{G+2}, v{G+3}")
    A(f"v_lshl_add_u32 v{T}, v{SL}, 5, v{T}\ns_lshl_b32 s{s2}, s3, 2\nv_add_u32 v{T}, s{s2}, v{T}")
    A(f"v_permlane32_swap_b32 v{G}, v{G+2}\nv_add_f32 v{G}, v{G}, v{G+2}")
    A("s_mov_b32 exec_lo, 0x000f000f\ns_mov_b32 exec_hi, 0x000f000f")
    A(f"ds_write_b32 v{T}, v{G} offset:{L_F}")
    A("s_mov_b64 exec, -1")
    A("s_waitcnt lgkmcnt(0)\ns_barrier")
    A("s_cmp_lg_u32 s3, 0\ns_cbranch_scc1 LB_done")
    A(f"v_lshlrev_b32 v{T+1}, 1, v{CH}")
    A(f"ds_read_b128 {vr(G,4)}, v{T+1} offset:{L_F}\nds_read_b128 {vr(G+4,4)}, v{T+1} offset:{L_F+16}")
    A(f"s_lshl_b32 s{s2}, s{sF}, 5\nv_lshrrev_b32 v{T}, 3, v{CH}\nv_add_u32 v{T}, s{s2}, v{T}\nv_lshlrev_b32 v{XF}, 16, v{XF}")
    A("s_waitcnt lgkmcnt(0)")
    A(f"v_pk_add_f32 {vr(G,2)}, {vr(G,2)}, {vr(G+2,2)}\nv_pk_add_f32 {vr(G+4,2)}, {vr(G+4,2)}, {vr(G+6,2)}")
    A(f"v_add_f32 v{G}, v{G}, v{G+1}\nv_add_f32 v{G+4}, v{G+4}, v{G+5}")
    A(f"v_cvt_pk_bf16_f32 v{G}, v{G}, v{G+4}")
    A(f"v_lshlrev_b32 v{G+1}, 16, v{G}\nv_and_b32 v{G+2}, 0xffff0000, v{G}")
    A(f"v_add_f32 v{G+1}, v{XF}, v{G+1}")
    rbf(G+1, f"v{G+1}")
    A(f"v_add_f32 v{G+1}, v{G+1}, v{G+2}\nv_cvt_pk_bf16_f32 v{G+1}, v{G+1}, v{G+1}")
    A("s_mov_b32 exec_lo, 0xffff\ns_mov_b32 exec_hi, 0")
    A(f"buffer_store_short v{G+1}, v{T}, {srd(SRD_OUT)}, 0 offen")
    A(f"s_cmp_lg_u32 s{sF}, 0\ns_cbranch_scc1 LB_noep")
    A(f"s_mov_b32 exec_lo, 1\nv_mov_b32 v{T+2}, 0\nv_mov_b32 v{T+3}, s{sE}")
    A(f"buffer_store_dword v{T+3}, v{T+2}, {srd(SRD_WS)}, 0 offen")
    A("LB_noep:")
    A("s_mov_b64 exec, -1")
    A("LB_done:")
    if only == "B":
        A(f"s_cmp_lg_u32 s2, {1-apar}\ns_cbranch_scc1 LB_x\ns_sleep 127\nv_mov_b32 v{T+2}, 0\nv_mov_b32 v{T+3}, s{sE}\nbuffer_store_dword v{T+3}, v{T+2}, {srd(SRD_WS)}, 0 offen sc1\nLB_x:")
    if amp:
        A(f"s_cmp_lg_u32 s{sF}, 0\ns_cbranch_scc1 L_end\ns_cmp_lg_u32 s3, 0\ns_cbranch_scc1 L_end")
        A("s_memrealtime s[6:7]")
        A(f"v_lshlrev_b32 v{T}, 5, v0\nv_add_u32 v{T}, {TSBASE}, v{T}")
        A(f"buffer_load_dwordx4 {vr(G,4)}, v{T}, {srd(SRD_WS)}, 0 offen sc1\nbuffer_load_dwordx4 {vr(G+4,4)}, v{T}, {srd(SRD_WS)}, 0 offen offset:16 sc1\ns_waitcnt vmcnt(0) lgkmcnt(0)")
        for q in range(4):
            A(f"v_subrev_u32 v{G+2*q}, s80, v{G+2*q}\nv_add_u32 v{G+2*q}, 5000, v{G+2*q}\nv_cmp_eq_u32 vcc, s{sTAG}, v{G+2*q+1}")
            A(f"v_cndmask_b32 v{U+q}, -1, v{G+2*q}, vcc\nv_cndmask_b32 v{U+4+q}, 0, v{G+2*q}, vcc")
        A(f"v_min_u32 v{U}, v{U}, v{U+1}\nv_min_u32 v{U+2}, v{U+2}, v{U+3}\nv_min_u32 v{U}, v{U}, v{U+2}")
        A(f"v_max_u32 v{U+4}, v{U+4}, v{U+5}\nv_max_u32 v{U+6}, v{U+6}, v{U+7}\nv_max_u32 v{U+4}, v{U+4}, v{U+6}")
        A("s_mov_b32 s8, -1\ns_mov_b32 s9, 0")
        for ln in range(64):
            A(f"v_readlane_b32 s10, v{U}, {ln}\nv_readlane_b32 s11, v{U+4}, {ln}\ns_min_u32 s8, s8, s10\ns_max_u32 s9, s9, s11")
        A("s_sub_u32 s6, s6, s80\ns_add_u32 s6, s6, 5000")
        if amp == "skew": A("s_sub_u32 s12, s9, s8")
        elif amp == "total": A("s_sub_u32 s12, s6, s8")
        elif amp == "fromlast": A("s_sub_u32 s12, s6, s9")
        elif amp == "zero": A("s_mov_b32 s12, 0")
        A(f"s_mul_i32 s12, s12, 10\ns_add_u32 s12, s12, s8\ns_sub_u32 s12, s12, 5000\ns_add_u32 s12, s12, 3000")
        A(f"LB_pad:\ns_memrealtime s[4:5]\ns_waitcnt lgkmcnt(0)\ns_sub_u32 s4, s4, s80\ns_cmp_lt_i32 s4, s12\ns_cbranch_scc1 LB_pad")
    stamp(9)
    write_stamps()
    A("s_endpgm")
    A("L_roleSB:")
    A(f"s_mul_i32 s{sPROD}, s{sG}, 28\ns_add_u32 s{sPROD}, s{sPROD}, s{sS}")
    A(f"s_lshl_b32 s{s2}, s{sPROD}, 10\ns_add_u32 s{s2}, s{s2}, {XBASE}\nv_lshl_add_u32 v{VXG}, v0, 4, s{s2}")
    A(f"s_and_b32 s{s2}, s{sPROD}, 0xfc\ns_lshl_b32 s{s2}, s{s2}, 10\ns_and_b32 s{s3}, s{sPROD}, 3\ns_lshl_b32 s{s3}, s{s3}, 8\ns_add_u32 s{s2}, s{s2}, s{s3}\ns_add_u32 s{s2}, s{s2}, {XBASE}")
    A(f"v_lshlrev_b32 v{T}, 10, v{SL}\nv_add3_u32 v{VXS}, v{T}, v{CH}, s{s2}")
    A("s_waitcnt vmcnt(0)")
    ln_stats()
    if tx: A(f"buffer_load_dwordx4 {vr(G,4)}, v{VXG}, {srd(SRD_WS)}, 0 offen")
    if tlb or tlbout:
        A(f"s_lshl_b32 s{s0}, s{sPROD}, 16\nv_mov_b32 v{T}, s{s0}\nv_mov_b32 v{T+1}, 0\ns_mov_b64 exec, 1")
        if tlb: A(f"global_load_dword v{G+12}, v{T}, s[20:21] {pol}")
        if tlbout: A(f"global_load_dword v{G+13}, v{T+1}, s[22:23]")
        A("s_mov_b64 exec, -1")
    A(f"v_lshlrev_b32 v{T+4}, 3, v0")
    poll_init()
    amp_pub()
    A("s_waitcnt vmcnt(0)\ns_barrier")
    reduce8()
    pub_local(PB, VXS, xpol)
    if b_pubbar: A("s_barrier")
    stamp(4)
    A("LB_xpoll:")
    A(f"buffer_load_dwordx4 {vr(G,4)}, v{VXG}, {srd(SRD_WS)}, s{sPATH} offen sc1")
    A("s_waitcnt vmcnt(0)")
    A(f"v_cmp_ne_u32 vcc, s{sCUR}, v{G+2}\ns_cmp_eq_u64 vcc, 0\ns_cbranch_scc1 LB_xok")
    def late_x():
        A(f"v_mov_b32 v{PB+2}, s{sTAG}")
        pub_global(PB, VXS)
    poll_tail("LB_xpoll", late_x, xsleep)
    A("LB_xok:")
    stamp(5)
    A(f"v_permlane16_swap_b32 v{G}, v{G+1}\nv_add_f32 v{G}, v{G}, v{G+1}")
    rbf(G, f"v{G}")
    A(f"s_mov_b32 s{s2}, 0x3d372713")
    A(f"v_mul_f32 v{U}, v{G}, v{G}\nv_mov_b32 v{G+1}, v{G}\nv_fma_f32 v{U}, v{U}, s{s2}, 1.0\nv_mul_f32 v{U}, v{U}, v{G}")
    A(f"v_mul_f32 v{U}, 0xc0135761, v{U}\nv_permlane32_swap_b32 v{G+1}, v{G+2}\nv_exp_f32 v{U}, v{U}")
    A(f"v_lshrrev_b32 v{T+2}, 1, v{CH}\nv_add_f32 v{U}, 1.0, v{U}\nv_rcp_f32 v{U}, v{U}\nv_lshl_add_u32 v{T+2}, v{SL}, 2, v{T+2}\nv_mul_f32 v{U}, v{U}, v{G}")
    rbf(U, f"v{U}")
    A(f"v_mul_f32 v{U}, v{U}, v{G+2}\ns_mov_b32 exec_hi, 0\nv_cvt_pk_bf16_f32 v{U}, v{U}, v{U}")
    A(f"ds_write_b32 v{T+2}, v{U} offset:{L_O}")
    A("s_mov_b32 exec_hi, -1")
    A("s_waitcnt lgkmcnt(0)\ns_barrier")
    stamp(9)
    write_stamps()
    A("L_end:")
    A("s_endpgm")

    body, nins = fix_hazards(L)
    nv = max(hi, R0 + 2)
    acc = (nv + 3) // 4 * 4
    head = [l for l in open(f"cdna_kernels/{NAME}.s.ref").read().split("\n") if l.startswith(";") and "@launch" not in l and "Override" not in l and "grid=ceil" not in l]
    out = "\n".join(head) + f"\n; @launch grid=(256,1,1) block=({NW*64},1,1) lds={LDS_BYTES}\n"
    out += f'.amdgcn_target "amdgcn-amd-amdhsa--gfx950"\n.text\n.globl {NAME}_kernel\n.p2align 8\n.type {NAME}_kernel,@function\n{NAME}_kernel:\n'
    txt = "\n".join(("" if l.endswith(":") else "    ") + l for l in body) + "\n"
    txt = txt.replace("CODE_LINES", f"(L_end - {NAME}_kernel) / 128")
    out += txt
    out += f""".section .rodata,"a"
.p2align 6
.amdhsa_kernel {NAME}_kernel
  .amdhsa_next_free_vgpr {nv}
  .amdhsa_next_free_sgpr 86
  .amdhsa_accum_offset {acc}
  .amdhsa_group_segment_fixed_size 0
  .amdhsa_kernarg_size 96
  .amdhsa_user_sgpr_count 2
  .amdhsa_user_sgpr_kernarg_segment_ptr 1
  .amdhsa_system_sgpr_workgroup_id_x 1
  .amdhsa_float_denorm_mode_32 3
.end_amdhsa_kernel
"""
    return out

if __name__ == "__main__":
    kw = eval("dict(" + (sys.argv[2] if len(sys.argv) > 2 else "") + ")")
    txt = gen(**kw)
    open(sys.argv[1], "w").write(txt)
```

```python
import sys
from asmdsl import fix_hazards, Regs

NAME = "parallel_sum__sliding_block_cached__geglu_ffn__decode"
QBASE = 0x10000
OBASE = 0x40000
XBASE = 0xC0000
PBASE = 0x100000
TSBASE = 0x300000
DELTA = 0x400000
L_R = 0; L_Q = 4096; L_P = 6656; L_M = 9216; L_O = 9280; L_F = 9472; L_S = 9984; L_K = 12288; L_V = 45056
LDS_BYTES = 83968
NW = 9

def roles(kw):
    import numpy as np
    wg = np.arange(256); x = wg & 7; i = wg >> 3
    return {"A": (x % 2 == 1), "B": (x % 2 == 0) & (i < 28)}

def gen(debug=False, pol="nt", a_w=3, a_w2=4, a_pre="KK", a_mid="KKV", a_post="VVV", a_pts=(1, 1), a_pubbar=True, a_pollwait=1, a_qbar=True,
        a_ww=3, b_sched=(3,) * 25, b_early=1, b_pos=16, b_ww=4, b_pubbar=True, fsleep=0,
        spin=2000000, limit=32, diagpad=0, apar=1, xbar=True, codepf=True, only=None,
        clk="s_memrealtime", amp=None, probe=None, osleep=0, fullline=True, pst="sc1", pld="sc1", ptouch=None, onsets=1, xnsets=1, stag=4, w0=3, adv=3, sprio=3, sflag=True, tlb=False, tlbout=False, fnsets=1, fstag=2, fhint=1, fhsleep=0, nogl=False, dupP=False, dupO=False, opol="", qpol="", xpol="", tq=True, to=True, tx=True, xsleep=0, qsleep=0, fdelay=0, fhl=15, fsel=False):
    if amp: diagpad = 30
    L = []
    def A(s):
        for x in s.split("\n"):
            x = x.strip()
            if x: L.append(x)
    def stamp(k):
        if debug and (debug != "lite" or k == 9): A(f"{clk} s[{4+2*k}:{5+2*k}]")
    full = debug and debug != "lite"
    V = Regs("v", 1, 168)
    v = lambda name, n=1: V.alloc(name, n)
    vr = lambda r, n: f"v[{r}:{r+n-1}]"
    SL = v("SL"); CH = v("CH"); XD = v("XD")
    T = v("T", 8); M = v("M", 4); TB = v("TB", 4); AF = v("AF", 8); ACC = v("ACC", 4); PB = v("PB", 4)
    W1 = v("W1", 32); W2 = v("W2", 32); XS = v("XS", 16); U = v("U", 16)
    assert XS == W2 + 32 and U == XS + 16
    XO = XS + 8; G = XS
    QF = v("QF", 16)
    MB = v("MB", 2); SD = v("SD", 2); RI = v("RI", 2)
    VW1 = v("VW1"); VW2 = v("VW2"); VXO = v("VXO"); VPP = v("VPP"); XF = v("XF"); VRW = v("VRW"); VOR = v("VOR")
    R0 = V.next
    SRD_W1, SRD_W2, SRD_WS, SRD_X, SRD_OUT = 28, 32, 44, 48, 52
    SRD_K, SRD_V = 28, 32
    sE, sTAG, sG, sS, sPROD, sF = 56, 57, 58, 59, 60, 61
    sO1, sO2, sDEL = 62, 63, 64
    s0, s1, s2, s3 = 66, 67, 68, 69
    sPATH, sRND, sCNT, sMSK = 70, 71, 72, 73
    C0, C1, C2 = 74, 76, 78
    sTL, sCUR, sTX = 82, 83, 84
    srd = lambda r: f"s[{r}:{r+3}]"

    if debug or diagpad: A(f"{clk} s[80:81]")
    A("s_load_dwordx16 s[4:19], s[0:1], 0")
    A("s_load_dwordx8 s[20:27], s[0:1], 64")
    if codepf:
        A(f"s_getpc_b64 s[{C0}:{C0+1}]\nv_lshlrev_b32 v{T}, 7, v0\nv_cmp_gt_u32 vcc, CODE_LINES, v0\ns_and_saveexec_b64 s[{C1}:{C1+1}], vcc\ns_cbranch_execz L_nopf")
        A(f"global_load_dword v{W1+31}, v{T}, s[{C0}:{C0+1}]\nL_nopf:\ns_mov_b64 exec, -1")
    sST = 65
    isB = f"s_bitcmp{1-apar}_b32 s2, 0"
    A(f"v_lshrrev_b32 v{T}, 6, v0\nv_and_b32 v0, 63, v0\ns_bfe_u32 s{sG}, s2, 0x20001\nv_readfirstlane_b32 s3, v{T}")
    A(f"s_lshr_b32 s{sS}, s2, 3\nv_lshrrev_b32 v{SL}, 4, v0\nv_and_b32 v{CH}, 15, v0\nv_lshlrev_b32 v{CH}, 4, v{CH}")
    A(f"s_lshr_b32 s{s0}, s{sS}, 3\ns_and_b32 s{s1}, s{sS}, 7\ns_lshl3_add_u32 s{s1}, s{sG}, s{s1}")
    A(f"s_and_b32 s{s2}, s{sS}, 1\ns_lshl_b32 s{s2}, s{s2}, 1\ns_lshr_b32 s{s3}, s{sS}, 2\ns_mul_i32 s{sF}, s{sG}, 7\ns_add_u32 s{s3}, s{s3}, s{sF}")
    A(f"s_movk_i32 s{sST}, 0x2000\n{isB}")
    A(f"s_cselect_b32 s{s0}, s{s2}, s{s0}\ns_cselect_b32 s{s1}, s{s3}, s{s1}\ns_cmovk_i32 s{sST}, 0x1c00\ns_cselect_b32 s{s2}, 28, 32")
    A(f"s_cmp_ge_u32 s{sS}, s{s2}\ns_cbranch_scc1 L_end")
    if only == "A": A(f"{isB}\ns_cbranch_scc1 L_end")
    if only == "B": A(f"{isB}\ns_cbranch_scc0 L_end")
    A("s_cmp_eq_u32 s3, 8\ns_cbranch_scc1 L_roleS")
    A(f"s_lshl_b32 s{s0}, s{s0}, 6\ns_add_u32 s{s0}, s{s0}, s3\ns_lshl_b32 s{s0}, s{s0}, 2")
    A(f"s_mul_i32 s{s2}, s{s0}, s{sST}\ns_lshl_b32 s{s1}, s{s1}, 8\ns_add_u32 s{s2}, s{s2}, s{s1}")
    A(f"v_mad_u32_u24 v{VW1}, v{SL}, s{sST}, v{CH}\nv_add_u32 v{VW1}, s{s2}, v{VW1}")
    A(f"s_lshl_b32 s{SRD_W1+2}, s{sST}, 10\ns_mov_b32 s{SRD_W1+3}, 0x20000\ns_lshl_b32 s{sST}, s{sST}, 5\ns_mov_b32 s{sO1}, 0\ns_bitcmp0_b32 s{sS}, 1")
    A("s_waitcnt lgkmcnt(0)")
    A(f"s_cselect_b64 s[{SRD_W1}:{SRD_W1+1}], s[16:17], s[18:19]\n{isB}\ns_cselect_b64 s[{SRD_W1}:{SRD_W1+1}], s[{SRD_W1}:{SRD_W1+1}], s[10:11]")
    ENTRY_MARK = len(L)

    def build_srd(r, p, size):
        A(f"s_mov_b64 s[{r}:{r+1}], s[{p}:{p+1}]\ns_mov_b32 s{r+2}, {size}\ns_mov_b32 s{r+3}, 0x20000")
    def pre_srd(r, size): A(f"s_mov_b32 s{r+2}, {size}\ns_mov_b32 s{r+3}, 0x20000")
    def fin_srd(r, p): A(f"s_mov_b64 s[{r}:{r+1}], s[{p}:{p+1}]")
    def masks(J2):
        A(f"v_and_b32 v{T}, 1, v0\nv_lshlrev_b32 v{T}, 4, v{T}\nv_mov_b32 v{T+1}, 0xffff\nv_lshlrev_b32 v{T+1}, v{T}, v{T+1}")
        A(f"v_bfe_u32 v{T+2}, v0, 1, 2")
        for r, c in enumerate((C0, C1, C2)): A(f"v_cmp_eq_u32 s[{c}:{c+1}], {r}, v{T+2}")
        A(f"v_cmp_eq_u32 vcc, 3, v{T+2}")
        for r, c in enumerate((C0, C1, C2)): A(f"v_cndmask_b32 v{M+r}, 0, v{T+1}, s[{c}:{c+1}]")
        A(f"v_cndmask_b32 v{M+3}, 0, v{T+1}, vcc")
        A(f"v_and_b32 v{T}, {(J2-1)*16}, v{CH}\nv_lshl_add_u32 v{VOR}, v{SL}, 2, v{T}")
        A(f"s_lshl_b32 s{s2}, s3, 9\nv_lshlrev_b32 v{T}, 1, v{CH}\nv_lshl_add_u32 v{T}, v{SL}, 4, v{T}\nv_add_u32 v{VRW}, s{s2}, v{T}")
    def wave_sum(r):
        for c in ("row_shr:1", "row_shr:2", "row_shr:4", "row_shr:8"):
            A(f"v_add_f32_dpp v{r}, v{r}, v{r} {c} row_mask:0xf bank_mask:0xf bound_ctrl:0")
        A(f"v_add_f32_dpp v{r}, v{r}, v{r} row_bcast:15 row_mask:0xa bank_mask:0xf")
        A(f"v_add_f32_dpp v{r}, v{r}, v{r} row_bcast:31 row_mask:0xc bank_mask:0xf")
    def rbf(dst, src):
        A(f"v_cvt_pk_bf16_f32 v{dst}, {src}, {src}\nv_and_b32 v{dst}, 0xffff0000, v{dst}")
    def ln_stats():
        for k in range(8):
            A(f"v_lshlrev_b32 v{U+2*k}, 16, v{XS+k}\nv_and_b32 v{U+2*k+1}, 0xffff0000, v{XS+k}")
        A(f"v_pk_add_f32 {vr(T,2)}, {vr(U,2)}, {vr(U+2,2)}\nv_pk_add_f32 {vr(T+2,2)}, {vr(U+4,2)}, {vr(U+6,2)}")
        A(f"v_pk_add_f32 {vr(T+4,2)}, {vr(U+8,2)}, {vr(U+10,2)}\nv_pk_add_f32 {vr(T+6,2)}, {vr(U+12,2)}, {vr(U+14,2)}")
        A(f"v_pk_add_f32 {vr(T,2)}, {vr(T,2)}, {vr(T+2,2)}\nv_pk_add_f32 {vr(T+4,2)}, {vr(T+4,2)}, {vr(T+6,2)}")
        A(f"v_pk_add_f32 {vr(T,2)}, {vr(T,2)}, {vr(T+4,2)}\nv_add_f32 v{T}, v{T}, v{T+1}")
        wave_sum(T)
        A(f"v_mul_f32 v{T}, 0x3a800000, v{T}\nv_readlane_b32 s{s2}, v{T}, 63")
        for k in range(8):
            A(f"v_pk_add_f32 {vr(U+2*k,2)}, {vr(U+2*k,2)}, s[{s2}:{s2+1}] op_sel_hi:[1,0] neg_lo:[0,1] neg_hi:[0,1]")
        A(f"v_pk_mul_f32 {vr(T,2)}, {vr(U,2)}, {vr(U,2)}\nv_pk_mul_f32 {vr(T+2,2)}, {vr(U+2,2)}, {vr(U+2,2)}")
        for k in range(2, 8):
            t = T + 2 * (k & 1)
            A(f"v_pk_fma_f32 {vr(t,2)}, {vr(U+2*k,2)}, {vr(U+2*k,2)}, {vr(t,2)}")
        A(f"v_pk_add_f32 {vr(T,2)}, {vr(T,2)}, {vr(T+2,2)}\nv_add_f32 v{T}, v{T}, v{T+1}")
        rbf(MB, f"s{s2}")
        wave_sum(T)
        A(f"v_mul_f32 v{T}, 0x3a800000, v{T}\nv_readlane_b32 s{s2}, v{T}, 63")
        rbf(SD, f"s{s2}"); A(f"v_add_f32 v{SD}, 0x3727c5ac, v{SD}"); rbf(SD, f"v{SD}"); A(f"v_sqrt_f32 v{SD}, v{SD}")
        A("s_waitcnt lgkmcnt(0)")
        get_tag(False)
        A(f"v_mov_b32 v{T+4}, v{MB}\nv_mov_b32 v{T+3}, 0\nv_mov_b32 v{T+7}, 1")
        rbf(T+5, f"v{SD}"); A(f"v_rcp_f32 v{T+6}, v{T+5}\ns_nop 0")
        A(f"ds_write_b128 v{T+3}, {vr(T+4,4)} offset:{L_S}")
        if not sflag: A("s_waitcnt lgkmcnt(0)\ns_barrier")
    def ln_own(lbl):
        A(f"v_mov_b32 v{T+3}, 0\nv_lshlrev_b32 v{U}, 16, v{XO}")
        if not sflag: A("s_barrier")
        A(f"{lbl}:\nds_read_b128 {vr(T+4,4)}, v{T+3} offset:{L_S}\ns_waitcnt lgkmcnt(0)")
        if sflag: A(f"v_cmp_eq_u32 vcc, 0, v{T+7}\ns_cbranch_vccnz {lbl}")
        A(f"v_sub_f32 v{U}, v{U}, v{T+4}")
        rbf(U, f"v{U}")
        A(f"v_mul_f32 v{T}, v{U}, v{T+6}\nv_fma_f32 v{T+1}, -v{T}, v{T+5}, v{U}\nv_fma_f32 v{T}, v{T+1}, v{T+6}, v{T}")
        A(f"v_cvt_pk_bf16_f32 v{XD}, v{T}, v{T}")
    def af_build(j):
        for r in range(4): A(f"v_and_b32_dpp v{AF+4*(j&1)+r}, v{XD}, v{M+r} row_newbcast:{j} row_mask:0xf bank_mask:0xf")
    def af(j): return vr(AF+4*(j&1), 4)
    def get_tag(bytes_=True):
        A(f"s_add_u32 s{sE}, s{sE}, 1\ns_mul_i32 s{sTAG}, s{sE}, 0x01010101")
        if bytes_:
            A(f"v_mov_b32 v{TB}, s{sTAG}\nv_lshrrev_b32 v{TB+1}, 8, v{TB}\nv_lshrrev_b32 v{TB+2}, 16, v{TB}\nv_lshrrev_b32 v{TB+3}, 24, v{TB}")
            A(f"s_mov_b32 s{sMSK}, 0xffffff00")
        A(f"s_mov_b32 s{sCNT}, {spin}\ns_mov_b32 s{sDEL}, {DELTA}")
        A(f"s_getreg_b32 s{sTX}, hwreg(HW_REG_XCC_ID, 0, 3)\ns_add_u32 s{sTX}, s{sTX}, 1\ns_lshl_b32 s{sTX}, s{sTX}, 28\ns_xor_b32 s{sTL}, s{sTAG}, s{sTX}")
    def amp_pub():
        if not amp: return
        A(f"s_lshl_b32 s{s2}, s2, 3\ns_add_u32 s{s2}, s{s2}, {TSBASE}\nv_mov_b32 v{T}, s80\nv_mov_b32 v{T+1}, s{sTAG}\nv_mov_b32 v{T+2}, s{s2}")
        A(f"s_mov_b64 exec, 1\nbuffer_store_dwordx2 {vr(T,2)}, v{T+2}, {srd(SRD_WS)}, 0 offen sc1\ns_mov_b64 exec, -1\ns_nop 1")
    def x_stats_loads():
        build_srd(SRD_X, 4, 2048)
        A(f"v_lshlrev_b32 v{T+2}, 5, v0")
        A(f"buffer_load_dwordx4 {vr(XS,4)}, v{T+2}, {srd(SRD_X)}, 0 offen\nbuffer_load_dwordx4 {vr(XS+4,4)}, v{T+2}, {srd(SRD_X)}, 0 offen offset:16")
    def x_own_load(J):
        build_srd(SRD_X, 4, 2048)
        A(f"s_lshl_b32 s{s1}, s{s0}, 1\nv_and_b32 v{T}, {(J-1)*16}, v{CH}\nv_lshlrev_b32 v{T}, 2, v{T}\nv_lshl_add_u32 v{T}, v{SL}, 1, v{T}\nv_add_u32 v{VXO}, s{s1}, v{T}")
        A(f"buffer_load_ushort v{XO}, v{VXO}, {srd(SRD_X)}, 0 offen")
    def partial_store_lds():
        A("s_mov_b32 exec_hi, 0")
        A(f"ds_write_b128 v{VRW}, {vr(ACC,4)} offset:{L_R}")
        A("s_mov_b32 exec_hi, -1")
    def reduce8(dst=None, tag=None):
        dst = PB if dst is None else dst; tag = sTL if tag is None else tag
        for k in range(8): A(f"ds_read_b64 {vr(U+2*k,2)}, v{T+4} offset:{L_R+k*512}")
        A(f"v_mov_b32 v{dst+2}, s{tag}\nv_mov_b32 v{dst+3}, s{tag}")
        A(f"s_waitcnt lgkmcnt({0 if full else 4})")
        A(f"v_pk_add_f32 {vr(U,2)}, {vr(U,2)}, {vr(U+2,2)}\nv_pk_add_f32 {vr(U+4,2)}, {vr(U+4,2)}, {vr(U+6,2)}")
        A("s_waitcnt lgkmcnt(0)")
        A(f"v_pk_add_f32 {vr(U+8,2)}, {vr(U+8,2)}, {vr(U+10,2)}\nv_pk_add_f32 {vr(U+12,2)}, {vr(U+12,2)}, {vr(U+14,2)}")
        A(f"v_pk_add_f32 {vr(U,2)}, {vr(U,2)}, {vr(U+4,2)}\nv_pk_add_f32 {vr(U+8,2)}, {vr(U+8,2)}, {vr(U+12,2)}")
        A(f"v_pk_add_f32 {vr(dst,2)}, {vr(U,2)}, {vr(U+8,2)}")
    def pub_local(data, addr, p=""):
        A(f"buffer_store_dwordx4 {vr(data,4)}, v{addr}, {srd(SRD_WS)}, 0 offen {p}")
    def pub_global(data, addr):
        A(f"buffer_store_dwordx4 {vr(data,4)}, v{addr}, {srd(SRD_WS)}, s{sDEL} offen sc1")
    def poll_init():
        A(f"s_mov_b32 s{sPATH}, 0\ns_mov_b32 s{sRND}, 0\ns_mov_b32 s{sCUR}, s{sTL}")
    def poll_tail(lbl, late=None, sleep=0):
        if sleep: A(f"s_sleep {sleep}")
        A(f"s_add_u32 s{sRND}, s{sRND}, 1\ns_cmp_lt_u32 s{sRND}, {limit}\ns_cbranch_scc1 {lbl}")
        if late:
            A(f"s_cmp_lg_u32 s{sRND}, {limit}\ns_cbranch_scc1 {lbl}_sw")
            late()
            A(f"{lbl}_sw:")
        A(f"s_xor_b32 s{sPATH}, s{sPATH}, s{sDEL}\ns_xor_b32 s{sCUR}, s{sCUR}, s{sTX}")
        A(f"s_sub_u32 s{sCNT}, s{sCNT}, 1\ns_cbranch_scc0 {lbl}\ns_mov_b32 s{sCNT}, 0")
    def w2_addr(srow):
        A(f"s_lshl_b32 s{s2}, s{srow}, 11\ns_lshl_b32 s{s3}, s3, 8\ns_add_u32 s{s2}, s{s2}, s{s3}")
        A(f"v_lshlrev_b32 v{T}, 11, v{SL}\nv_add3_u32 v{VW2}, v{T}, v{CH}, s{s2}\ns_mov_b32 s{sO2}, 0")
    cnt = {"w1": 0, "w2": 0}
    def w1_load(step):
        j = cnt["w1"]; cnt["w1"] += 1
        A(f"buffer_load_dwordx4 {vr(W1+4*(j&7),4)}, v{VW1}, {srd(SRD_W1)}, s{sO1} offen {pol}")
        if j < 15: A(f"s_add_u32 s{sO1}, s{sO1}, s{sST}")
    def w2_load(n=1):
        for _ in range(n):
            j = cnt["w2"]; cnt["w2"] += 1
            A(f"buffer_load_dwordx4 {vr(W2+4*j,4)}, v{VW2}, {srd(SRD_W2)}, s{sO2} offen {pol}\ns_add_u32 s{sO2}, s{sO2}, 8192")
    def pp_addr():
        if fullline:
            A(f"v_bfe_u32 v{T}, v0, 2, 2\nv_lshlrev_b32 v{T}, 15, v{T}\nv_and_b32 v{T+1}, 3, v0\nv_lshlrev_b32 v{T+1}, 5, v{T+1}\nv_and_b32 v{T+2}, 16, v0")
            A(f"v_add3_u32 v{T}, v{T}, v{T+1}, v{T+2}")
            A(f"s_lshl_b32 s{s2}, s3, 17\ns_lshl_b32 s{s3}, s{sPROD}, 7\ns_add_u32 s{s2}, s{s2}, s{s3}\ns_add_u32 s{s2}, s{s2}, {PBASE}")
            A(f"v_add_u32 v{VPP}, s{s2}, v{T}")
            return
        A(f"v_bfe_u32 v{T}, v0, 1, 3\nv_lshlrev_b32 v{T}, 14, v{T}\nv_and_b32 v{T+1}, 1, v0\nv_lshlrev_b32 v{T+1}, 5, v{T+1}\nv_and_b32 v{T+2}, 16, v0")
        A(f"v_add3_u32 v{T}, v{T}, v{T+1}, v{T+2}")
        A(f"s_lshl_b32 s{s2}, s3, 17\ns_lshl_b32 s{s3}, s{sPROD}, 6\ns_add_u32 s{s2}, s{s2}, s{s3}\ns_add_u32 s{s2}, s{s2}, {PBASE}")
        A(f"v_add_u32 v{VPP}, s{s2}, v{T}")
    def stage3(n, nearly, younger=0):
        assert cnt["w2"] == n
        A(f"ds_read_b32 v{XD}, v{VOR} offset:{L_O}")
        A("s_waitcnt lgkmcnt(0)")
        af_build(0)
        for j in range(n):
            if j < n - 1: af_build(j + 1)
            if j >= nearly: A(f"s_waitcnt vmcnt({n-1-j+younger})")
            A(f"v_mfma_f32_16x16x32_bf16 {vr(ACC,4)}, {af(j)}, {vr(W2+4*j,4)}, {vr(ACC,4) if j else 0}")
        A("s_mov_b32 exec_hi, 0")
        for r in range(4): A(f"v_bfi_b32 v{T+r}, s{sMSK}, v{ACC+r}, v{TB+r}")
        A(f"buffer_store_dwordx4 {vr(T,4)}, v{VPP}, {srd(SRD_WS)}, 0 offen {pst}")
        if dupP: A(f"buffer_store_dwordx4 {vr(T,4)}, v{VPP}, {srd(SRD_WS)}, s{sDEL} offen {pst}")
        A("s_mov_b32 exec_hi, -1")
    def write_stamps(n=10):
        if not debug: return
        A("s_waitcnt lgkmcnt(0)")
        for k in range(n): A(f"v_writelane_b32 v{T+4}, s{4+2*k}, {k}")
        A(f"v_writelane_b32 v{T+4}, s80, 15")
        A(f"s_lshl_b32 s{s2}, s2, 4\ns_add_u32 s{s2}, s{s2}, s3\ns_lshl_b32 s{s2}, s{s2}, 6\ns_add_u32 s{s2}, s{s2}, {TSBASE}")
        A(f"v_lshlrev_b32 v{T+5}, 2, v0\nv_add_u32 v{T+5}, s{s2}, v{T+5}")
        A("s_mov_b32 exec_lo, 0xffff\ns_mov_b32 exec_hi, 0")
        A(f"buffer_store_dword v{T+4}, v{T+5}, {srd(SRD_WS)}, 0 offen")
        A("s_mov_b64 exec, -1")
    def check4(regs, ok):
        A(f"v_cmp_ne_u32 vcc, s{sCUR}, v{regs[0]}\nv_cmp_ne_u32 s[{C0}:{C0+1}], s{sCUR}, v{regs[1]}\nv_cmp_ne_u32 s[{C1}:{C1+1}], s{sCUR}, v{regs[2]}\nv_cmp_ne_u32 s[{C2}:{C2+1}], s{sCUR}, v{regs[3]}")
        A(f"s_or_b64 s[{C0}:{C0+1}], s[{C0}:{C0+1}], vcc\ns_or_b64 s[{C1}:{C1+1}], s[{C1}:{C1+1}], s[{C2}:{C2+1}]\ns_or_b64 s[{C0}:{C0+1}], s[{C0}:{C0+1}], s[{C1}:{C1+1}]\ns_cbranch_scc0 {ok}")
    def gemv1(order, sched, win0, extra, step, n=16, other=None):
        pos_of = [p for p, e in enumerate(order) if e == "a"]
        seq = list(extra)
        st = {"issued": win0}
        def issue():
            e = order[st["issued"]]
            if e == "a": w1_load(step)
            elif other: other()
            else: w2_load()
            seq.append(st["issued"]); st["issued"] += 1
        af_build(0)
        for j in range(n):
            if j < n - 1: af_build(j + 1)
            pos = pos_of[j]
            while st["issued"] <= min(pos + sched[pos] - 2, len(order) - 1) or pos not in seq:
                A(f"s_waitcnt vmcnt({max(sched[st['issued'] - 1] - 1, 0)})"); issue()
            A(f"s_waitcnt vmcnt({len(seq)-1-seq.index(pos)})")
            A(f"v_mfma_f32_16x16x32_bf16 {vr(ACC,4)}, {af(j)}, {vr(W1+4*(j&7),4)}, {vr(ACC,4) if j else 0}")
            while st["issued"] < len(order) and st["issued"] - (pos + 1) < sched[pos + 1]:
                issue()
        return st["issued"]

    cnt["w1"] = cnt["w2"] = 0
    for n in range(w0): w1_load(0)
    A(f"s_load_dword s{sE}, s[26:27], 0")
    A(f"{isB}\ns_cbranch_scc1 L_roleB\ns_branch L_roleA")
    A("L_roleS:")
    if sprio: A(f"s_setprio {sprio}")
    pre_srd(SRD_X, 2048)
    A(f"v_lshlrev_b32 v{T+2}, 5, v0")
    A("s_waitcnt lgkmcnt(0)")
    fin_srd(SRD_X, 4)
    A(f"buffer_load_dwordx4 {vr(XS,4)}, v{T+2}, {srd(SRD_X)}, 0 offen\nbuffer_load_dwordx4 {vr(XS+4,4)}, v{T+2}, {srd(SRD_X)}, 0 offen offset:16")
    A("s_branch L_roleS2")
    A("L_roleA:")
    x_own_load(8)
    for n in range(w0, a_w): w1_load(0)
    seqA = list(range(w0)) + ["x"] + list(range(w0, a_w))
    build_srd(SRD_WS, 26, 268435456)
    masks(8)
    V.next = R0
    KA = QF; VA = QF + 4; KR = QF + 8; VR_ = v("VR"); QR = v("QR"); PW = v("PW"); VQP = XF; VOP = v("VOP"); HM = v("HM"); VST = v("VST")
    KF = W1; QF2 = W1 + 16; VF = XS; ONE = PB; LA = AF + 4
    hi = V.next
    SRD_K, SRD_V = 36, 40
    build_srd(SRD_K, 6, 67108864); build_srd(SRD_V, 8, 67108864); build_srd(SRD_W2, 12, 8388608)
    stamp(0)
    A(f"s_lshl_b32 s{s2}, s{sG}, 24\ns_lshl_b32 s{s3}, s{sS}, 15\ns_add_u32 s{s2}, s{s2}, s{s3}\ns_lshl_b32 s{sF}, s3, 12\ns_add_u32 s{s2}, s{s2}, s{sF}\ns_add_u32 s{s2}, s{s2}, {61440*256}")
    A(f"v_lshlrev_b32 v{T+2}, 8, v{SL}\nv_add_u32 v{T+2}, s{s2}, v{T+2}")
    A(f"v_lshlrev_b32 v{T+3}, 4, v{SL}\nv_xor_b32 v{T+3}, v{T+3}, v{CH}")
    for t in range(4): A(f"v_xor_b32 v{T+4}, {64*t}, v{T+3}\nv_add_u32 v{KA+t}, v{T+4}, v{T+2}")
    A(f"v_lshlrev_b32 v{T+4}, 5, v{SL}\nv_xor_b32 v{T+4}, v{T+4}, v{CH}\nv_add_u32 v{VA}, v{T+4}, v{T+2}")
    A(f"v_xor_b32 v{T+4}, 128, v{T+4}\nv_add_u32 v{VA+1}, v{T+4}, v{T+2}")
    A(f"s_add_u32 m0, s{sF}, {L_K}")
    A(f"v_lshl_add_u32 v{T+4}, v{CH}, 4, s{sF}")
    for ks in range(4): A(f"v_xor_b32 v{T+5}, {64*ks}, v{T+3}\nv_add_u32 v{KR+ks}, v{T+5}, v{T+4}")
    A(f"v_bfe_u32 v{T+4}, v0, 2, 2\nv_lshl_add_u32 v{T+5}, v{SL}, 3, v{T+4}\nv_lshlrev_b32 v{T+5}, 8, v{T+5}")
    A(f"v_and_b32 v{T+6}, 1, v{SL}\nv_lshl_or_b32 v{T+4}, v{T+6}, 2, v{T+4}\nv_xor_b32 v{T+4}, s3, v{T+4}\nv_lshlrev_b32 v{T+4}, 5, v{T+4}")
    A(f"v_and_b32 v{T+6}, 3, v0\nv_lshlrev_b32 v{T+6}, 3, v{T+6}\nv_add3_u32 v{VR_}, v{T+4}, v{T+5}, v{T+6}\nv_add_u32 v{VR_}, {L_V}, v{VR_}")
    A(f"v_and_b32 v{T+4}, 7, v0\nv_lshlrev_b32 v{HM}, 2, v{T+4}\nv_mul_u32_u24 v{T+4}, 288, v{T+4}\nv_lshl_add_u32 v{QR}, v{SL}, 4, v{T+4}")
    A(f"s_lshl_b32 s{s2}, s3, 5\nv_lshl_add_u32 v{PW}, v{SL}, 3, v{T+4}\nv_add_u32 v{PW}, s{s2}, v{PW}")
    A(f"s_lshl_b32 s{s2}, s{sG}, 15\ns_add_u32 s{s2}, s{s2}, s{sF}\ns_add_u32 s{s2}, s{s2}, {QBASE}\nv_lshl_add_u32 v{VQP}, v0, 4, s{s2}")
    A(f"s_lshl_b32 s{s2}, s{sG}, 17\ns_lshr_b32 s{s3}, s3, 1\ns_lshl_b32 s{s3}, s{s3}, 12\ns_add_u32 s{s2}, s{s2}, s{s3}")
    A(f"s_lshl_b32 s{s3}, s{sS}, 7\ns_add_u32 s{s2}, s{s2}, s{s3}\ns_and_b32 s{s3}, s3, 1\ns_lshl_b32 s{s3}, s{s3}, 6\ns_add_u32 s{s2}, s{s2}, s{s3}\ns_add_u32 s{s2}, s{s2}, {OBASE}")
    A(f"v_lshlrev_b32 v{T+4}, 12, v{HM}\nv_lshlrev_b32 v{T+5}, 4, v{SL}\nv_add3_u32 v{VOP}, v{T+4}, v{T+5}, s{s2}")
    A(f"s_lshl_b32 s{sPROD}, s{sG}, 5\ns_add_u32 s{sPROD}, s{sPROD}, s{sS}\ns_lshl_b32 s{s0}, s{sPROD}, 5")
    w2_addr(s0); pp_addr()
    A(f"s_lshl_b32 s{s2}, s3, 9\nv_lshlrev_b32 v{T}, 2, v{HM}\nv_lshl_add_u32 v{T}, v{SL}, 7, v{T}\nv_add_u32 v{VST}, s{s2}, v{T}")
    for r in range(4): A(f"v_mov_b32 v{ONE+r}, 0x3f803f80")
    A(f"v_mov_b32 v{T}, 0xff800000\nds_write_b32 v{HM}, v{T} offset:{L_M}")
    A("s_waitcnt lgkmcnt(0)")
    get_tag()
    poll_init()
    if sflag: A("s_barrier")
    na = a_w
    for n in range(adv):
        A(f"s_waitcnt vmcnt({len(seqA)-1-seqA.index(n)})"); w1_load(0); seqA.append(na); na += 1
    A(f"s_waitcnt vmcnt({len(seqA)-1-seqA.index('x')})")
    stamp(1)
    ln_own("LA_ln")
    stamp(2)
    kv = {"K": 0, "V": 0}
    def issue(e):
        if e == "W": w2_load(); return
        t = kv[e]; kv[e] += 1
        if e == "V" and t == 0: A(f"s_add_u32 m0, s{sF}, {L_V}")
        if e == "K": A(f"buffer_load_dwordx4 v{KA+t}, {srd(SRD_K)}, 0 offen offset:{t*1024} {pol} lds")
        else: A(f"buffer_load_dwordx4 v{VA+(t>>1)}, {srd(SRD_V)}, 0 offen offset:{t*1024} {pol} lds")
    allo = a_pre + a_mid + a_post
    assert allo.count("K") == 4 and allo.count("V") == 4 and "K" not in a_post and allo.index("V") > allo.rindex("K")
    pre = list(a_pre); npre = len(pre)
    sched = [max(min(a_w, 8 + npre - p), 1) for p in range(9)] + [1] * 16
    issued = gemv1(["a"] * 8 + ["w"] * npre, sched, na, seqA, 0, 8, lambda: issue(pre.pop(0))) - 8
    assert issued == npre
    stamp(3)
    partial_store_lds()
    A("s_waitcnt lgkmcnt(0)\ns_barrier")
    nbar = 0
    if a_pubbar: A("s_barrier")
    stamp(4)
    for n, e in enumerate(a_mid):
        if npre + n >= a_w2: A(f"s_waitcnt vmcnt({a_w2-1})")
        issue(e)
    A(f"s_waitcnt vmcnt({a_pollwait})")
    def q_loads():
        for u in range(4): A(f"buffer_load_dwordx4 {vr(G+4*u,4)}, v{VQP}, {srd(SRD_WS)}, s{sPATH} offen offset:{u*1024} sc1")
    if debug and probe == "qr": A("s_waitcnt lgkmcnt(0)\ns_add_u32 s4, s80, 0")
    q_loads()
    if a_qbar: A("s_barrier"); nbar += 1
    for e in a_post: issue(e)
    A(f"s_waitcnt vmcnt({len(a_post)})")
    vyoung = len(a_post) - 1 - a_post.rindex("V") if "V" in a_post else 63
    for ks in range(4): A(f"ds_read_b128 {vr(KF+4*ks,4)}, v{KR+ks} offset:{L_K}")
    check4([G+2, G+6, G+10, G+14], "LA_qok")
    if debug and probe == "qr": A("s_add_u32 s4, s80, 100")
    A("LA_qpoll:")
    q_loads()
    A("s_waitcnt vmcnt(0)")
    check4([G+2, G+6, G+10, G+14], "LA_qok")
    def late_q():
        A(f"v_lshlrev_b32 v{T+4}, 3, v0")
        reduce8(T, sTAG)
        A(f"s_lshl_b32 s{s0}, s{sG}, 15\ns_and_b32 s{s1}, s{sS}, 7\ns_lshl_b32 s{s1}, s{s1}, 12\ns_add_u32 s{s0}, s{s0}, s{s1}\ns_lshr_b32 s{s1}, s{sS}, 3\ns_lshl_b32 s{s1}, s{s1}, 10\ns_add_u32 s{s0}, s{s0}, s{s1}\ns_add_u32 s{s0}, s{s0}, {QBASE}")
        A(f"v_lshl_add_u32 v{T+4}, v0, 4, s{s0}")
        pub_global(T, T+4)
    poll_tail("LA_qpoll", late_q, qsleep)
    A("LA_qok:")
    stamp(5)
    A(f"v_pk_add_f32 {vr(G,2)}, {vr(G,2)}, {vr(G+4,2)}\nv_pk_add_f32 {vr(G+8,2)}, {vr(G+8,2)}, {vr(G+12,2)}")
    A(f"s_mul_i32 s{s2}, s3, 288\nv_lshl_add_u32 v{T}, v0, 2, s{s2}")
    A(f"v_pk_add_f32 {vr(G,2)}, {vr(G,2)}, {vr(G+8,2)}\nv_cvt_pk_bf16_f32 v{G}, v{G}, v{G+1}")
    A(f"ds_write_b32 v{T}, v{G} offset:{L_Q}")
    w2_load(a_pts[0])
    A("s_waitcnt lgkmcnt(0)\ns_barrier"); nbar += 1
    for ks in range(4): A(f"ds_read_b128 {vr(QF2+4*ks,4)}, v{QR} offset:{L_Q+64*ks}")
    for ks in range(4):
        A(f"s_waitcnt lgkmcnt({0 if full else 3-ks})")
        A(f"v_mfma_f32_16x16x32_bf16 {vr(ACC,4)}, {vr(KF+4*ks,4)}, {vr(QF2+4*ks,4)}, {vr(ACC,4) if ks else 0}")
    A(f"s_mov_b32 s{s2}, 0x3db504f3")
    A(f"v_cvt_pk_bf16_f32 v{T}, v{ACC}, v{ACC+1}\nv_cvt_pk_bf16_f32 v{T+1}, v{ACC+2}, v{ACC+3}")
    A(f"v_lshlrev_b32 v{U}, 16, v{T}\nv_and_b32 v{U+1}, 0xffff0000, v{T}\nv_lshlrev_b32 v{U+2}, 16, v{T+1}\nv_and_b32 v{U+3}, 0xffff0000, v{T+1}")
    A(f"v_pk_mul_f32 {vr(U,2)}, {vr(U,2)}, s[{s2}:{s2+1}] op_sel_hi:[1,0]\nv_pk_mul_f32 {vr(U+2,2)}, {vr(U+2,2)}, s[{s2}:{s2+1}] op_sel_hi:[1,0]")
    A(f"v_cvt_pk_bf16_f32 v{T}, v{U}, v{U+1}\nv_cvt_pk_bf16_f32 v{T+1}, v{U+2}, v{U+3}")
    A(f"v_lshlrev_b32 v{U}, 16, v{T}\nv_and_b32 v{U+1}, 0xffff0000, v{T}\nv_lshlrev_b32 v{U+2}, 16, v{T+1}\nv_and_b32 v{U+3}, 0xffff0000, v{T+1}")
    A(f"v_max3_f32 v{T}, v{U}, v{U+1}, v{U+2}\nv_max_f32 v{T}, v{T}, v{U+3}")
    A(f"ds_max_f32 v{HM}, v{T} offset:{L_M}")
    w2_load(a_pts[1])
    A("s_waitcnt lgkmcnt(0)\ns_barrier"); nbar += 1
    A(f"ds_read_b32 v{MB}, v{HM} offset:{L_M}")
    A(f"s_mov_b32 s{s2}, 0x3fb8aa3b")
    A("s_waitcnt lgkmcnt(0)")
    A(f"v_pk_add_f32 {vr(U,2)}, {vr(U,2)}, {vr(MB,2)} op_sel_hi:[1,0] neg_lo:[0,1] neg_hi:[0,1]\nv_pk_add_f32 {vr(U+2,2)}, {vr(U+2,2)}, {vr(MB,2)} op_sel_hi:[1,0] neg_lo:[0,1] neg_hi:[0,1]")
    A(f"v_pk_mul_f32 {vr(U,2)}, {vr(U,2)}, s[{s2}:{s2+1}] op_sel_hi:[1,0]\nv_pk_mul_f32 {vr(U+2,2)}, {vr(U+2,2)}, s[{s2}:{s2+1}] op_sel_hi:[1,0]")
    for r in range(4): A(f"v_exp_f32 v{U+r}, v{U+r}")
    A(f"v_cvt_pk_bf16_f32 v{T}, v{U}, v{U+1}\nv_cvt_pk_bf16_f32 v{T+1}, v{U+2}, v{U+3}")
    A(f"ds_write_b64 v{PW}, {vr(T,2)} offset:{L_P}")
    A(f"v_mul_f32 v{MB}, s{s2}, v{MB}")
    A("s_waitcnt lgkmcnt(0)\ns_barrier"); nbar += 1
    for ks in range(4): A(f"ds_read_b128 {vr(QF2+4*ks,4)}, v{QR} offset:{L_P+64*ks}")
    for ks in range(4):
        A(f"s_waitcnt lgkmcnt({0 if full else 3-ks})")
        A(f"v_mfma_f32_16x16x32_bf16 {vr(LA,4)}, {vr(ONE,4)}, {vr(QF2+4*ks,4)}, {vr(LA,4) if ks else 0}")
    if vyoung < 63:
        A(f"s_waitcnt vmcnt({vyoung + sum(a_pts)})\ns_barrier"); nbar += 1
    for ks in range(4):
        for hh in range(2): A(f"ds_read_b64_tr_b16 {vr(VF+4*ks+2*hh,2)}, v{VR_} offset:{ks*8192+hh*1024}")
    OG = QF + 12
    A(f"v_rcp_f32 v{RI}, v{LA}\nv_log_f32 v{OG+2}, v{LA}\nv_mov_b32 v{OG+3}, s{sTL}")
    A(f"v_add_f32 v{OG+2}, v{OG+2}, v{MB}")
    for ks in range(4):
        A(f"s_waitcnt lgkmcnt({0 if full else 6-2*ks})")
        A(f"v_mfma_f32_16x16x32_bf16 {vr(ACC,4)}, {vr(VF+4*ks,4)}, {vr(QF2+4*ks,4)}, {vr(ACC,4) if ks else 0}")
    A("s_mov_b32 exec_lo, 0x00ff00ff\ns_mov_b32 exec_hi, 0x00ff00ff")
    A(f"v_pk_mul_f32 {vr(ACC,2)}, {vr(ACC,2)}, {vr(RI,2)} op_sel_hi:[1,0]\nv_pk_mul_f32 {vr(ACC+2,2)}, {vr(ACC+2,2)}, {vr(RI,2)} op_sel_hi:[1,0]")
    A(f"v_cvt_pk_bf16_f32 v{OG}, v{ACC}, v{ACC+1}\nv_cvt_pk_bf16_f32 v{OG+1}, v{ACC+2}, v{ACC+3}")
    A(f"ds_write_b128 v{VST}, {vr(OG,4)} offset:{L_R}")
    pub_local(OG, VOP, opol)
    if dupO: A(f"buffer_store_dwordx4 {vr(OG,4)}, v{VOP}, {srd(SRD_WS)}, s{sDEL} offen")
    A("s_mov_b64 exec, -1")
    A("s_waitcnt lgkmcnt(0)\ns_barrier"); nbar += 1
    stamp(6)
    n0 = cnt["w2"]
    while cnt["w2"] < 8:
        if cnt["w2"] - n0 >= a_ww: A(f"s_waitcnt vmcnt({a_ww-1})")
        w2_load()
    stamp(7)
    A("s_barrier")
    stamp(8)
    stage3(8, 0)
    stamp(9)
    write_stamps()
    A("s_endpgm")

    A("L_roleS2:")
    if sflag: A(f"v_mov_b32 v{T+3}, 0\nds_write_b32 v{T+3}, v{T+3} offset:{L_S+12}\ns_waitcnt lgkmcnt(0)\ns_barrier")
    A(f"s_load_dword s{sE}, s[26:27], 0")
    build_srd(SRD_WS, 26, 268435456)
    A(f"{isB}\ns_cbranch_scc1 L_roleSB")
    VQS = R0; VOG = R0 + 1
    A(f"s_lshl_b32 s{s0}, s{sG}, 15\ns_and_b32 s{s1}, s{sS}, 7\ns_lshl_b32 s{s1}, s{s1}, 12\ns_add_u32 s{s0}, s{s0}, s{s1}\ns_lshr_b32 s{s1}, s{sS}, 3\ns_lshl_b32 s{s1}, s{s1}, 10\ns_add_u32 s{s0}, s{s0}, s{s1}\ns_add_u32 s{s0}, s{s0}, {QBASE}")
    A(f"v_lshl_add_u32 v{VQS}, v0, 4, s{s0}")
    A(f"s_lshl_b32 s{s0}, s{sG}, 17\ns_lshl_b32 s{s1}, s{sS}, 12\ns_add_u32 s{s0}, s{s0}, s{s1}\ns_add_u32 s{s0}, s{s0}, {OBASE}\nv_lshl_add_u32 v{VOG}, v0, 4, s{s0}")
    A("s_waitcnt vmcnt(0)")
    ln_stats()
    if tq: A(f"buffer_load_dwordx4 {vr(G,4)}, v{VQS}, {srd(SRD_WS)}, 0 offen")
    for u in range(4 if to else 0): A(f"buffer_load_dwordx4 {vr(G+8,4)}, v{VOG}, {srd(SRD_WS)}, 0 offen offset:{u*1024}")
    if tlb:
        A(f"s_lshl_b32 s{s0}, s{sG}, 24\ns_lshl_b32 s{s1}, s{sS}, 15\ns_add_u32 s{s0}, s{s0}, s{s1}\ns_add_u32 s{s0}, s{s0}, {61440*256}\nv_mov_b32 v{T}, s{s0}")
        A(f"s_lshl_b32 s{s0}, s{sG}, 21\ns_lshl_b32 s{s1}, s{sS}, 16\ns_add_u32 s{s0}, s{s0}, s{s1}\nv_mov_b32 v{T+1}, s{s0}\ns_mov_b64 exec, 1")
        A(f"global_load_dword v{G+12}, v{T}, s[6:7] {pol}\nglobal_load_dword v{G+13}, v{T}, s[8:9] {pol}\nglobal_load_dword v{G+14}, v{T+1}, s[12:13] {pol}\ns_mov_b64 exec, -1")
    A(f"v_lshlrev_b32 v{T+4}, 3, v0\nv_and_b32 v{VOR}, 0x70, v{CH}\nv_lshl_add_u32 v{VOR}, v{SL}, 2, v{VOR}")
    poll_init()
    amp_pub()
    A("s_waitcnt vmcnt(0)\ns_barrier")
    reduce8()
    pub_local(PB, VQS, qpol)
    if a_pubbar: A("s_barrier")
    stamp(4)
    for _ in range(nbar): A("s_barrier")
    A("LS_poll:")
    for u in range(4): A(f"buffer_load_dwordx4 {vr(G+4*u,4)}, v{VOG}, {srd(SRD_WS)}, s{sPATH} offen offset:{u*1024} sc1")
    A("s_waitcnt vmcnt(0)")
    check4([G+3, G+7, G+11, G+15], "LS_ok")
    def late_o():
        A(f"s_lshl_b32 s{s0}, s{sG}, 17\ns_lshl_b32 s{s1}, s{sS}, 7\ns_add_u32 s{s0}, s{s0}, s{s1}\ns_add_u32 s{s0}, s{s0}, {OBASE}")
        A(f"v_and_b32 v{T}, 7, v0\nv_lshlrev_b32 v{T}, 14, v{T}\nv_lshrrev_b32 v{T+1}, 3, v0\nv_lshlrev_b32 v{T+1}, 4, v{T+1}\nv_add3_u32 v{T}, v{T}, v{T+1}, s{s0}\nv_lshlrev_b32 v{T+2}, 4, v0")
        for u in range(4):
            A(f"ds_read_b128 {vr(W1+4*u,4)}, v{T+2} offset:{L_R+u*1024}\ns_waitcnt lgkmcnt(0)\nv_mov_b32 v{W1+4*u+3}, s{sTAG}")
            pub_global(W1+4*u, T)
            A(f"v_add_u32 v{T}, 4096, v{T}")
    poll_tail("LS_poll", late_o, osleep)
    A("LS_ok:")
    stamp(6)
    A(f"v_max3_f32 v{T}, v{G+2}, v{G+6}, v{G+10}\nv_max_f32 v{T}, v{T}, v{G+14}")
    for u in range(2):
        A(f"v_lshlrev_b32 v{U+4*u}, 16, v{G+4*u}\nv_and_b32 v{U+4*u+1}, 0xffff0000, v{G+4*u}")
    A(f"v_max_f32_dpp v{T}, v{T}, v{T} row_ror:8 row_mask:0xf bank_mask:0xf")
    for u in range(2):
        A(f"v_lshlrev_b32 v{U+4*u+2}, 16, v{G+4*u+1}")
    A(f"v_mov_b32 v{T+1}, v{T}")
    for u in range(2):
        A(f"v_and_b32 v{U+4*u+3}, 0xffff0000, v{G+4*u+1}")
    A(f"v_permlane16_swap_b32 v{T}, v{T+1}\nv_max_f32 v{T}, v{T}, v{T+1}\nv_mov_b32 v{T+1}, v{T}")
    for u in range(2, 4):
        A(f"v_lshlrev_b32 v{U+4*u}, 16, v{G+4*u}")
    A(f"v_permlane32_swap_b32 v{T}, v{T+1}\nv_max_f32 v{T}, v{T}, v{T+1}")
    for u in range(4): A(f"v_sub_f32 v{G+4*u+2}, v{G+4*u+2}, v{T}")
    for u in range(4): A(f"v_exp_f32 v{G+4*u+2}, v{G+4*u+2}")
    for u in range(2, 4):
        A(f"v_and_b32 v{U+4*u+1}, 0xffff0000, v{G+4*u}\nv_lshlrev_b32 v{U+4*u+2}, 16, v{G+4*u+1}\nv_and_b32 v{U+4*u+3}, 0xffff0000, v{G+4*u+1}")
    A(f"v_pk_mul_f32 {vr(ACC,2)}, {vr(U,2)}, {vr(G+2,2)} op_sel_hi:[1,0]\nv_pk_mul_f32 {vr(ACC+2,2)}, {vr(U+2,2)}, {vr(G+2,2)} op_sel_hi:[1,0]")
    A(f"v_add_f32 v{T}, v{G+2}, v{G+6}\nv_add_f32 v{T+1}, v{G+10}, v{G+14}")
    for u in range(1, 4):
        A(f"v_pk_fma_f32 {vr(ACC,2)}, {vr(U+4*u,2)}, {vr(G+4*u+2,2)}, {vr(ACC,2)} op_sel_hi:[1,0,1]\nv_pk_fma_f32 {vr(ACC+2,2)}, {vr(U+4*u+2,2)}, {vr(G+4*u+2,2)}, {vr(ACC+2,2)} op_sel_hi:[1,0,1]")
        if u == 1: A(f"v_add_f32 v{T}, v{T}, v{T+1}")
    A(f"v_add_f32_dpp v{T}, v{T}, v{T} row_ror:8 row_mask:0xf bank_mask:0xf")
    for r in range(4): A(f"v_add_f32_dpp v{ACC+r}, v{ACC+r}, v{ACC+r} row_ror:8 row_mask:0xf bank_mask:0xf")
    A(f"v_mov_b32 v{T+1}, v{T}")
    A(f"v_permlane16_swap_b32 v{T}, v{T+1}\nv_permlane16_swap_b32 v{ACC}, v{ACC+1}\nv_permlane16_swap_b32 v{ACC+2}, v{ACC+3}")
    A(f"v_add_f32 v{T}, v{T}, v{T+1}\nv_add_f32 v{ACC}, v{ACC}, v{ACC+1}\nv_add_f32 v{ACC+2}, v{ACC+2}, v{ACC+3}\nv_mov_b32 v{T+1}, v{T}")
    A(f"v_permlane32_swap_b32 v{ACC}, v{ACC+2}\nv_permlane32_swap_b32 v{T}, v{T+1}")
    A(f"v_add_f32 v{T}, v{T}, v{T+1}\nv_add_f32 v{ACC}, v{ACC}, v{ACC+2}\nv_rcp_f32 v{T}, v{T}")
    A(f"v_mul_f32 v{ACC}, v{ACC}, v{T}\nv_cvt_pk_bf16_f32 v{ACC}, v{ACC}, v{ACC}")
    A(f"ds_write_b32 v{VOR}, v{ACC} offset:{L_O}")
    A("s_waitcnt lgkmcnt(0)")
    stamp(7)
    A("s_barrier")
    stamp(9)
    write_stamps()
    if only == "A":
        A(f"s_cmp_lg_u32 s2, {apar}\ns_cbranch_scc1 LS_x\ns_sleep 100\nv_mov_b32 v{T+2}, 0\nv_mov_b32 v{T+3}, s{sE}\nbuffer_store_dword v{T+3}, v{T+2}, {srd(SRD_WS)}, 0 offen sc1\nLS_x:")
    A("s_endpgm")

    V.next = R0
    VXS = v("VXS"); VXG = v("VXG"); VFG = v("VFG")
    hi = max(hi, V.next)
    b_win = b_sched[0]
    A("L_roleB:")
    cnt["w1"] = w0; cnt["w2"] = 0
    x_own_load(16)
    assert b_pos >= b_win + adv and b_win >= w0
    for n in range(w0, b_win): w1_load(0)
    seqB = list(range(w0)) + ["x"] + list(range(w0, b_win)) + ["xf"]
    A(f"s_mul_i32 s{sPROD}, s{sG}, 28\ns_add_u32 s{sPROD}, s{sPROD}, s{sS}")
    build_srd(SRD_W2, 20, 7340032); build_srd(SRD_WS, 26, 268435456); build_srd(SRD_OUT, 22, 2048)
    stamp(0)
    A(f"s_lshl_b32 s{sF}, s{sG}, 4\ns_add_u32 s{sF}, s{sF}, s{sS}\ns_cmp_lt_u32 s{sS}, 16\ns_cselect_b32 s{sF}, s{sF}, -1")
    A(f"s_lshl_b32 s{s2}, s{sF}, 5\nv_lshrrev_b32 v{T+3}, 3, v{CH}\nv_add_u32 v{T+3}, s{s2}, v{T+3}")
    A(f"buffer_load_ushort v{XF}, v{T+3}, {srd(SRD_X)}, 0 offen")
    masks(8)
    A(f"s_lshl_b32 s{s0}, s{sPROD}, 5")
    w2_addr(s0)
    if fullline:
        A(f"s_lshl_b32 s{s2}, s3, 12\ns_lshr_b32 s{s3}, s{sF}, 1\ns_lshl_b32 s{s3}, s{s3}, 15\ns_add_u32 s{s2}, s{s2}, s{s3}\ns_and_b32 s{s3}, s{sF}, 1\ns_lshl_b32 s{s3}, s{s3}, 6\ns_add_u32 s{s2}, s{s2}, s{s3}\ns_add_u32 s{s2}, s{s2}, {PBASE}")
        A(f"v_lshrrev_b32 v{T}, 2, v0\nv_lshlrev_b32 v{T}, 7, v{T}\nv_and_b32 v{T+1}, 3, v0\nv_lshlrev_b32 v{T+1}, 4, v{T+1}\nv_add3_u32 v{VFG}, v{T}, v{T+1}, s{s2}")
    else:
        A(f"s_lshl_b32 s{s2}, s3, 11")
        A(f"s_lshl_b32 s{s3}, s{sF}, 14\ns_add_u32 s{s2}, s{s2}, s{s3}\ns_add_u32 s{s2}, s{s2}, {PBASE}\nv_lshl_add_u32 v{VFG}, v0, 4, s{s2}")
    A(f"s_add_u32 s{sPROD}, s{sPROD}, 128")
    pp_addr()
    A("s_waitcnt lgkmcnt(0)")
    get_tag()
    if sflag: A("s_barrier")
    nb = b_win
    for n in range(adv):
        A(f"s_waitcnt vmcnt({len(seqB)-1-seqB.index(n)})"); w1_load(0); seqB.append(nb); nb += 1
    A(f"s_waitcnt vmcnt({len(seqB)-1-seqB.index('x')})")
    stamp(1)
    ln_own("LB_ln")
    stamp(2)
    order = ["a"] * b_pos + ["w"] * b_early + ["a"] * (16 - b_pos)
    issued = gemv1(order, list(b_sched), nb, seqB, 0)
    assert issued == len(order)
    stamp(3)
    partial_store_lds()
    A("s_waitcnt lgkmcnt(0)\ns_barrier")
    if b_pubbar: A("s_barrier")
    n0 = cnt["w2"]
    while cnt["w2"] < 8:
        if cnt["w2"] - n0 >= b_ww: A(f"s_waitcnt vmcnt({b_ww-1})")
        w2_load()
    stamp(5)
    A("s_barrier")
    stamp(6)
    stage3(8, b_early)
    stamp(7)
    if only == "B": A("s_branch LB_done")
    A(f"s_cmp_eq_u32 s{sF}, -1\ns_cbranch_scc1 LB_done")
    A(f"s_cmp_lt_u32 s3, 7\ns_cselect_b32 s{s1}, {2048 if fullline else 1024}, 0")
    A(f"s_mov_b32 s{s2}, 0x0c0c0400\ns_mov_b32 s{s3}, 0x04000c0c")
    def f_ld(r):
        A(f"buffer_load_dwordx4 {vr(r,4)}, v{VFG}, {srd(SRD_WS)}, 0 offen {pld}")
        A(f"buffer_load_dwordx4 {vr(r+4,4)}, v{VFG}, {srd(SRD_WS)}, s{s1} offen {pld}")
    def f_chk(r, ok):
        for u in range(2):
            A(f"v_perm_b32 v{T+2*u}, v{r+4*u+1}, v{r+4*u}, s{s2}\nv_perm_b32 v{T+2*u+1}, v{r+4*u+3}, v{r+4*u+2}, s{s3}\nv_or_b32 v{T+2*u}, v{T+2*u}, v{T+2*u+1}")
        A(f"v_cmp_ne_u32 vcc, s{sTAG}, v{T}\nv_cmp_ne_u32 s[{C0}:{C0+1}], s{sTAG}, v{T+2}\ns_or_b64 s[{C0}:{C0+1}], s[{C0}:{C0+1}], vcc\ns_cbranch_scc0 {ok}")
    if fhint:
        m = ((1 << (4 * fhint)) - 1) << (4 * fhl)
        A(f"s_mov_b32 exec_lo, {hex(m & 0xffffffff)}\ns_mov_b32 exec_hi, {hex(m >> 32)}")
        A("LB_fh:")
        A(f"buffer_load_dwordx4 {vr(G,4)}, v{VFG}, {srd(SRD_WS)}, s{s1} offen {pld}\ns_waitcnt vmcnt(0)")
        A(f"v_perm_b32 v{T}, v{G+1}, v{G}, s{s2}\nv_perm_b32 v{T+1}, v{G+3}, v{G+2}, s{s3}\nv_or_b32 v{T}, v{T}, v{T+1}")
        A(f"v_cmp_ne_u32 vcc, s{sTAG}, v{T}\ns_cbranch_vccz LB_fh2")
        if fhsleep: A(f"s_sleep {fhsleep}")
        A(f"s_sub_u32 s{sCNT}, s{sCNT}, 1\ns_cbranch_scc0 LB_fh\ns_mov_b32 s{sCNT}, 0")
        A("LB_fh2:\ns_mov_b64 exec, -1")
        if fdelay: A(f"s_sleep {fdelay}")
    sets = [W1 + 8 * k for k in range(fnsets)]
    for k in range(fnsets):
        f_ld(sets[k])
        if k < fnsets - 1 and fstag: A(f"s_sleep {fstag}")
    if fsel:
        r = sets[0]
        A("LB_fsel:")
        A("s_waitcnt vmcnt(0)")
        for u in range(2):
            A(f"v_perm_b32 v{T+2*u}, v{r+4*u+1}, v{r+4*u}, s{s2}\nv_perm_b32 v{T+2*u+1}, v{r+4*u+3}, v{r+4*u+2}, s{s3}\nv_or_b32 v{T+2*u}, v{T+2*u}, v{T+2*u+1}")
        A(f"v_cmp_ne_u32 vcc, s{sTAG}, v{T}\nv_cmp_ne_u32 s[{C0}:{C0+1}], s{sTAG}, v{T+2}\ns_or_b64 s[{C1}:{C1+1}], s[{C0}:{C0+1}], vcc\ns_cbranch_scc0 LB_fok0")
        A(f"s_sub_u32 s{sCNT}, s{sCNT}, 1\ns_cbranch_scc1 LB_fok0")
        A(f"s_mov_b64 exec, vcc\ns_cbranch_execz LB_fs1\nbuffer_load_dwordx4 {vr(r,4)}, v{VFG}, {srd(SRD_WS)}, 0 offen {pld}\nLB_fs1:")
        A(f"s_mov_b64 exec, s[{C0}:{C0+1}]\ns_cbranch_execz LB_fs2\nbuffer_load_dwordx4 {vr(r+4,4)}, v{VFG}, {srd(SRD_WS)}, s{s1} offen {pld}\nLB_fs2:")
        A("s_mov_b64 exec, -1\ns_branch LB_fsel")
    A("LB_fpoll:")
    for k in range(fnsets):
        A(f"s_waitcnt vmcnt({2*(fnsets-1)})")
        f_chk(sets[k], f"LB_fok{k}")
        if k == fnsets - 1:
            if fsleep: A(f"s_sleep {fsleep}")
            A(f"s_sub_u32 s{sCNT}, s{sCNT}, 1\ns_cbranch_scc1 LB_fok{k}")
        f_ld(sets[k])
    A("s_branch LB_fpoll")
    for k in range(fnsets):
        A(f"LB_fok{k}:")
        for r in range(8): A(f"v_and_b32 v{G+r}, s{sMSK}, v{sets[k]+r}")
        if k < fnsets - 1: A("s_branch LB_fok")
    A("LB_fok:")
    stamp(8)
    A(f"s_cmp_eq_u32 s{s1}, 0\ns_cbranch_scc1 LB_f1")
    A(f"v_pk_add_f32 {vr(G,2)}, {vr(G,2)}, {vr(G+4,2)}\nv_pk_add_f32 {vr(G+2,2)}, {vr(G+2,2)}, {vr(G+6,2)}")
    A("LB_f1:")
    for c in ("row_ror:4", "row_ror:8"):
        for r in range(4): A(f"v_add_f32_dpp v{G+r}, v{G+r}, v{G+r} {c} row_mask:0xf bank_mask:0xf")
    A(f"v_and_b32 v{T}, 3, v0\nv_lshlrev_b32 v{T}, 7, v{T}")
    A(f"v_permlane16_swap_b32 v{G}, v{G+1}\nv_permlane16_swap_b32 v{G+2}, v{G+3}")
    A(f"v_add_f32 v{G}, v{G}, v{G+1}\nv_add_f32 v{G+2}, v{G+2}, v{G+3}")
    A(f"v_lshl_add_u32 v{T}, v{SL}, 5, v{T}\ns_lshl_b32 s{s2}, s3, 2\nv_add_u32 v{T}, s{s2}, v{T}")
    A(f"v_permlane32_swap_b32 v{G}, v{G+2}\nv_add_f32 v{G}, v{G}, v{G+2}")
    A("s_mov_b32 exec_lo, 0x000f000f\ns_mov_b32 exec_hi, 0x000f000f")
    A(f"ds_write_b32 v{T}, v{G} offset:{L_F}")
    A("s_mov_b64 exec, -1")
    A("s_waitcnt lgkmcnt(0)\ns_barrier")
    A("s_cmp_lg_u32 s3, 0\ns_cbranch_scc1 LB_done")
    A(f"v_lshlrev_b32 v{T+1}, 1, v{CH}")
    A(f"ds_read_b128 {vr(G,4)}, v{T+1} offset:{L_F}\nds_read_b128 {vr(G+4,4)}, v{T+1} offset:{L_F+16}")
    A(f"s_lshl_b32 s{s2}, s{sF}, 5\nv_lshrrev_b32 v{T}, 3, v{CH}\nv_add_u32 v{T}, s{s2}, v{T}\nv_lshlrev_b32 v{XF}, 16, v{XF}")
    A("s_waitcnt lgkmcnt(0)")
    A(f"v_pk_add_f32 {vr(G,2)}, {vr(G,2)}, {vr(G+2,2)}\nv_pk_add_f32 {vr(G+4,2)}, {vr(G+4,2)}, {vr(G+6,2)}")
    A(f"v_add_f32 v{G}, v{G}, v{G+1}\nv_add_f32 v{G+4}, v{G+4}, v{G+5}")
    A(f"v_cvt_pk_bf16_f32 v{G}, v{G}, v{G+4}")
    A(f"v_lshlrev_b32 v{G+1}, 16, v{G}\nv_and_b32 v{G+2}, 0xffff0000, v{G}")
    A(f"v_add_f32 v{G+1}, v{XF}, v{G+1}")
    rbf(G+1, f"v{G+1}")
    A(f"v_add_f32 v{G+1}, v{G+1}, v{G+2}\nv_cvt_pk_bf16_f32 v{G+1}, v{G+1}, v{G+1}")
    A("s_mov_b32 exec_lo, 0xffff\ns_mov_b32 exec_hi, 0")
    A(f"buffer_store_short v{G+1}, v{T}, {srd(SRD_OUT)}, 0 offen")
    A(f"s_cmp_lg_u32 s{sF}, 0\ns_cbranch_scc1 LB_noep")
    A(f"s_mov_b32 exec_lo, 1\nv_mov_b32 v{T+2}, 0\nv_mov_b32 v{T+3}, s{sE}")
    A(f"buffer_store_dword v{T+3}, v{T+2}, {srd(SRD_WS)}, 0 offen")
    A("LB_noep:")
    A("s_mov_b64 exec, -1")
    A("LB_done:")
    if only == "B":
        A(f"s_cmp_lg_u32 s2, {1-apar}\ns_cbranch_scc1 LB_x\ns_sleep 127\nv_mov_b32 v{T+2}, 0\nv_mov_b32 v{T+3}, s{sE}\nbuffer_store_dword v{T+3}, v{T+2}, {srd(SRD_WS)}, 0 offen sc1\nLB_x:")
    if amp:
        A(f"s_cmp_lg_u32 s{sF}, 0\ns_cbranch_scc1 L_end\ns_cmp_lg_u32 s3, 0\ns_cbranch_scc1 L_end")
        A("s_memrealtime s[6:7]")
        A(f"v_lshlrev_b32 v{T}, 5, v0\nv_add_u32 v{T}, {TSBASE}, v{T}")
        A(f"buffer_load_dwordx4 {vr(G,4)}, v{T}, {srd(SRD_WS)}, 0 offen sc1\nbuffer_load_dwordx4 {vr(G+4,4)}, v{T}, {srd(SRD_WS)}, 0 offen offset:16 sc1\ns_waitcnt vmcnt(0) lgkmcnt(0)")
        for q in range(4):
            A(f"v_subrev_u32 v{G+2*q}, s80, v{G+2*q}\nv_add_u32 v{G+2*q}, 5000, v{G+2*q}\nv_cmp_eq_u32 vcc, s{sTAG}, v{G+2*q+1}")
            A(f"v_cndmask_b32 v{U+q}, -1, v{G+2*q}, vcc\nv_cndmask_b32 v{U+4+q}, 0, v{G+2*q}, vcc")
        A(f"v_min_u32 v{U}, v{U}, v{U+1}\nv_min_u32 v{U+2}, v{U+2}, v{U+3}\nv_min_u32 v{U}, v{U}, v{U+2}")
        A(f"v_max_u32 v{U+4}, v{U+4}, v{U+5}\nv_max_u32 v{U+6}, v{U+6}, v{U+7}\nv_max_u32 v{U+4}, v{U+4}, v{U+6}")
        A("s_mov_b32 s8, -1\ns_mov_b32 s9, 0")
        for ln in range(64):
            A(f"v_readlane_b32 s10, v{U}, {ln}\nv_readlane_b32 s11, v{U+4}, {ln}\ns_min_u32 s8, s8, s10\ns_max_u32 s9, s9, s11")
        A("s_sub_u32 s6, s6, s80\ns_add_u32 s6, s6, 5000")
        if amp == "skew": A("s_sub_u32 s12, s9, s8")
        elif amp == "total": A("s_sub_u32 s12, s6, s8")
        elif amp == "fromlast": A("s_sub_u32 s12, s6, s9")
        elif amp == "zero": A("s_mov_b32 s12, 0")
        A(f"s_mul_i32 s12, s12, 10\ns_add_u32 s12, s12, s8\ns_sub_u32 s12, s12, 5000\ns_add_u32 s12, s12, 3000")
        A(f"LB_pad:\ns_memrealtime s[4:5]\ns_waitcnt lgkmcnt(0)\ns_sub_u32 s4, s4, s80\ns_cmp_lt_i32 s4, s12\ns_cbranch_scc1 LB_pad")
    stamp(9)
    write_stamps()
    A("s_endpgm")
    A("L_roleSB:")
    A(f"s_mul_i32 s{sPROD}, s{sG}, 28\ns_add_u32 s{sPROD}, s{sPROD}, s{sS}")
    A(f"s_lshl_b32 s{s2}, s{sPROD}, 10\ns_add_u32 s{s2}, s{s2}, {XBASE}\nv_lshl_add_u32 v{VXG}, v0, 4, s{s2}")
    A(f"s_and_b32 s{s2}, s{sPROD}, 0xfc\ns_lshl_b32 s{s2}, s{s2}, 10\ns_and_b32 s{s3}, s{sPROD}, 3\ns_lshl_b32 s{s3}, s{s3}, 8\ns_add_u32 s{s2}, s{s2}, s{s3}\ns_add_u32 s{s2}, s{s2}, {XBASE}")
    A(f"v_lshlrev_b32 v{T}, 10, v{SL}\nv_add3_u32 v{VXS}, v{T}, v{CH}, s{s2}")
    A("s_waitcnt vmcnt(0)")
    ln_stats()
    if tx: A(f"buffer_load_dwordx4 {vr(G,4)}, v{VXG}, {srd(SRD_WS)}, 0 offen")
    if tlb or tlbout:
        A(f"s_lshl_b32 s{s0}, s{sPROD}, 16\nv_mov_b32 v{T}, s{s0}\nv_mov_b32 v{T+1}, 0\ns_mov_b64 exec, 1")
        if tlb: A(f"global_load_dword v{G+12}, v{T}, s[20:21] {pol}")
        if tlbout: A(f"global_load_dword v{G+13}, v{T+1}, s[22:23]")
        A("s_mov_b64 exec, -1")
    A(f"v_lshlrev_b32 v{T+4}, 3, v0")
    poll_init()
    amp_pub()
    A("s_waitcnt vmcnt(0)\ns_barrier")
    reduce8()
    pub_local(PB, VXS, xpol)
    if b_pubbar: A("s_barrier")
    stamp(4)
    A("LB_xpoll:")
    A(f"buffer_load_dwordx4 {vr(G,4)}, v{VXG}, {srd(SRD_WS)}, s{sPATH} offen sc1")
    A("s_waitcnt vmcnt(0)")
    A(f"v_cmp_ne_u32 vcc, s{sCUR}, v{G+2}\ns_cmp_eq_u64 vcc, 0\ns_cbranch_scc1 LB_xok")
    def late_x():
        A(f"v_mov_b32 v{PB+2}, s{sTAG}")
        pub_global(PB, VXS)
    poll_tail("LB_xpoll", late_x, xsleep)
    A("LB_xok:")
    stamp(5)
    A(f"v_permlane16_swap_b32 v{G}, v{G+1}\nv_add_f32 v{G}, v{G}, v{G+1}")
    rbf(G, f"v{G}")
    A(f"s_mov_b32 s{s2}, 0x3d372713")
    A(f"v_mul_f32 v{U}, v{G}, v{G}\nv_mov_b32 v{G+1}, v{G}\nv_fma_f32 v{U}, v{U}, s{s2}, 1.0\nv_mul_f32 v{U}, v{U}, v{G}")
    A(f"v_mul_f32 v{U}, 0xc0135761, v{U}\nv_permlane32_swap_b32 v{G+1}, v{G+2}\nv_exp_f32 v{U}, v{U}")
    A(f"v_lshrrev_b32 v{T+2}, 1, v{CH}\nv_add_f32 v{U}, 1.0, v{U}\nv_rcp_f32 v{U}, v{U}\nv_lshl_add_u32 v{T+2}, v{SL}, 2, v{T+2}\nv_mul_f32 v{U}, v{U}, v{G}")
    rbf(U, f"v{U}")
    A(f"v_mul_f32 v{U}, v{U}, v{G+2}\ns_mov_b32 exec_hi, 0\nv_cvt_pk_bf16_f32 v{U}, v{U}, v{U}")
    A(f"ds_write_b32 v{T+2}, v{U} offset:{L_O}")
    A("s_mov_b32 exec_hi, -1")
    A("s_waitcnt lgkmcnt(0)\ns_barrier")
    stamp(9)
    write_stamps()
    A("L_end:")
    A("s_endpgm")

    body, nins = fix_hazards(L)
    nv = max(hi, R0 + 2)
    acc = (nv + 3) // 4 * 4
    head = [l for l in open(f"cdna_kernels/{NAME}.s.ref").read().split("\n") if l.startswith(";") and "@launch" not in l and "Override" not in l and "grid=ceil" not in l]
    out = "\n".join(head) + f"\n; @launch grid=(256,1,1) block=({NW*64},1,1) lds={LDS_BYTES}\n"
    out += f'.amdgcn_target "amdgcn-amd-amdhsa--gfx950"\n.text\n.globl {NAME}_kernel\n.p2align 8\n.type {NAME}_kernel,@function\n{NAME}_kernel:\n'
    txt = "\n".join(("" if l.endswith(":") else "    ") + l for l in body) + "\n"
    txt = txt.replace("CODE_LINES", f"(L_end - {NAME}_kernel) / 128")
    out += txt
    out += f""".section .rodata,"a"
.p2align 6
.amdhsa_kernel {NAME}_kernel
  .amdhsa_next_free_vgpr {nv}
  .amdhsa_next_free_sgpr 86
  .amdhsa_accum_offset {acc}
  .amdhsa_group_segment_fixed_size 0
  .amdhsa_kernarg_size 96
  .amdhsa_user_sgpr_count 2
  .amdhsa_user_sgpr_kernarg_segment_ptr 1
  .amdhsa_system_sgpr_workgroup_id_x 1
  .amdhsa_float_denorm_mode_32 3
.end_amdhsa_kernel
"""
    return out

if __name__ == "__main__":
    kw = eval("dict(" + (sys.argv[2] if len(sys.argv) > 2 else "") + ")")
    txt = gen(**kw)
    open(sys.argv[1], "w").write(txt)
```

```python
import sys
from asmdsl import fix_hazards, Regs

NAME = "parallel_sum__sliding_block_cached__geglu_ffn__decode"
QBASE = 0x10000
OBASE = 0x40000
XBASE = 0xC0000
PBASE = 0x100000
TSBASE = 0x300000
DELTA = 0x400000
L_R = 0; L_Q = 4096; L_P = 6656; L_M = 9216; L_O = 9280; L_F = 9472; L_S = 9984; L_K = 12288; L_V = 45056
LDS_BYTES = 83968
NW = 9

def roles(kw):
    import numpy as np
    wg = np.arange(256); x = wg & 7; i = wg >> 3
    return {"A": (x % 2 == 1), "B": (x % 2 == 0) & (i < 28)}

def gen(debug=False, pol="nt", a_w=3, a_w2=4, a_pre="KK", a_mid="KKV", a_post="VVV", a_pts=(1, 1), a_pubbar=True, a_pollwait=1, a_qbar=True,
        a_ww=3, b_sched=(3,) * 25, b_early=1, b_pos=16, b_ww=4, b_pubbar=True, fsleep=0,
        spin=2000000, limit=32, diagpad=0, apar=1, xbar=True, codepf=True, only=None,
        clk="s_memrealtime", amp=None, probe=None, osleep=0, fullline=True, pst="sc1", pld="sc1", ptouch=None, onsets=1, xnsets=1, stag=4, w0=3, adv=3, sprio=3, sflag=True, tlb=False, tlbout=False, fnsets=1, fstag=2, fhint=1, fhsleep=0, nogl=False, dupP=False, dupO=False, opol="", qpol="", xpol="", tq=True, to=True, tx=True, xsleep=0, qsleep=0, fdelay=0, fhl=15, fsel=False):
    if amp: diagpad = 30
    L = []
    def A(s):
        for x in s.split("\n"):
            x = x.strip()
            if x: L.append(x)
    def stamp(k):
        if debug and (debug != "lite" or k == 9): A(f"{clk} s[{4+2*k}:{5+2*k}]")
    full = debug and debug != "lite"
    V = Regs("v", 1, 168)
    v = lambda name, n=1: V.alloc(name, n)
    vr = lambda r, n: f"v[{r}:{r+n-1}]"
    SL = v("SL"); CH = v("CH"); XD = v("XD")
    T = v("T", 8); M = v("M", 4); TB = v("TB", 4); AF = v("AF", 8); ACC = v("ACC", 4); PB = v("PB", 4)
    W1 = v("W1", 32); W2 = v("W2", 32); XS = v("XS", 16); U = v("U", 16)
    assert XS == W2 + 32 and U == XS + 16
    XO = XS + 8; G = XS
    QF = v("QF", 16)
    MB = v("MB", 2); SD = v("SD", 2); RI = v("RI", 2)
    VW1 = v("VW1"); VW2 = v("VW2"); VXO = v("VXO"); VPP = v("VPP"); XF = v("XF"); VRW = v("VRW"); VOR = v("VOR")
    R0 = V.next
    SRD_W1, SRD_W2, SRD_WS, SRD_X, SRD_OUT = 28, 32, 44, 48, 52
    SRD_K, SRD_V = 28, 32
    sE, sTAG, sG, sS, sPROD, sF = 56, 57, 58, 59, 60, 61
    sO1, sO2, sDEL = 62, 63, 64
    s0, s1, s2, s3 = 66, 67, 68, 69
    sPATH, sRND, sCNT, sMSK = 70, 71, 72, 73
    C0, C1, C2 = 74, 76, 78
    sTL, sCUR, sTX = 82, 83, 84
    srd = lambda r: f"s[{r}:{r+3}]"

    if debug or diagpad: A(f"{clk} s[80:81]")
    A("s_load_dwordx16 s[4:19], s[0:1], 0")
    A("s_load_dwordx8 s[20:27], s[0:1], 64")
    if codepf:
        A(f"s_getpc_b64 s[{C0}:{C0+1}]\nv_lshlrev_b32 v{T}, 7, v0\nv_cmp_gt_u32 vcc, CODE_LINES, v0\ns_and_saveexec_b64 s[{C1}:{C1+1}], vcc\ns_cbranch_execz L_nopf")
        A(f"global_load_dword v{W1+31}, v{T}, s[{C0}:{C0+1}]\nL_nopf:\ns_mov_b64 exec, -1")
    sST = 65
    isB = f"s_bitcmp{1-apar}_b32 s2, 0"
    A(f"v_lshrrev_b32 v{T}, 6, v0\nv_and_b32 v0, 63, v0\ns_bfe_u32 s{sG}, s2, 0x20001\nv_readfirstlane_b32 s3, v{T}")
    A(f"s_lshr_b32 s{sS}, s2, 3\nv_lshrrev_b32 v{SL}, 4, v0\nv_and_b32 v{CH}, 15, v0\nv_lshlrev_b32 v{CH}, 4, v{CH}")
    A(f"s_lshr_b32 s{s0}, s{sS}, 3\ns_and_b32 s{s1}, s{sS}, 7\ns_lshl3_add_u32 s{s1}, s{sG}, s{s1}")
    A(f"s_and_b32 s{s2}, s{sS}, 1\ns_lshl_b32 s{s2}, s{s2}, 1\ns_lshr_b32 s{s3}, s{sS}, 2\ns_mul_i32 s{sF}, s{sG}, 7\ns_add_u32 s{s3}, s{s3}, s{sF}")
    A(f"s_movk_i32 s{sST}, 0x2000\n{isB}")
    A(f"s_cselect_b32 s{s0}, s{s2}, s{s0}\ns_cselect_b32 s{s1}, s{s3}, s{s1}\ns_cmovk_i32 s{sST}, 0x1c00\ns_cselect_b32 s{s2}, 28, 32")
    A(f"s_cmp_ge_u32 s{sS}, s{s2}\ns_cbranch_scc1 L_end")
    if only == "A": A(f"{isB}\ns_cbranch_scc1 L_end")
    if only == "B": A(f"{isB}\ns_cbranch_scc0 L_end")
    A("s_cmp_eq_u32 s3, 8\ns_cbranch_scc1 L_roleS")
    A(f"s_lshl_b32 s{s0}, s{s0}, 6\ns_add_u32 s{s0}, s{s0}, s3\ns_lshl_b32 s{s0}, s{s0}, 2")
    A(f"s_mul_i32 s{s2}, s{s0}, s{sST}\ns_lshl_b32 s{s1}, s{s1}, 8\ns_add_u32 s{s2}, s{s2}, s{s1}")
    A(f"v_mad_u32_u24 v{VW1}, v{SL}, s{sST}, v{CH}\nv_add_u32 v{VW1}, s{s2}, v{VW1}")
    A(f"s_lshl_b32 s{SRD_W1+2}, s{sST}, 10\ns_mov_b32 s{SRD_W1+3}, 0x20000\ns_lshl_b32 s{sST}, s{sST}, 5\ns_mov_b32 s{sO1}, 0\ns_bitcmp0_b32 s{sS}, 1")
    A("s_waitcnt lgkmcnt(0)")
    A(f"s_cselect_b64 s[{SRD_W1}:{SRD_W1+1}], s[16:17], s[18:19]\n{isB}\ns_cselect_b64 s[{SRD_W1}:{SRD_W1+1}], s[{SRD_W1}:{SRD_W1+1}], s[10:11]")
    ENTRY_MARK = len(L)

    def build_srd(r, p, size):
        A(f"s_mov_b64 s[{r}:{r+1}], s[{p}:{p+1}]\ns_mov_b32 s{r+2}, {size}\ns_mov_b32 s{r+3}, 0x20000")
    def pre_srd(r, size): A(f"s_mov_b32 s{r+2}, {size}\ns_mov_b32 s{r+3}, 0x20000")
    def fin_srd(r, p): A(f"s_mov_b64 s[{r}:{r+1}], s[{p}:{p+1}]")
    def masks(J2):
        A(f"v_and_b32 v{T}, 1, v0\nv_lshlrev_b32 v{T}, 4, v{T}\nv_mov_b32 v{T+1}, 0xffff\nv_lshlrev_b32 v{T+1}, v{T}, v{T+1}")
        A(f"v_bfe_u32 v{T+2}, v0, 1, 2")
        for r, c in enumerate((C0, C1, C2)): A(f"v_cmp_eq_u32 s[{c}:{c+1}], {r}, v{T+2}")
        A(f"v_cmp_eq_u32 vcc, 3, v{T+2}")
        for r, c in enumerate((C0, C1, C2)): A(f"v_cndmask_b32 v{M+r}, 0, v{T+1}, s[{c}:{c+1}]")
        A(f"v_cndmask_b32 v{M+3}, 0, v{T+1}, vcc")
        A(f"v_and_b32 v{T}, {(J2-1)*16}, v{CH}\nv_lshl_add_u32 v{VOR}, v{SL}, 2, v{T}")
        A(f"s_lshl_b32 s{s2}, s3, 9\nv_lshlrev_b32 v{T}, 1, v{CH}\nv_lshl_add_u32 v{T}, v{SL}, 4, v{T}\nv_add_u32 v{VRW}, s{s2}, v{T}")
    def wave_sum(r):
        for c in ("row_shr:1", "row_shr:2", "row_shr:4", "row_shr:8"):
            A(f"v_add_f32_dpp v{r}, v{r}, v{r} {c} row_mask:0xf bank_mask:0xf bound_ctrl:0")
        A(f"v_add_f32_dpp v{r}, v{r}, v{r} row_bcast:15 row_mask:0xa bank_mask:0xf")
        A(f"v_add_f32_dpp v{r}, v{r}, v{r} row_bcast:31 row_mask:0xc bank_mask:0xf")
    def rbf(dst, src):
        A(f"v_cvt_pk_bf16_f32 v{dst}, {src}, {src}\nv_and_b32 v{dst}, 0xffff0000, v{dst}")
    def ln_stats():
        for k in range(8):
            A(f"v_lshlrev_b32 v{U+2*k}, 16, v{XS+k}\nv_and_b32 v{U+2*k+1}, 0xffff0000, v{XS+k}")
        A(f"v_pk_add_f32 {vr(T,2)}, {vr(U,2)}, {vr(U+2,2)}\nv_pk_add_f32 {vr(T+2,2)}, {vr(U+4,2)}, {vr(U+6,2)}")
        A(f"v_pk_add_f32 {vr(T+4,2)}, {vr(U+8,2)}, {vr(U+10,2)}\nv_pk_add_f32 {vr(T+6,2)}, {vr(U+12,2)}, {vr(U+14,2)}")
        A(f"v_pk_add_f32 {vr(T,2)}, {vr(T,2)}, {vr(T+2,2)}\nv_pk_add_f32 {vr(T+4,2)}, {vr(T+4,2)}, {vr(T+6,2)}")
        A(f"v_pk_add_f32 {vr(T,2)}, {vr(T,2)}, {vr(T+4,2)}\nv_add_f32 v{T}, v{T}, v{T+1}")
        wave_sum(T)
        A(f"v_mul_f32 v{T}, 0x3a800000, v{T}\nv_readlane_b32 s{s2}, v{T}, 63")
        for k in range(8):
            A(f"v_pk_add_f32 {vr(U+2*k,2)}, {vr(U+2*k,2)}, s[{s2}:{s2+1}] op_sel_hi:[1,0] neg_lo:[0,1] neg_hi:[0,1]")
        A(f"v_pk_mul_f32 {vr(T,2)}, {vr(U,2)}, {vr(U,2)}\nv_pk_mul_f32 {vr(T+2,2)}, {vr(U+2,2)}, {vr(U+2,2)}")
        for k in range(2, 8):
            t = T + 2 * (k & 1)
            A(f"v_pk_fma_f32 {vr(t,2)}, {vr(U+2*k,2)}, {vr(U+2*k,2)}, {vr(t,2)}")
        A(f"v_pk_add_f32 {vr(T,2)}, {vr(T,2)}, {vr(T+2,2)}\nv_add_f32 v{T}, v{T}, v{T+1}")
        rbf(MB, f"s{s2}")
        wave_sum(T)
        A(f"v_mul_f32 v{T}, 0x3a800000, v{T}\nv_readlane_b32 s{s2}, v{T}, 63")
        rbf(SD, f"s{s2}"); A(f"v_add_f32 v{SD}, 0x3727c5ac, v{SD}"); rbf(SD, f"v{SD}"); A(f"v_sqrt_f32 v{SD}, v{SD}")
        A("s_waitcnt lgkmcnt(0)")
        get_tag(False)
        A(f"v_mov_b32 v{T+4}, v{MB}\nv_mov_b32 v{T+3}, 0\nv_mov_b32 v{T+7}, 1")
        rbf(T+5, f"v{SD}"); A(f"v_rcp_f32 v{T+6}, v{T+5}\ns_nop 0")
        A(f"ds_write_b128 v{T+3}, {vr(T+4,4)} offset:{L_S}")
        if not sflag: A("s_waitcnt lgkmcnt(0)\ns_barrier")
    def ln_own(lbl):
        A(f"v_mov_b32 v{T+3}, 0\nv_lshlrev_b32 v{U}, 16, v{XO}")
        if not sflag: A("s_barrier")
        A(f"{lbl}:\nds_read_b128 {vr(T+4,4)}, v{T+3} offset:{L_S}\ns_waitcnt lgkmcnt(0)")
        if sflag: A(f"v_cmp_eq_u32 vcc, 0, v{T+7}\ns_cbranch_vccnz {lbl}")
        A(f"v_sub_f32 v{U}, v{U}, v{T+4}")
        rbf(U, f"v{U}")
        A(f"v_mul_f32 v{T}, v{U}, v{T+6}\nv_fma_f32 v{T+1}, -v{T}, v{T+5}, v{U}\nv_fma_f32 v{T}, v{T+1}, v{T+6}, v{T}")
        A(f"v_cvt_pk_bf16_f32 v{XD}, v{T}, v{T}")
    def af_build(j):
        for r in range(4): A(f"v_and_b32_dpp v{AF+4*(j&1)+r}, v{XD}, v{M+r} row_newbcast:{j} row_mask:0xf bank_mask:0xf")
    def af(j): return vr(AF+4*(j&1), 4)
    def get_tag(bytes_=True):
        A(f"s_add_u32 s{sE}, s{sE}, 1\ns_mul_i32 s{sTAG}, s{sE}, 0x01010101")
        if bytes_:
            A(f"v_mov_b32 v{TB}, s{sTAG}\nv_lshrrev_b32 v{TB+1}, 8, v{TB}\nv_lshrrev_b32 v{TB+2}, 16, v{TB}\nv_lshrrev_b32 v{TB+3}, 24, v{TB}")
            A(f"s_mov_b32 s{sMSK}, 0xffffff00")
        A(f"s_mov_b32 s{sCNT}, {spin}\ns_mov_b32 s{sDEL}, {DELTA}")
        A(f"s_getreg_b32 s{sTX}, hwreg(HW_REG_XCC_ID, 0, 3)\ns_add_u32 s{sTX}, s{sTX}, 1\ns_lshl_b32 s{sTX}, s{sTX}, 28\ns_xor_b32 s{sTL}, s{sTAG}, s{sTX}")
    def amp_pub():
        if not amp: return
        A(f"s_lshl_b32 s{s2}, s2, 3\ns_add_u32 s{s2}, s{s2}, {TSBASE}\nv_mov_b32 v{T}, s80\nv_mov_b32 v{T+1}, s{sTAG}\nv_mov_b32 v{T+2}, s{s2}")
        A(f"s_mov_b64 exec, 1\nbuffer_store_dwordx2 {vr(T,2)}, v{T+2}, {srd(SRD_WS)}, 0 offen sc1\ns_mov_b64 exec, -1\ns_nop 1")
    def x_stats_loads():
        build_srd(SRD_X, 4, 2048)
        A(f"v_lshlrev_b32 v{T+2}, 5, v0")
        A(f"buffer_load_dwordx4 {vr(XS,4)}, v{T+2}, {srd(SRD_X)}, 0 offen\nbuffer_load_dwordx4 {vr(XS+4,4)}, v{T+2}, {srd(SRD_X)}, 0 offen offset:16")
    def x_own_load(J):
        build_srd(SRD_X, 4, 2048)
        A(f"s_lshl_b32 s{s1}, s{s0}, 1\nv_and_b32 v{T}, {(J-1)*16}, v{CH}\nv_lshlrev_b32 v{T}, 2, v{T}\nv_lshl_add_u32 v{T}, v{SL}, 1, v{T}\nv_add_u32 v{VXO}, s{s1}, v{T}")
        A(f"buffer_load_ushort v{XO}, v{VXO}, {srd(SRD_X)}, 0 offen")
    def partial_store_lds():
        A("s_mov_b32 exec_hi, 0")
        A(f"ds_write_b128 v{VRW}, {vr(ACC,4)} offset:{L_R}")
        A("s_mov_b32 exec_hi, -1")
    def reduce8(dst=None, tag=None):
        dst = PB if dst is None else dst; tag = sTL if tag is None else tag
        for k in range(8): A(f"ds_read_b64 {vr(U+2*k,2)}, v{T+4} offset:{L_R+k*512}")
        A(f"v_mov_b32 v{dst+2}, s{tag}\nv_mov_b32 v{dst+3}, s{tag}")
        A(f"s_waitcnt lgkmcnt({0 if full else 4})")
        A(f"v_pk_add_f32 {vr(U,2)}, {vr(U,2)}, {vr(U+2,2)}\nv_pk_add_f32 {vr(U+4,2)}, {vr(U+4,2)}, {vr(U+6,2)}")
        A("s_waitcnt lgkmcnt(0)")
        A(f"v_pk_add_f32 {vr(U+8,2)}, {vr(U+8,2)}, {vr(U+10,2)}\nv_pk_add_f32 {vr(U+12,2)}, {vr(U+12,2)}, {vr(U+14,2)}")
        A(f"v_pk_add_f32 {vr(U,2)}, {vr(U,2)}, {vr(U+4,2)}\nv_pk_add_f32 {vr(U+8,2)}, {vr(U+8,2)}, {vr(U+12,2)}")
        A(f"v_pk_add_f32 {vr(dst,2)}, {vr(U,2)}, {vr(U+8,2)}")
    def pub_local(data, addr, p=""):
        A(f"buffer_store_dwordx4 {vr(data,4)}, v{addr}, {srd(SRD_WS)}, 0 offen {p}")
    def pub_global(data, addr):
        A(f"buffer_store_dwordx4 {vr(data,4)}, v{addr}, {srd(SRD_WS)}, s{sDEL} offen sc1")
    def poll_init():
        A(f"s_mov_b32 s{sPATH}, 0\ns_mov_b32 s{sRND}, 0\ns_mov_b32 s{sCUR}, s{sTL}")
    def poll_tail(lbl, late=None, sleep=0):
        if sleep: A(f"s_sleep {sleep}")
        A(f"s_add_u32 s{sRND}, s{sRND}, 1\ns_cmp_lt_u32 s{sRND}, {limit}\ns_cbranch_scc1 {lbl}")
        if late:
            A(f"s_cmp_lg_u32 s{sRND}, {limit}\ns_cbranch_scc1 {lbl}_sw")
            late()
            A(f"{lbl}_sw:")
        A(f"s_xor_b32 s{sPATH}, s{sPATH}, s{sDEL}\ns_xor_b32 s{sCUR}, s{sCUR}, s{sTX}")
        A(f"s_sub_u32 s{sCNT}, s{sCNT}, 1\ns_cbranch_scc0 {lbl}\ns_mov_b32 s{sCNT}, 0")
    def w2_addr(srow):
        A(f"s_lshl_b32 s{s2}, s{srow}, 11\ns_lshl_b32 s{s3}, s3, 8\ns_add_u32 s{s2}, s{s2}, s{s3}")
        A(f"v_lshlrev_b32 v{T}, 11, v{SL}\nv_add3_u32 v{VW2}, v{T}, v{CH}, s{s2}\ns_mov_b32 s{sO2}, 0")
    cnt = {"w1": 0, "w2": 0}
    def w1_load(step):
        j = cnt["w1"]; cnt["w1"] += 1
        A(f"buffer_load_dwordx4 {vr(W1+4*(j&7),4)}, v{VW1}, {srd(SRD_W1)}, s{sO1} offen {pol}")
        if j < 15: A(f"s_add_u32 s{sO1}, s{sO1}, s{sST}")
    def w2_load(n=1):
        for _ in range(n):
            j = cnt["w2"]; cnt["w2"] += 1
            A(f"buffer_load_dwordx4 {vr(W2+4*j,4)}, v{VW2}, {srd(SRD_W2)}, s{sO2} offen {pol}\ns_add_u32 s{sO2}, s{sO2}, 8192")
    def pp_addr():
        if fullline:
            A(f"v_bfe_u32 v{T}, v0, 2, 2\nv_lshlrev_b32 v{T}, 15, v{T}\nv_and_b32 v{T+1}, 3, v0\nv_lshlrev_b32 v{T+1}, 5, v{T+1}\nv_and_b32 v{T+2}, 16, v0")
            A(f"v_add3_u32 v{T}, v{T}, v{T+1}, v{T+2}")
            A(f"s_lshl_b32 s{s2}, s3, 17\ns_lshl_b32 s{s3}, s{sPROD}, 7\ns_add_u32 s{s2}, s{s2}, s{s3}\ns_add_u32 s{s2}, s{s2}, {PBASE}")
            A(f"v_add_u32 v{VPP}, s{s2}, v{T}")
            return
        A(f"v_bfe_u32 v{T}, v0, 1, 3\nv_lshlrev_b32 v{T}, 14, v{T}\nv_and_b32 v{T+1}, 1, v0\nv_lshlrev_b32 v{T+1}, 5, v{T+1}\nv_and_b32 v{T+2}, 16, v0")
        A(f"v_add3_u32 v{T}, v{T}, v{T+1}, v{T+2}")
        A(f"s_lshl_b32 s{s2}, s3, 17\ns_lshl_b32 s{s3}, s{sPROD}, 6\ns_add_u32 s{s2}, s{s2}, s{s3}\ns_add_u32 s{s2}, s{s2}, {PBASE}")
        A(f"v_add_u32 v{VPP}, s{s2}, v{T}")
    def stage3(n, nearly, younger=0):
        assert cnt["w2"] == n
        A(f"ds_read_b32 v{XD}, v{VOR} offset:{L_O}")
        A("s_waitcnt lgkmcnt(0)")
        af_build(0)
        for j in range(n):
            if j < n - 1: af_build(j + 1)
            if j >= nearly: A(f"s_waitcnt vmcnt({n-1-j+younger})")
            A(f"v_mfma_f32_16x16x32_bf16 {vr(ACC,4)}, {af(j)}, {vr(W2+4*j,4)}, {vr(ACC,4) if j else 0}")
        A("s_mov_b32 exec_hi, 0")
        for r in range(4): A(f"v_bfi_b32 v{T+r}, s{sMSK}, v{ACC+r}, v{TB+r}")
        A(f"buffer_store_dwordx4 {vr(T,4)}, v{VPP}, {srd(SRD_WS)}, 0 offen {pst}")
        if dupP: A(f"buffer_store_dwordx4 {vr(T,4)}, v{VPP}, {srd(SRD_WS)}, s{sDEL} offen {pst}")
        A("s_mov_b32 exec_hi, -1")
    def write_stamps(n=10):
        if not debug: return
        A("s_waitcnt lgkmcnt(0)")
        for k in range(n): A(f"v_writelane_b32 v{T+4}, s{4+2*k}, {k}")
        A(f"v_writelane_b32 v{T+4}, s80, 15")
        A(f"s_lshl_b32 s{s2}, s2, 4\ns_add_u32 s{s2}, s{s2}, s3\ns_lshl_b32 s{s2}, s{s2}, 6\ns_add_u32 s{s2}, s{s2}, {TSBASE}")
        A(f"v_lshlrev_b32 v{T+5}, 2, v0\nv_add_u32 v{T+5}, s{s2}, v{T+5}")
        A("s_mov_b32 exec_lo, 0xffff\ns_mov_b32 exec_hi, 0")
        A(f"buffer_store_dword v{T+4}, v{T+5}, {srd(SRD_WS)}, 0 offen")
        A("s_mov_b64 exec, -1")
    def check4(regs, ok):
        A(f"v_cmp_ne_u32 vcc, s{sCUR}, v{regs[0]}\nv_cmp_ne_u32 s[{C0}:{C0+1}], s{sCUR}, v{regs[1]}\nv_cmp_ne_u32 s[{C1}:{C1+1}], s{sCUR}, v{regs[2]}\nv_cmp_ne_u32 s[{C2}:{C2+1}], s{sCUR}, v{regs[3]}")
        A(f"s_or_b64 s[{C0}:{C0+1}], s[{C0}:{C0+1}], vcc\ns_or_b64 s[{C1}:{C1+1}], s[{C1}:{C1+1}], s[{C2}:{C2+1}]\ns_or_b64 s[{C0}:{C0+1}], s[{C0}:{C0+1}], s[{C1}:{C1+1}]\ns_cbranch_scc0 {ok}")
    def gemv1(order, sched, win0, extra, step, n=16, other=None):
        pos_of = [p for p, e in enumerate(order) if e == "a"]
        seq = list(extra)
        st = {"issued": win0}
        def issue():
            e = order[st["issued"]]
            if e == "a": w1_load(step)
            elif other: other()
            else: w2_load()
            seq.append(st["issued"]); st["issued"] += 1
        af_build(0)
        for j in range(n):
            if j < n - 1: af_build(j + 1)
            pos = pos_of[j]
            while st["issued"] <= min(pos + sched[pos] - 2, len(order) - 1) or pos not in seq:
                A(f"s_waitcnt vmcnt({max(sched[st['issued'] - 1] - 1, 0)})"); issue()
            A(f"s_waitcnt vmcnt({len(seq)-1-seq.index(pos)})")
            A(f"v_mfma_f32_16x16x32_bf16 {vr(ACC,4)}, {af(j)}, {vr(W1+4*(j&7),4)}, {vr(ACC,4) if j else 0}")
            while st["issued"] < len(order) and st["issued"] - (pos + 1) < sched[pos + 1]:
                issue()
        return st["issued"]

    cnt["w1"] = cnt["w2"] = 0
    for n in range(w0): w1_load(0)
    A(f"s_load_dword s{sE}, s[26:27], 0")
    A(f"{isB}\ns_cbranch_scc1 L_roleB\ns_branch L_roleA")
    A("L_roleS:")
    if sprio: A(f"s_setprio {sprio}")
    pre_srd(SRD_X, 2048)
    A(f"v_lshlrev_b32 v{T+2}, 5, v0")
    A("s_waitcnt lgkmcnt(0)")
    fin_srd(SRD_X, 4)
    A(f"buffer_load_dwordx4 {vr(XS,4)}, v{T+2}, {srd(SRD_X)}, 0 offen\nbuffer_load_dwordx4 {vr(XS+4,4)}, v{T+2}, {srd(SRD_X)}, 0 offen offset:16")
    A("s_branch L_roleS2")
    A("L_roleA:")
    x_own_load(8)
    for n in range(w0, a_w): w1_load(0)
    seqA = list(range(w0)) + ["x"] + list(range(w0, a_w))
    build_srd(SRD_WS, 26, 268435456)
    masks(8)
    V.next = R0
    KA = QF; VA = QF + 4; KR = QF + 8; VR_ = v("VR"); QR = v("QR"); PW = v("PW"); VQP = XF; VOP = v("VOP"); HM = v("HM"); VST = v("VST")
    KF = W1; QF2 = W1 + 16; VF = XS; ONE = PB; LA = AF + 4
    hi = V.next
    SRD_K, SRD_V = 36, 40
    build_srd(SRD_K, 6, 67108864); build_srd(SRD_V, 8, 67108864); build_srd(SRD_W2, 12, 8388608)
    stamp(0)
    A(f"s_lshl_b32 s{s2}, s{sG}, 24\ns_lshl_b32 s{s3}, s{sS}, 15\ns_add_u32 s{s2}, s{s2}, s{s3}\ns_lshl_b32 s{sF}, s3, 12\ns_add_u32 s{s2}, s{s2}, s{sF}\ns_add_u32 s{s2}, s{s2}, {61440*256}")
    A(f"v_lshlrev_b32 v{T+2}, 8, v{SL}\nv_add_u32 v{T+2}, s{s2}, v{T+2}")
    A(f"v_lshlrev_b32 v{T+3}, 4, v{SL}\nv_xor_b32 v{T+3}, v{T+3}, v{CH}")
    for t in range(4): A(f"v_xor_b32 v{T+4}, {64*t}, v{T+3}\nv_add_u32 v{KA+t}, v{T+4}, v{T+2}")
    A(f"v_lshlrev_b32 v{T+4}, 5, v{SL}\nv_xor_b32 v{T+4}, v{T+4}, v{CH}\nv_add_u32 v{VA}, v{T+4}, v{T+2}")
    A(f"v_xor_b32 v{T+4}, 128, v{T+4}\nv_add_u32 v{VA+1}, v{T+4}, v{T+2}")
    A(f"s_add_u32 m0, s{sF}, {L_K}")
    A(f"v_lshl_add_u32 v{T+4}, v{CH}, 4, s{sF}")
    for ks in range(4): A(f"v_xor_b32 v{T+5}, {64*ks}, v{T+3}\nv_add_u32 v{KR+ks}, v{T+5}, v{T+4}")
    A(f"v_bfe_u32 v{T+4}, v0, 2, 2\nv_lshl_add_u32 v{T+5}, v{SL}, 3, v{T+4}\nv_lshlrev_b32 v{T+5}, 8, v{T+5}")
    A(f"v_and_b32 v{T+6}, 1, v{SL}\nv_lshl_or_b32 v{T+4}, v{T+6}, 2, v{T+4}\nv_xor_b32 v{T+4}, s3, v{T+4}\nv_lshlrev_b32 v{T+4}, 5, v{T+4}")
    A(f"v_and_b32 v{T+6}, 3, v0\nv_lshlrev_b32 v{T+6}, 3, v{T+6}\nv_add3_u32 v{VR_}, v{T+4}, v{T+5}, v{T+6}\nv_add_u32 v{VR_}, {L_V}, v{VR_}")
    A(f"v_and_b32 v{T+4}, 7, v0\nv_lshlrev_b32 v{HM}, 2, v{T+4}\nv_mul_u32_u24 v{T+4}, 288, v{T+4}\nv_lshl_add_u32 v{QR}, v{SL}, 4, v{T+4}")
    A(f"s_lshl_b32 s{s2}, s3, 5\nv_lshl_add_u32 v{PW}, v{SL}, 3, v{T+4}\nv_add_u32 v{PW}, s{s2}, v{PW}")
    A(f"s_lshl_b32 s{s2}, s{sG}, 15\ns_add_u32 s{s2}, s{s2}, s{sF}\ns_add_u32 s{s2}, s{s2}, {QBASE}\nv_lshl_add_u32 v{VQP}, v0, 4, s{s2}")
    A(f"s_lshl_b32 s{s2}, s{sG}, 17\ns_lshr_b32 s{s3}, s3, 1\ns_lshl_b32 s{s3}, s{s3}, 12\ns_add_u32 s{s2}, s{s2}, s{s3}")
    A(f"s_lshl_b32 s{s3}, s{sS}, 7\ns_add_u32 s{s2}, s{s2}, s{s3}\ns_and_b32 s{s3}, s3, 1\ns_lshl_b32 s{s3}, s{s3}, 6\ns_add_u32 s{s2}, s{s2}, s{s3}\ns_add_u32 s{s2}, s{s2}, {OBASE}")
    A(f"v_lshlrev_b32 v{T+4}, 12, v{HM}\nv_lshlrev_b32 v{T+5}, 4, v{SL}\nv_add3_u32 v{VOP}, v{T+4}, v{T+5}, s{s2}")
    A(f"s_lshl_b32 s{sPROD}, s{sG}, 5\ns_add_u32 s{sPROD}, s{sPROD}, s{sS}\ns_lshl_b32 s{s0}, s{sPROD}, 5")
    w2_addr(s0); pp_addr()
    A(f"s_lshl_b32 s{s2}, s3, 9\nv_lshlrev_b32 v{T}, 2, v{HM}\nv_lshl_add_u32 v{T}, v{SL}, 7, v{T}\nv_add_u32 v{VST}, s{s2}, v{T}")
    for r in range(4): A(f"v_mov_b32 v{ONE+r}, 0x3f803f80")
    A(f"v_mov_b32 v{T}, 0xff800000\nds_write_b32 v{HM}, v{T} offset:{L_M}")
    A("s_waitcnt lgkmcnt(0)")
    get_tag()
    poll_init()
    if sflag: A("s_barrier")
    na = a_w
    for n in range(adv):
        A(f"s_waitcnt vmcnt({len(seqA)-1-seqA.index(n)})"); w1_load(0); seqA.append(na); na += 1
    A(f"s_waitcnt vmcnt({len(seqA)-1-seqA.index('x')})")
    stamp(1)
    ln_own("LA_ln")
    stamp(2)
    kv = {"K": 0, "V": 0}
    def issue(e):
        if e == "W": w2_load(); return
        t = kv[e]; kv[e] += 1
        if e == "V" and t == 0: A(f"s_add_u32 m0, s{sF}, {L_V}")
        if e == "K": A(f"buffer_load_dwordx4 v{KA+t}, {srd(SRD_K)}, 0 offen offset:{t*1024} {pol} lds")
        else: A(f"buffer_load_dwordx4 v{VA+(t>>1)}, {srd(SRD_V)}, 0 offen offset:{t*1024} {pol} lds")
    allo = a_pre + a_mid + a_post
    assert allo.count("K") == 4 and allo.count("V") == 4 and "K" not in a_post and allo.index("V") > allo.rindex("K")
    pre = list(a_pre); npre = len(pre)
    sched = [max(min(a_w, 8 + npre - p), 1) for p in range(9)] + [1] * 16
    issued = gemv1(["a"] * 8 + ["w"] * npre, sched, na, seqA, 0, 8, lambda: issue(pre.pop(0))) - 8
    assert issued == npre
    stamp(3)
    partial_store_lds()
    A("s_waitcnt lgkmcnt(0)\ns_barrier")
    nbar = 0
    if a_pubbar: A("s_barrier")
    stamp(4)
    for n, e in enumerate(a_mid):
        if npre + n >= a_w2: A(f"s_waitcnt vmcnt({a_w2-1})")
        issue(e)
    A(f"s_waitcnt vmcnt({a_pollwait})")
    def q_loads():
        for u in range(4): A(f"buffer_load_dwordx4 {vr(G+4*u,4)}, v{VQP}, {srd(SRD_WS)}, s{sPATH} offen offset:{u*1024} sc1")
    if debug and probe == "qr": A("s_waitcnt lgkmcnt(0)\ns_add_u32 s4, s80, 0")
    q_loads()
    if a_qbar: A("s_barrier"); nbar += 1
    for e in a_post: issue(e)
    A(f"s_waitcnt vmcnt({len(a_post)})")
    vyoung = len(a_post) - 1 - a_post.rindex("V") if "V" in a_post else 63
    for ks in range(4): A(f"ds_read_b128 {vr(KF+4*ks,4)}, v{KR+ks} offset:{L_K}")
    check4([G+2, G+6, G+10, G+14], "LA_qok")
    if debug and probe == "qr": A("s_add_u32 s4, s80, 100")
    A("LA_qpoll:")
    q_loads()
    A("s_waitcnt vmcnt(0)")
    check4([G+2, G+6, G+10, G+14], "LA_qok")
    def late_q():
        A(f"v_lshlrev_b32 v{T+4}, 3, v0")
        reduce8(T, sTAG)
        A(f"s_lshl_b32 s{s0}, s{sG}, 15\ns_and_b32 s{s1}, s{sS}, 7\ns_lshl_b32 s{s1}, s{s1}, 12\ns_add_u32 s{s0}, s{s0}, s{s1}\ns_lshr_b32 s{s1}, s{sS}, 3\ns_lshl_b32 s{s1}, s{s1}, 10\ns_add_u32 s{s0}, s{s0}, s{s1}\ns_add_u32 s{s0}, s{s0}, {QBASE}")
        A(f"v_lshl_add_u32 v{T+4}, v0, 4, s{s0}")
        pub_global(T, T+4)
    poll_tail("LA_qpoll", late_q, qsleep)
    A("LA_qok:")
    stamp(5)
    A(f"v_pk_add_f32 {vr(G,2)}, {vr(G,2)}, {vr(G+4,2)}\nv_pk_add_f32 {vr(G+8,2)}, {vr(G+8,2)}, {vr(G+12,2)}")
    A(f"s_mul_i32 s{s2}, s3, 288\nv_lshl_add_u32 v{T}, v0, 2, s{s2}")
    A(f"v_pk_add_f32 {vr(G,2)}, {vr(G,2)}, {vr(G+8,2)}\nv_cvt_pk_bf16_f32 v{G}, v{G}, v{G+1}")
    A(f"ds_write_b32 v{T}, v{G} offset:{L_Q}")
    w2_load(a_pts[0])
    A("s_waitcnt lgkmcnt(0)\ns_barrier"); nbar += 1
    for ks in range(4): A(f"ds_read_b128 {vr(QF2+4*ks,4)}, v{QR} offset:{L_Q+64*ks}")
    for ks in range(4):
        A(f"s_waitcnt lgkmcnt({0 if full else 3-ks})")
        A(f"v_mfma_f32_16x16x32_bf16 {vr(ACC,4)}, {vr(KF+4*ks,4)}, {vr(QF2+4*ks,4)}, {vr(ACC,4) if ks else 0}")
    A(f"s_mov_b32 s{s2}, 0x3db504f3")
    A(f"v_cvt_pk_bf16_f32 v{T}, v{ACC}, v{ACC+1}\nv_cvt_pk_bf16_f32 v{T+1}, v{ACC+2}, v{ACC+3}")
    A(f"v_lshlrev_b32 v{U}, 16, v{T}\nv_and_b32 v{U+1}, 0xffff0000, v{T}\nv_lshlrev_b32 v{U+2}, 16, v{T+1}\nv_and_b32 v{U+3}, 0xffff0000, v{T+1}")
    A(f"v_pk_mul_f32 {vr(U,2)}, {vr(U,2)}, s[{s2}:{s2+1}] op_sel_hi:[1,0]\nv_pk_mul_f32 {vr(U+2,2)}, {vr(U+2,2)}, s[{s2}:{s2+1}] op_sel_hi:[1,0]")
    A(f"v_cvt_pk_bf16_f32 v{T}, v{U}, v{U+1}\nv_cvt_pk_bf16_f32 v{T+1}, v{U+2}, v{U+3}")
    A(f"v_lshlrev_b32 v{U}, 16, v{T}\nv_and_b32 v{U+1}, 0xffff0000, v{T}\nv_lshlrev_b32 v{U+2}, 16, v{T+1}\nv_and_b32 v{U+3}, 0xffff0000, v{T+1}")
    A(f"v_max3_f32 v{T}, v{U}, v{U+1}, v{U+2}\nv_max_f32 v{T}, v{T}, v{U+3}")
    A(f"ds_max_f32 v{HM}, v{T} offset:{L_M}")
    w2_load(a_pts[1])
    A("s_waitcnt lgkmcnt(0)\ns_barrier"); nbar += 1
    A(f"ds_read_b32 v{MB}, v{HM} offset:{L_M}")
    A(f"s_mov_b32 s{s2}, 0x3fb8aa3b")
    A("s_waitcnt lgkmcnt(0)")
    A(f"v_pk_add_f32 {vr(U,2)}, {vr(U,2)}, {vr(MB,2)} op_sel_hi:[1,0] neg_lo:[0,1] neg_hi:[0,1]\nv_pk_add_f32 {vr(U+2,2)}, {vr(U+2,2)}, {vr(MB,2)} op_sel_hi:[1,0] neg_lo:[0,1] neg_hi:[0,1]")
    A(f"v_pk_mul_f32 {vr(U,2)}, {vr(U,2)}, s[{s2}:{s2+1}] op_sel_hi:[1,0]\nv_pk_mul_f32 {vr(U+2,2)}, {vr(U+2,2)}, s[{s2}:{s2+1}] op_sel_hi:[1,0]")
    for r in range(4): A(f"v_exp_f32 v{U+r}, v{U+r}")
    A(f"v_cvt_pk_bf16_f32 v{T}, v{U}, v{U+1}\nv_cvt_pk_bf16_f32 v{T+1}, v{U+2}, v{U+3}")
    A(f"ds_write_b64 v{PW}, {vr(T,2)} offset:{L_P}")
    A(f"v_mul_f32 v{MB}, s{s2}, v{MB}")
    A("s_waitcnt lgkmcnt(0)\ns_barrier"); nbar += 1
    for ks in range(4): A(f"ds_read_b128 {vr(QF2+4*ks,4)}, v{QR} offset:{L_P+64*ks}")
    for ks in range(4):
        A(f"s_waitcnt lgkmcnt({0 if full else 3-ks})")
        A(f"v_mfma_f32_16x16x32_bf16 {vr(LA,4)}, {vr(ONE,4)}, {vr(QF2+4*ks,4)}, {vr(LA,4) if ks else 0}")
    if vyoung < 63:
        A(f"s_waitcnt vmcnt({vyoung + sum(a_pts)})\ns_barrier"); nbar += 1
    for ks in range(4):
        for hh in range(2): A(f"ds_read_b64_tr_b16 {vr(VF+4*ks+2*hh,2)}, v{VR_} offset:{ks*8192+hh*1024}")
    OG = QF + 12
    A(f"v_rcp_f32 v{RI}, v{LA}\nv_log_f32 v{OG+2}, v{LA}\nv_mov_b32 v{OG+3}, s{sTL}")
    A(f"v_add_f32 v{OG+2}, v{OG+2}, v{MB}")
    for ks in range(4):
        A(f"s_waitcnt lgkmcnt({0 if full else 6-2*ks})")
        A(f"v_mfma_f32_16x16x32_bf16 {vr(ACC,4)}, {vr(VF+4*ks,4)}, {vr(QF2+4*ks,4)}, {vr(ACC,4) if ks else 0}")
    A("s_mov_b32 exec_lo, 0x00ff00ff\ns_mov_b32 exec_hi, 0x00ff00ff")
    A(f"v_pk_mul_f32 {vr(ACC,2)}, {vr(ACC,2)}, {vr(RI,2)} op_sel_hi:[1,0]\nv_pk_mul_f32 {vr(ACC+2,2)}, {vr(ACC+2,2)}, {vr(RI,2)} op_sel_hi:[1,0]")
    A(f"v_cvt_pk_bf16_f32 v{OG}, v{ACC}, v{ACC+1}\nv_cvt_pk_bf16_f32 v{OG+1}, v{ACC+2}, v{ACC+3}")
    A(f"ds_write_b128 v{VST}, {vr(OG,4)} offset:{L_R}")
    pub_local(OG, VOP, opol)
    if dupO: A(f"buffer_store_dwordx4 {vr(OG,4)}, v{VOP}, {srd(SRD_WS)}, s{sDEL} offen")
    A("s_mov_b64 exec, -1")
    A("s_waitcnt lgkmcnt(0)\ns_barrier"); nbar += 1
    stamp(6)
    n0 = cnt["w2"]
    while cnt["w2"] < 8:
        if cnt["w2"] - n0 >= a_ww: A(f"s_waitcnt vmcnt({a_ww-1})")
        w2_load()
    stamp(7)
    A("s_barrier")
    stamp(8)
    stage3(8, 0)
    stamp(9)
    write_stamps()
    A("s_endpgm")

    A("L_roleS2:")
    if sflag: A(f"v_mov_b32 v{T+3}, 0\nds_write_b32 v{T+3}, v{T+3} offset:{L_S+12}\ns_waitcnt lgkmcnt(0)\ns_barrier")
    A(f"s_load_dword s{sE}, s[26:27], 0")
    build_srd(SRD_WS, 26, 268435456)
    A(f"{isB}\ns_cbranch_scc1 L_roleSB")
    VQS = R0; VOG = R0 + 1
    A(f"s_lshl_b32 s{s0}, s{sG}, 15\ns_and_b32 s{s1}, s{sS}, 7\ns_lshl_b32 s{s1}, s{s1}, 12\ns_add_u32 s{s0}, s{s0}, s{s1}\ns_lshr_b32 s{s1}, s{sS}, 3\ns_lshl_b32 s{s1}, s{s1}, 10\ns_add_u32 s{s0}, s{s0}, s{s1}\ns_add_u32 s{s0}, s{s0}, {QBASE}")
    A(f"v_lshl_add_u32 v{VQS}, v0, 4, s{s0}")
    A(f"s_lshl_b32 s{s0}, s{sG}, 17\ns_lshl_b32 s{s1}, s{sS}, 12\ns_add_u32 s{s0}, s{s0}, s{s1}\ns_add_u32 s{s0}, s{s0}, {OBASE}\nv_lshl_add_u32 v{VOG}, v0, 4, s{s0}")
    A("s_waitcnt vmcnt(0)")
    ln_stats()
    if tq: A(f"buffer_load_dwordx4 {vr(G,4)}, v{VQS}, {srd(SRD_WS)}, 0 offen")
    for u in range(4 if to else 0): A(f"buffer_load_dwordx4 {vr(G+8,4)}, v{VOG}, {srd(SRD_WS)}, 0 offen offset:{u*1024}")
    if tlb:
        A(f"s_lshl_b32 s{s0}, s{sG}, 24\ns_lshl_b32 s{s1}, s{sS}, 15\ns_add_u32 s{s0}, s{s0}, s{s1}\ns_add_u32 s{s0}, s{s0}, {61440*256}\nv_mov_b32 v{T}, s{s0}")
        A(f"s_lshl_b32 s{s0}, s{sG}, 21\ns_lshl_b32 s{s1}, s{sS}, 16\ns_add_u32 s{s0}, s{s0}, s{s1}\nv_mov_b32 v{T+1}, s{s0}\ns_mov_b64 exec, 1")
        A(f"global_load_dword v{G+12}, v{T}, s[6:7] {pol}\nglobal_load_dword v{G+13}, v{T}, s[8:9] {pol}\nglobal_load_dword v{G+14}, v{T+1}, s[12:13] {pol}\ns_mov_b64 exec, -1")
    A(f"v_lshlrev_b32 v{T+4}, 3, v0\nv_and_b32 v{VOR}, 0x70, v{CH}\nv_lshl_add_u32 v{VOR}, v{SL}, 2, v{VOR}")
    poll_init()
    amp_pub()
    A("s_waitcnt vmcnt(0)\ns_barrier")
    reduce8()
    pub_local(PB, VQS, qpol)
    if a_pubbar: A("s_barrier")
    stamp(4)
    for _ in range(nbar): A("s_barrier")
    A("LS_poll:")
    for u in range(4): A(f"buffer_load_dwordx4 {vr(G+4*u,4)}, v{VOG}, {srd(SRD_WS)}, s{sPATH} offen offset:{u*1024} sc1")
    A("s_waitcnt vmcnt(0)")
    check4([G+3, G+7, G+11, G+15], "LS_ok")
    def late_o():
        A(f"s_lshl_b32 s{s0}, s{sG}, 17\ns_lshl_b32 s{s1}, s{sS}, 7\ns_add_u32 s{s0}, s{s0}, s{s1}\ns_add_u32 s{s0}, s{s0}, {OBASE}")
        A(f"v_and_b32 v{T}, 7, v0\nv_lshlrev_b32 v{T}, 14, v{T}\nv_lshrrev_b32 v{T+1}, 3, v0\nv_lshlrev_b32 v{T+1}, 4, v{T+1}\nv_add3_u32 v{T}, v{T}, v{T+1}, s{s0}\nv_lshlrev_b32 v{T+2}, 4, v0")
        for u in range(4):
            A(f"ds_read_b128 {vr(W1+4*u,4)}, v{T+2} offset:{L_R+u*1024}\ns_waitcnt lgkmcnt(0)\nv_mov_b32 v{W1+4*u+3}, s{sTAG}")
            pub_global(W1+4*u, T)
            A(f"v_add_u32 v{T}, 4096, v{T}")
    poll_tail("LS_poll", late_o, osleep)
    A("LS_ok:")
    stamp(6)
    A(f"v_max3_f32 v{T}, v{G+2}, v{G+6}, v{G+10}\nv_max_f32 v{T}, v{T}, v{G+14}")
    for u in range(2):
        A(f"v_lshlrev_b32 v{U+4*u}, 16, v{G+4*u}\nv_and_b32 v{U+4*u+1}, 0xffff0000, v{G+4*u}")
    A(f"v_max_f32_dpp v{T}, v{T}, v{T} row_ror:8 row_mask:0xf bank_mask:0xf")
    for u in range(2):
        A(f"v_lshlrev_b32 v{U+4*u+2}, 16, v{G+4*u+1}")
    A(f"v_mov_b32 v{T+1}, v{T}")
    for u in range(2):
        A(f"v_and_b32 v{U+4*u+3}, 0xffff0000, v{G+4*u+1}")
    A(f"v_permlane16_swap_b32 v{T}, v{T+1}\nv_max_f32 v{T}, v{T}, v{T+1}\nv_mov_b32 v{T+1}, v{T}")
    for u in range(2, 4):
        A(f"v_lshlrev_b32 v{U+4*u}, 16, v{G+4*u}")
    A(f"v_permlane32_swap_b32 v{T}, v{T+1}\nv_max_f32 v{T}, v{T}, v{T+1}")
    for u in range(4): A(f"v_sub_f32 v{G+4*u+2}, v{G+4*u+2}, v{T}")
    for u in range(4): A(f"v_exp_f32 v{G+4*u+2}, v{G+4*u+2}")
    for u in range(2, 4):
        A(f"v_and_b32 v{U+4*u+1}, 0xffff0000, v{G+4*u}\nv_lshlrev_b32 v{U+4*u+2}, 16, v{G+4*u+1}\nv_and_b32 v{U+4*u+3}, 0xffff0000, v{G+4*u+1}")
    A(f"v_pk_mul_f32 {vr(ACC,2)}, {vr(U,2)}, {vr(G+2,2)} op_sel_hi:[1,0]\nv_pk_mul_f32 {vr(ACC+2,2)}, {vr(U+2,2)}, {vr(G+2,2)} op_sel_hi:[1,0]")
    A(f"v_add_f32 v{T}, v{G+2}, v{G+6}\nv_add_f32 v{T+1}, v{G+10}, v{G+14}")
    for u in range(1, 4):
        A(f"v_pk_fma_f32 {vr(ACC,2)}, {vr(U+4*u,2)}, {vr(G+4*u+2,2)}, {vr(ACC,2)} op_sel_hi:[1,0,1]\nv_pk_fma_f32 {vr(ACC+2,2)}, {vr(U+4*u+2,2)}, {vr(G+4*u+2,2)}, {vr(ACC+2,2)} op_sel_hi:[1,0,1]")
        if u == 1: A(f"v_add_f32 v{T}, v{T}, v{T+1}")
    A(f"v_add_f32_dpp v{T}, v{T}, v{T} row_ror:8 row_mask:0xf bank_mask:0xf")
    for r in range(4): A(f"v_add_f32_dpp v{ACC+r}, v{ACC+r}, v{ACC+r} row_ror:8 row_mask:0xf bank_mask:0xf")
    A(f"v_mov_b32 v{T+1}, v{T}")
    A(f"v_permlane16_swap_b32 v{T}, v{T+1}\nv_permlane16_swap_b32 v{ACC}, v{ACC+1}\nv_permlane16_swap_b32 v{ACC+2}, v{ACC+3}")
    A(f"v_add_f32 v{T}, v{T}, v{T+1}\nv_add_f32 v{ACC}, v{ACC}, v{ACC+1}\nv_add_f32 v{ACC+2}, v{ACC+2}, v{ACC+3}\nv_mov_b32 v{T+1}, v{T}")
    A(f"v_permlane32_swap_b32 v{ACC}, v{ACC+2}\nv_permlane32_swap_b32 v{T}, v{T+1}")
    A(f"v_add_f32 v{T}, v{T}, v{T+1}\nv_add_f32 v{ACC}, v{ACC}, v{ACC+2}\nv_rcp_f32 v{T}, v{T}")
    A(f"v_mul_f32 v{ACC}, v{ACC}, v{T}\nv_cvt_pk_bf16_f32 v{ACC}, v{ACC}, v{ACC}")
    A(f"ds_write_b32 v{VOR}, v{ACC} offset:{L_O}")
    A("s_waitcnt lgkmcnt(0)")
    stamp(7)
    A("s_barrier")
    stamp(9)
    write_stamps()
    if only == "A":
        A(f"s_cmp_lg_u32 s2, {apar}\ns_cbranch_scc1 LS_x\ns_sleep 100\nv_mov_b32 v{T+2}, 0\nv_mov_b32 v{T+3}, s{sE}\nbuffer_store_dword v{T+3}, v{T+2}, {srd(SRD_WS)}, 0 offen sc1\nLS_x:")
    A("s_endpgm")

    V.next = R0
    VXS = v("VXS"); VXG = v("VXG"); VFG = v("VFG")
    hi = max(hi, V.next)
    b_win = b_sched[0]
    A("L_roleB:")
    cnt["w1"] = w0; cnt["w2"] = 0
    x_own_load(16)
    assert b_pos >= b_win + adv and b_win >= w0
    for n in range(w0, b_win): w1_load(0)
    seqB = list(range(w0)) + ["x"] + list(range(w0, b_win)) + ["xf"]
    A(f"s_mul_i32 s{sPROD}, s{sG}, 28\ns_add_u32 s{sPROD}, s{sPROD}, s{sS}")
    build_srd(SRD_W2, 20, 7340032); build_srd(SRD_WS, 26, 268435456); build_srd(SRD_OUT, 22, 2048)
    stamp(0)
    A(f"s_lshl_b32 s{sF}, s{sG}, 4\ns_add_u32 s{sF}, s{sF}, s{sS}\ns_cmp_lt_u32 s{sS}, 16\ns_cselect_b32 s{sF}, s{sF}, -1")
    A(f"s_lshl_b32 s{s2}, s{sF}, 5\nv_lshrrev_b32 v{T+3}, 3, v{CH}\nv_add_u32 v{T+3}, s{s2}, v{T+3}")
    A(f"buffer_load_ushort v{XF}, v{T+3}, {srd(SRD_X)}, 0 offen")
    masks(8)
    A(f"s_lshl_b32 s{s0}, s{sPROD}, 5")
    w2_addr(s0)
    if fullline:
        A(f"s_lshl_b32 s{s2}, s3, 12\ns_lshr_b32 s{s3}, s{sF}, 1\ns_lshl_b32 s{s3}, s{s3}, 15\ns_add_u32 s{s2}, s{s2}, s{s3}\ns_and_b32 s{s3}, s{sF}, 1\ns_lshl_b32 s{s3}, s{s3}, 6\ns_add_u32 s{s2}, s{s2}, s{s3}\ns_add_u32 s{s2}, s{s2}, {PBASE}")
        A(f"v_lshrrev_b32 v{T}, 2, v0\nv_lshlrev_b32 v{T}, 7, v{T}\nv_and_b32 v{T+1}, 3, v0\nv_lshlrev_b32 v{T+1}, 4, v{T+1}\nv_add3_u32 v{VFG}, v{T}, v{T+1}, s{s2}")
    else:
        A(f"s_lshl_b32 s{s2}, s3, 11")
        A(f"s_lshl_b32 s{s3}, s{sF}, 14\ns_add_u32 s{s2}, s{s2}, s{s3}\ns_add_u32 s{s2}, s{s2}, {PBASE}\nv_lshl_add_u32 v{VFG}, v0, 4, s{s2}")
    A(f"s_add_u32 s{sPROD}, s{sPROD}, 128")
    pp_addr()
    A("s_waitcnt lgkmcnt(0)")
    get_tag()
    if sflag: A("s_barrier")
    nb = b_win
    for n in range(adv):
        A(f"s_waitcnt vmcnt({len(seqB)-1-seqB.index(n)})"); w1_load(0); seqB.append(nb); nb += 1
    A(f"s_waitcnt vmcnt({len(seqB)-1-seqB.index('x')})")
    stamp(1)
    ln_own("LB_ln")
    stamp(2)
    order = ["a"] * b_pos + ["w"] * b_early + ["a"] * (16 - b_pos)
    issued = gemv1(order, list(b_sched), nb, seqB, 0)
    assert issued == len(order)
    stamp(3)
    partial_store_lds()
    A("s_waitcnt lgkmcnt(0)\ns_barrier")
    if b_pubbar: A("s_barrier")
    n0 = cnt["w2"]
    while cnt["w2"] < 8:
        if cnt["w2"] - n0 >= b_ww: A(f"s_waitcnt vmcnt({b_ww-1})")
        w2_load()
    stamp(5)
    A("s_barrier")
    stamp(6)
    stage3(8, b_early)
    stamp(7)
    if only == "B": A("s_branch LB_done")
    A(f"s_cmp_eq_u32 s{sF}, -1\ns_cbranch_scc1 LB_done")
    A(f"s_cmp_lt_u32 s3, 7\ns_cselect_b32 s{s1}, {2048 if fullline else 1024}, 0")
    A(f"s_mov_b32 s{s2}, 0x0c0c0400\ns_mov_b32 s{s3}, 0x04000c0c")
    def f_ld(r):
        A(f"buffer_load_dwordx4 {vr(r,4)}, v{VFG}, {srd(SRD_WS)}, 0 offen {pld}")
        A(f"buffer_load_dwordx4 {vr(r+4,4)}, v{VFG}, {srd(SRD_WS)}, s{s1} offen {pld}")
    def f_chk(r, ok):
        for u in range(2):
            A(f"v_perm_b32 v{T+2*u}, v{r+4*u+1}, v{r+4*u}, s{s2}\nv_perm_b32 v{T+2*u+1}, v{r+4*u+3}, v{r+4*u+2}, s{s3}\nv_or_b32 v{T+2*u}, v{T+2*u}, v{T+2*u+1}")
        A(f"v_cmp_ne_u32 vcc, s{sTAG}, v{T}\nv_cmp_ne_u32 s[{C0}:{C0+1}], s{sTAG}, v{T+2}\ns_or_b64 s[{C0}:{C0+1}], s[{C0}:{C0+1}], vcc\ns_cbranch_scc0 {ok}")
    if fhint:
        m = ((1 << (4 * fhint)) - 1) << (4 * fhl)
        A(f"s_mov_b32 exec_lo, {hex(m & 0xffffffff)}\ns_mov_b32 exec_hi, {hex(m >> 32)}")
        A("LB_fh:")
        A(f"buffer_load_dwordx4 {vr(G,4)}, v{VFG}, {srd(SRD_WS)}, s{s1} offen {pld}\ns_waitcnt vmcnt(0)")
        A(f"v_perm_b32 v{T}, v{G+1}, v{G}, s{s2}\nv_perm_b32 v{T+1}, v{G+3}, v{G+2}, s{s3}\nv_or_b32 v{T}, v{T}, v{T+1}")
        A(f"v_cmp_ne_u32 vcc, s{sTAG}, v{T}\ns_cbranch_vccz LB_fh2")
        if fhsleep: A(f"s_sleep {fhsleep}")
        A(f"s_sub_u32 s{sCNT}, s{sCNT}, 1\ns_cbranch_scc0 LB_fh\ns_mov_b32 s{sCNT}, 0")
        A("LB_fh2:\ns_mov_b64 exec, -1")
        if fdelay: A(f"s_sleep {fdelay}")
    sets = [W1 + 8 * k for k in range(fnsets)]
    for k in range(fnsets):
        f_ld(sets[k])
        if k < fnsets - 1 and fstag: A(f"s_sleep {fstag}")
    if fsel:
        r = sets[0]
        A("LB_fsel:")
        A("s_waitcnt vmcnt(0)")
        for u in range(2):
            A(f"v_perm_b32 v{T+2*u}, v{r+4*u+1}, v{r+4*u}, s{s2}\nv_perm_b32 v{T+2*u+1}, v{r+4*u+3}, v{r+4*u+2}, s{s3}\nv_or_b32 v{T+2*u}, v{T+2*u}, v{T+2*u+1}")
        A(f"v_cmp_ne_u32 vcc, s{sTAG}, v{T}\nv_cmp_ne_u32 s[{C0}:{C0+1}], s{sTAG}, v{T+2}\ns_or_b64 s[{C1}:{C1+1}], s[{C0}:{C0+1}], vcc\ns_cbranch_scc0 LB_fok0")
        A(f"s_sub_u32 s{sCNT}, s{sCNT}, 1\ns_cbranch_scc1 LB_fok0")
        A(f"s_mov_b64 exec, vcc\ns_cbranch_execz LB_fs1\nbuffer_load_dwordx4 {vr(r,4)}, v{VFG}, {srd(SRD_WS)}, 0 offen {pld}\nLB_fs1:")
        A(f"s_mov_b64 exec, s[{C0}:{C0+1}]\ns_cbranch_execz LB_fs2\nbuffer_load_dwordx4 {vr(r+4,4)}, v{VFG}, {srd(SRD_WS)}, s{s1} offen {pld}\nLB_fs2:")
        A("s_mov_b64 exec, -1\ns_branch LB_fsel")
    A("LB_fpoll:")
    for k in range(fnsets):
        A(f"s_waitcnt vmcnt({2*(fnsets-1)})")
        f_chk(sets[k], f"LB_fok{k}")
        if k == fnsets - 1:
            if fsleep: A(f"s_sleep {fsleep}")
            A(f"s_sub_u32 s{sCNT}, s{sCNT}, 1\ns_cbranch_scc1 LB_fok{k}")
        f_ld(sets[k])
    A("s_branch LB_fpoll")
    for k in range(fnsets):
        A(f"LB_fok{k}:")
        for r in range(8): A(f"v_and_b32 v{G+r}, s{sMSK}, v{sets[k]+r}")
        if k < fnsets - 1: A("s_branch LB_fok")
    A("LB_fok:")
    stamp(8)
    A(f"s_cmp_eq_u32 s{s1}, 0\ns_cbranch_scc1 LB_f1")
    A(f"v_pk_add_f32 {vr(G,2)}, {vr(G,2)}, {vr(G+4,2)}\nv_pk_add_f32 {vr(G+2,2)}, {vr(G+2,2)}, {vr(G+6,2)}")
    A("LB_f1:")
    for c in ("row_ror:4", "row_ror:8"):
        for r in range(4): A(f"v_add_f32_dpp v{G+r}, v{G+r}, v{G+r} {c} row_mask:0xf bank_mask:0xf")
    A(f"v_and_b32 v{T}, 3, v0\nv_lshlrev_b32 v{T}, 7, v{T}")
    A(f"v_permlane16_swap_b32 v{G}, v{G+1}\nv_permlane16_swap_b32 v{G+2}, v{G+3}")
    A(f"v_add_f32 v{G}, v{G}, v{G+1}\nv_add_f32 v{G+2}, v{G+2}, v{G+3}")
    A(f"v_lshl_add_u32 v{T}, v{SL}, 5, v{T}\ns_lshl_b32 s{s2}, s3, 2\nv_add_u32 v{T}, s{s2}, v{T}")
    A(f"v_permlane32_swap_b32 v{G}, v{G+2}\nv_add_f32 v{G}, v{G}, v{G+2}")
    A("s_mov_b32 exec_lo, 0x000f000f\ns_mov_b32 exec_hi, 0x000f000f")
    A(f"ds_write_b32 v{T}, v{G} offset:{L_F}")
    A("s_mov_b64 exec, -1")
    A("s_waitcnt lgkmcnt(0)\ns_barrier")
    A("s_cmp_lg_u32 s3, 0\ns_cbranch_scc1 LB_done")
    A(f"v_lshlrev_b32 v{T+1}, 1, v{CH}")
    A(f"ds_read_b128 {vr(G,4)}, v{T+1} offset:{L_F}\nds_read_b128 {vr(G+4,4)}, v{T+1} offset:{L_F+16}")
    A(f"s_lshl_b32 s{s2}, s{sF}, 5\nv_lshrrev_b32 v{T}, 3, v{CH}\nv_add_u32 v{T}, s{s2}, v{T}\nv_lshlrev_b32 v{XF}, 16, v{XF}")
    A("s_waitcnt lgkmcnt(0)")
    A(f"v_pk_add_f32 {vr(G,2)}, {vr(G,2)}, {vr(G+2,2)}\nv_pk_add_f32 {vr(G+4,2)}, {vr(G+4,2)}, {vr(G+6,2)}")
    A(f"v_add_f32 v{G}, v{G}, v{G+1}\nv_add_f32 v{G+4}, v{G+4}, v{G+5}")
    A(f"v_cvt_pk_bf16_f32 v{G}, v{G}, v{G+4}")
    A(f"v_lshlrev_b32 v{G+1}, 16, v{G}\nv_and_b32 v{G+2}, 0xffff0000, v{G}")
    A(f"v_add_f32 v{G+1}, v{XF}, v{G+1}")
    rbf(G+1, f"v{G+1}")
    A(f"v_add_f32 v{G+1}, v{G+1}, v{G+2}\nv_cvt_pk_bf16_f32 v{G+1}, v{G+1}, v{G+1}")
    A("s_mov_b32 exec_lo, 0xffff\ns_mov_b32 exec_hi, 0")
    A(f"buffer_store_short v{G+1}, v{T}, {srd(SRD_OUT)}, 0 offen")
    A(f"s_cmp_lg_u32 s{sF}, 0\ns_cbranch_scc1 LB_noep")
    A(f"s_mov_b32 exec_lo, 1\nv_mov_b32 v{T+2}, 0\nv_mov_b32 v{T+3}, s{sE}")
    A(f"buffer_store_dword v{T+3}, v{T+2}, {srd(SRD_WS)}, 0 offen")
    A("LB_noep:")
    A("s_mov_b64 exec, -1")
    A("LB_done:")
    if only == "B":
        A(f"s_cmp_lg_u32 s2, {1-apar}\ns_cbranch_scc1 LB_x\ns_sleep 127\nv_mov_b32 v{T+2}, 0\nv_mov_b32 v{T+3}, s{sE}\nbuffer_store_dword v{T+3}, v{T+2}, {srd(SRD_WS)}, 0 offen sc1\nLB_x:")
    if amp:
        A(f"s_cmp_eq_u32 s{sF}, -1\ns_cbranch_scc1 L_end\ns_cmp_lg_u32 s3, 0\ns_cbranch_scc1 L_end")
        A("s_memrealtime s[6:7]\ns_waitcnt lgkmcnt(0)")
        A(f"s_lshl_b32 s8, s{sF}, 3\ns_add_u32 s8, s8, {TSBASE+4096}\nv_mov_b32 v{T}, s6\nv_mov_b32 v{T+1}, s{sTAG}\nv_mov_b32 v{T+2}, s8")
        A(f"s_mov_b64 exec, 1\nbuffer_store_dwordx2 {vr(T,2)}, v{T+2}, {srd(SRD_WS)}, 0 offen sc1\ns_mov_b64 exec, -1")
        A(f"s_cmp_lg_u32 s{sF}, 0\ns_cbranch_scc1 L_end")
        if amp == "maxend":
            A(f"v_lshlrev_b32 v{T+4}, 3, v0\nv_add_u32 v{T+4}, {TSBASE+4096}, v{T+4}\ns_mov_b32 s9, 100000")
            A(f"LB_me:\nbuffer_load_dwordx2 {vr(G,2)}, v{T+4}, {srd(SRD_WS)}, 0 offen sc1\ns_waitcnt vmcnt(0)\nv_cmp_ne_u32 vcc, s{sTAG}, v{G+1}\ns_cbranch_vccz LB_me2\ns_sub_u32 s9, s9, 1\ns_cbranch_scc0 LB_me\nLB_me2:")
            A(f"v_subrev_u32 v{G}, s80, v{G}\ns_mov_b32 s9, 0")
            for ln in range(64): A(f"v_readlane_b32 s10, v{G}, {ln}\ns_max_u32 s9, s9, s10")
            A("s_add_u32 s6, s9, s80")
        A(f"v_lshlrev_b32 v{T}, 5, v0\nv_add_u32 v{T}, {TSBASE}, v{T}")
        A(f"buffer_load_dwordx4 {vr(G,4)}, v{T}, {srd(SRD_WS)}, 0 offen sc1\nbuffer_load_dwordx4 {vr(G+4,4)}, v{T}, {srd(SRD_WS)}, 0 offen offset:16 sc1\ns_waitcnt vmcnt(0) lgkmcnt(0)")
        for q in range(4):
            A(f"v_subrev_u32 v{G+2*q}, s80, v{G+2*q}\nv_add_u32 v{G+2*q}, 5000, v{G+2*q}\nv_cmp_eq_u32 vcc, s{sTAG}, v{G+2*q+1}")
            A(f"v_cndmask_b32 v{U+q}, -1, v{G+2*q}, vcc\nv_cndmask_b32 v{U+4+q}, 0, v{G+2*q}, vcc")
        A(f"v_min_u32 v{U}, v{U}, v{U+1}\nv_min_u32 v{U+2}, v{U+2}, v{U+3}\nv_min_u32 v{U}, v{U}, v{U+2}")
        A(f"v_max_u32 v{U+4}, v{U+4}, v{U+5}\nv_max_u32 v{U+6}, v{U+6}, v{U+7}\nv_max_u32 v{U+4}, v{U+4}, v{U+6}")
        A("s_mov_b32 s8, -1\ns_mov_b32 s9, 0")
        for ln in range(64):
            A(f"v_readlane_b32 s10, v{U}, {ln}\nv_readlane_b32 s11, v{U+4}, {ln}\ns_min_u32 s8, s8, s10\ns_max_u32 s9, s9, s11")
        A("s_sub_u32 s6, s6, s80\ns_add_u32 s6, s6, 5000")
        if amp == "skew": A("s_sub_u32 s12, s9, s8")
        elif amp in ("total", "maxend"): A("s_sub_u32 s12, s6, s8")
        elif amp == "fromlast": A("s_sub_u32 s12, s6, s9")
        elif amp == "zero": A("s_mov_b32 s12, 0")
        A(f"s_mul_i32 s12, s12, 10\ns_add_u32 s12, s12, s8\ns_sub_u32 s12, s12, 5000\ns_add_u32 s12, s12, 3000")
        A(f"LB_pad:\ns_memrealtime s[4:5]\ns_waitcnt lgkmcnt(0)\ns_sub_u32 s4, s4, s80\ns_cmp_lt_i32 s4, s12\ns_cbranch_scc1 LB_pad")
    stamp(9)
    write_stamps()
    A("s_endpgm")
    A("L_roleSB:")
    A(f"s_mul_i32 s{sPROD}, s{sG}, 28\ns_add_u32 s{sPROD}, s{sPROD}, s{sS}")
    A(f"s_lshl_b32 s{s2}, s{sPROD}, 10\ns_add_u32 s{s2}, s{s2}, {XBASE}\nv_lshl_add_u32 v{VXG}, v0, 4, s{s2}")
    A(f"s_and_b32 s{s2}, s{sPROD}, 0xfc\ns_lshl_b32 s{s2}, s{s2}, 10\ns_and_b32 s{s3}, s{sPROD}, 3\ns_lshl_b32 s{s3}, s{s3}, 8\ns_add_u32 s{s2}, s{s2}, s{s3}\ns_add_u32 s{s2}, s{s2}, {XBASE}")
    A(f"v_lshlrev_b32 v{T}, 10, v{SL}\nv_add3_u32 v{VXS}, v{T}, v{CH}, s{s2}")
    A("s_waitcnt vmcnt(0)")
    ln_stats()
    if tx: A(f"buffer_load_dwordx4 {vr(G,4)}, v{VXG}, {srd(SRD_WS)}, 0 offen")
    if tlb or tlbout:
        A(f"s_lshl_b32 s{s0}, s{sPROD}, 16\nv_mov_b32 v{T}, s{s0}\nv_mov_b32 v{T+1}, 0\ns_mov_b64 exec, 1")
        if tlb: A(f"global_load_dword v{G+12}, v{T}, s[20:21] {pol}")
        if tlbout: A(f"global_load_dword v{G+13}, v{T+1}, s[22:23]")
        A("s_mov_b64 exec, -1")
    A(f"v_lshlrev_b32 v{T+4}, 3, v0")
    poll_init()
    amp_pub()
    A("s_waitcnt vmcnt(0)\ns_barrier")
    reduce8()
    pub_local(PB, VXS, xpol)
    if b_pubbar: A("s_barrier")
    stamp(4)
    A("LB_xpoll:")
    A(f"buffer_load_dwordx4 {vr(G,4)}, v{VXG}, {srd(SRD_WS)}, s{sPATH} offen sc1")
    A("s_waitcnt vmcnt(0)")
    A(f"v_cmp_ne_u32 vcc, s{sCUR}, v{G+2}\ns_cmp_eq_u64 vcc, 0\ns_cbranch_scc1 LB_xok")
    def late_x():
        A(f"v_mov_b32 v{PB+2}, s{sTAG}")
        pub_global(PB, VXS)
    poll_tail("LB_xpoll", late_x, xsleep)
    A("LB_xok:")
    stamp(5)
    A(f"v_permlane16_swap_b32 v{G}, v{G+1}\nv_add_f32 v{G}, v{G}, v{G+1}")
    rbf(G, f"v{G}")
    A(f"s_mov_b32 s{s2}, 0x3d372713")
    A(f"v_mul_f32 v{U}, v{G}, v{G}\nv_mov_b32 v{G+1}, v{G}\nv_fma_f32 v{U}, v{U}, s{s2}, 1.0\nv_mul_f32 v{U}, v{U}, v{G}")
    A(f"v_mul_f32 v{U}, 0xc0135761, v{U}\nv_permlane32_swap_b32 v{G+1}, v{G+2}\nv_exp_f32 v{U}, v{U}")
    A(f"v_lshrrev_b32 v{T+2}, 1, v{CH}\nv_add_f32 v{U}, 1.0, v{U}\nv_rcp_f32 v{U}, v{U}\nv_lshl_add_u32 v{T+2}, v{SL}, 2, v{T+2}\nv_mul_f32 v{U}, v{U}, v{G}")
    rbf(U, f"v{U}")
    A(f"v_mul_f32 v{U}, v{U}, v{G+2}\ns_mov_b32 exec_hi, 0\nv_cvt_pk_bf16_f32 v{U}, v{U}, v{U}")
    A(f"ds_write_b32 v{T+2}, v{U} offset:{L_O}")
    A("s_mov_b32 exec_hi, -1")
    A("s_waitcnt lgkmcnt(0)\ns_barrier")
    stamp(9)
    write_stamps()
    A("L_end:")
    A("s_endpgm")

    body, nins = fix_hazards(L)
    nv = max(hi, R0 + 2)
    acc = (nv + 3) // 4 * 4
    head = [l for l in open(f"cdna_kernels/{NAME}.s.ref").read().split("\n") if l.startswith(";") and "@launch" not in l and "Override" not in l and "grid=ceil" not in l]
    out = "\n".join(head) + f"\n; @launch grid=(256,1,1) block=({NW*64},1,1) lds={LDS_BYTES}\n"
    out += f'.amdgcn_target "amdgcn-amd-amdhsa--gfx950"\n.text\n.globl {NAME}_kernel\n.p2align 8\n.type {NAME}_kernel,@function\n{NAME}_kernel:\n'
    txt = "\n".join(("" if l.endswith(":") else "    ") + l for l in body) + "\n"
    txt = txt.replace("CODE_LINES", f"(L_end - {NAME}_kernel) / 128")
    out += txt
    out += f""".section .rodata,"a"
.p2align 6
.amdhsa_kernel {NAME}_kernel
  .amdhsa_next_free_vgpr {nv}
  .amdhsa_next_free_sgpr 86
  .amdhsa_accum_offset {acc}
  .amdhsa_group_segment_fixed_size 0
  .amdhsa_kernarg_size 96
  .amdhsa_user_sgpr_count 2
  .amdhsa_user_sgpr_kernarg_segment_ptr 1
  .amdhsa_system_sgpr_workgroup_id_x 1
  .amdhsa_float_denorm_mode_32 3
.end_amdhsa_kernel
"""
    return out

if __name__ == "__main__":
    kw = eval("dict(" + (sys.argv[2] if len(sys.argv) > 2 else "") + ")")
    txt = gen(**kw)
    open(sys.argv[1], "w").write(txt)
```
